```python
import torch

def _softmax(x, axis=-1):
    return torch.softmax(x, dim=axis)

def _gelu(x):
    return torch.nn.functional.gelu(x, approximate='tanh')

def _silu(x):
    return torch.nn.functional.silu(x)

def _sigmoid(x):
    return torch.sigmoid(x)

def _layernorm(x, axis=-1, eps=1e-05):
    m = x.mean(dim=axis, keepdim=True)
    v = x.var(dim=axis, keepdim=True, unbiased=False)
    return (x - m) / torch.sqrt(v + eps)

def _scatter_add(tgt, idx, src, axis=0):
    return tgt.clone().index_add_(axis, idx, src)

def _segment_sum(src, seg, n):
    out = torch.zeros((n,) + src.shape[1:], dtype=src.dtype)
    return out.index_add_(0, seg, src)

def _pad(x, pw):
    flat = tuple((v for pair in reversed(pw) for v in pair))
    return torch.nn.functional.pad(x, flat)
kernel_name = 'interleave_layers__memory_aug_recurrent_mem_tr__dense_activation_relu__prompt'

def setup_inputs():

    _w = lambda a: (lambda t: t.to(torch.bfloat16) if t.is_floating_point() else t)(torch.as_tensor(a))

    def _A_setup():
        B, S, Dm = (1, 2048, 512)
        H, Dh = (32, 128)
        M, seg = (8, 32)
        seg = min(seg, S)
        S = S // seg * seg
        return {'x': _w((lambda *s: torch.randn(*s, dtype=torch.bfloat16) * 0.05)(B, S, Dm)), 'mem0': _w((lambda *s: torch.randn(*s, dtype=torch.bfloat16) * 0.8)(B, M, Dm)), 'Wq': _w((lambda *s: torch.randn(*s, dtype=torch.bfloat16) * 0.8)(Dm, H, Dh) * Dm ** (-0.5)), 'Wk': _w((lambda *s: torch.randn(*s, dtype=torch.bfloat16) * 0.8)(Dm, H, Dh) * Dm ** (-0.5)), 'Wv': _w((lambda *s: torch.randn(*s, dtype=torch.bfloat16) * 0.8)(Dm, H, Dh) * Dm ** (-0.5)), 'Wo': _w((lambda *s: torch.randn(*s, dtype=torch.bfloat16) * 0.8)(H, Dh, Dm) * (H * Dh) ** (-0.5)), 'seg_len': seg}
    _A_in = _A_setup()

    def _B_setup():
        B, S, D, Dff = (1, 2048, 512, 1376)
        return {'x': _w((lambda *s: torch.randn(*s, dtype=torch.bfloat16) * 0.05)(B, S, D)), 'w1': _w((lambda *s: torch.randn(*s, dtype=torch.bfloat16) * 0.05)(D, Dff)), 'w2': _w((lambda *s: torch.randn(*s, dtype=torch.bfloat16) * 0.05)(Dff, D))}
    _B_in = _B_setup()
    return {'A_x': _A_in['x'], 'A_mem0': _A_in['mem0'], 'A_Wq': _A_in['Wq'], 'A_Wk': _A_in['Wk'], 'A_Wv': _A_in['Wv'], 'A_Wo': _A_in['Wo'], 'A_seg_len': _A_in['seg_len'], 'B_x': _B_in['x'], 'B_w1': _B_in['w1'], 'B_w2': _B_in['w2']}

def reference(A_x, A_mem0, A_Wq, A_Wk, A_Wv, A_Wo, A_seg_len, B_x, B_w1, B_w2):

    def _A_ref(x, mem0, Wq, Wk, Wv, Wo, seg_len):
        B, S, Dm = x.shape
        H, Dh = (Wq.shape[1], Wq.shape[2])
        M = mem0.shape[1]
        scale = Dh ** (-0.5)
        n_seg = S // seg_len
        L = M + seg_len
        idx = torch.arange(L)
        mask = (idx[:, None] < M) | (idx[:, None] >= idx[None, :])
        mem = mem0
        outs = []
        for s in range(n_seg):
            xs = x[:, s * seg_len:(s + 1) * seg_len, :].clone()
            h = torch.concatenate([mem, xs], axis=1)
            q = torch.einsum('btd,dhe->bhte', h, Wq)
            k = torch.einsum('btd,dhe->bhte', h, Wk)
            v = torch.einsum('btd,dhe->bhte', h, Wv)
            scores = torch.einsum('bhqe,bhke->bhqk', q, k) * scale
            scores = torch.where(mask[None, None], scores, -1000000000.0)
            p = _softmax(scores, axis=-1)
            o = torch.einsum('bhqk,bhke->bhqe', p, v)
            o = torch.einsum('bhte,hed->btd', o, Wo)
            mem = o[:, :M, :].clone()
            outs.append(o[:, M:, :])
        return torch.concatenate(outs, axis=1)

    def _B_ref(x, w1, w2):
        h = torch.einsum('bsd,df->bsf', x, w1)
        zero = torch.zeros_like(h)
        h = torch.maximum(h, zero)
        return torch.einsum('bsf,fd->bsd', h, w2)
    x = A_x
    x = x + _A_ref(_layernorm(x, axis=-1), A_mem0, A_Wq, A_Wk, A_Wv, A_Wo, A_seg_len)
    x = x + _B_ref(_layernorm(x, axis=-1), B_w1, B_w2)
    x = x + _A_ref(_layernorm(x, axis=-1), A_mem0, A_Wq, A_Wk, A_Wv, A_Wo, A_seg_len)
    x = x + _B_ref(_layernorm(x, axis=-1), B_w1, B_w2)
    return x
```

```python
import re

REG_RE = re.compile(r'^(-?|\|?)(abs\()?([vas])(\d+|\[(\d+):(\d+)\])\)?\|?$')

def parse_reg(tok):
    t = tok.strip()
    if t.startswith('-'): t = t[1:]
    if t.startswith('abs(') and t.endswith(')'): t = t[4:-1]
    if t.startswith('|') and t.endswith('|'): t = t[1:-1]
    if t == 'vcc': return [('s', 'vcc_lo'), ('s', 'vcc_hi')]
    if t in ('vcc_lo', 'vcc_hi'): return [('s', t)]
    if t == 'exec': return [('s', 'exec_lo'), ('s', 'exec_hi')]
    if t in ('exec_lo', 'exec_hi'): return [('s', t)]
    if t == 'm0': return [('s', 'm0')]
    m = re.match(r'^([vas])(\d+)$', t)
    if m: return [(m.group(1), int(m.group(2)))]
    m = re.match(r'^([vas])\[(\d+):(\d+)\]$', t)
    if m: return [(m.group(1), i) for i in range(int(m.group(2)), int(m.group(3)) + 1)]
    return []

TRANS = ('v_exp_f32', 'v_log_f32', 'v_rcp_f32', 'v_rsq_f32', 'v_sqrt_f32', 'v_sin_f32', 'v_cos_f32', 'v_rcp_iflag_f32')

class Ins:
    __slots__ = ('text', 'op', 'ops', 'mods', 'kind', 'wr', 'rd', 'passes', 'A', 'B', 'C', 'D', 'target', 'states', 'dpp', 'sdata', 'wide', 'ldsdma')
    def __init__(self, text):
        self.text = text
        body = text.split(';')[0].strip()
        parts = body.split(None, 1)
        self.op = parts[0]
        rest = parts[1] if len(parts) > 1 else ''
        toks = [x.strip() for x in rest.split(',')] if rest else []
        mods = []
        if toks:
            lp = toks[-1].split()
            toks[-1] = lp[0] if lp else ''
            mods = lp[1:]
        self.ops, self.mods = toks, mods
        self.wr, self.rd = [], []
        self.passes = 0; self.A = self.B = self.C = self.D = []
        self.target = None; self.states = 1; self.dpp = False; self.sdata = []; self.wide = False; self.ldsdma = False
        op = self.op
        R = [parse_reg(t) for t in toks]
        flat = lambda l: [x for y in l for x in y]
        if op.startswith('v_mfma') or op.startswith('v_smfmac'):
            self.kind = 'mfma'
            self.passes = 8 if '32x32' in op else 4
            self.D, self.A, self.B = R[0], R[1], R[2]
            if op.startswith('v_smfmac'):
                self.C = R[0]; self.A = R[1] + R[3]
            else:
                self.C = R[3]
            self.wr = self.D; self.rd = self.A + self.B + self.C
        elif op.startswith('v_'):
            self.kind = 'valu'
            base = op.replace('_e32', '').replace('_e64', '').replace('_dpp', '')
            self.dpp = op.endswith('_dpp') or any(m.startswith(('row_', 'quad_perm', 'wave_')) for m in mods)
            if base.startswith('v_cmp'):
                self.wr = R[0]; self.rd = flat(R[1:])
                if base.startswith('v_cmpx'): self.wr = self.wr + parse_reg('exec')
            elif base.startswith('v_permlane') and 'swap' in base:
                self.wr = R[0] + R[1]; self.rd = R[0] + R[1]
            elif base in ('v_add_co_u32', 'v_sub_co_u32', 'v_addc_co_u32', 'v_subb_co_u32', 'v_mad_u64_u32'):
                self.wr = R[0] + R[1]; self.rd = flat(R[2:])
            elif base == 'v_nop':
                pass
            else:
                self.wr = R[0]; self.rd = flat(R[1:])
                if base.startswith(('v_fmac', 'v_pk_fmac', 'v_writelane', 'v_dot2c')) or self.dpp: self.rd = self.rd + R[0]
        elif op.startswith(('buffer_', 'global_', 'flat_')):
            self.kind = 'vmem'
            lds = 'lds' in mods or '_lds_' in op
            self.ldsdma = lds
            if op in ('buffer_inv', 'buffer_wbl2'):
                pass
            elif op.startswith('buffer_'):
                if lds: self.rd = flat(R)
                elif 'load' in op: self.wr = R[0]; self.rd = flat(R[1:])
                else:
                    self.rd = flat(R); self.sdata = R[0]
                    if 'atomic' in op and 'sc0' in mods: self.wr = R[0]
            else:
                if lds: self.rd = flat(R)
                elif 'load' in op: self.wr = R[0]; self.rd = flat(R[1:])
                elif 'atomic' in op and 'sc0' in mods: self.wr = R[0]; self.rd = flat(R[1:]); self.sdata = R[2]
                else: self.rd = flat(R); self.sdata = R[1]
            self.wide = ('store' in op) and (op.endswith('x3') or op.endswith('x4'))
            if lds: self.rd = self.rd + [('s', 'm0')]
        elif op.startswith('ds_'):
            self.kind = 'ds'
            if 'read' in op or 'permute' in op or 'swizzle' in op or '_rtn' in op:
                self.wr = R[0]; self.rd = flat(R[1:])
            else:
                self.rd = flat(R)
        elif op.startswith('s_'):
            self.kind = 'salu'
            if op == 's_nop': self.states = int(toks[0], 0) + 1
            elif op.startswith('s_cbranch') or op == 's_branch': self.target = toks[0]
            elif op.startswith(('s_cmp', 's_waitcnt', 's_barrier', 's_endpgm', 's_sleep', 's_setprio', 's_bitcmp', 's_setpc')):
                self.rd = flat(R)
            else:
                if R:
                    self.wr = R[0]; self.rd = flat(R[1:])
                if 'saveexec' in op: self.wr = self.wr + parse_reg('exec')
        else:
            raise ValueError('unknown instruction: ' + text)

def need(p, c):
    n = 0
    pw = set(p.wr)
    inter = lambda a, b: bool(set(a) & set(b))
    if p.kind == 'mfma':
        big = p.passes == 8
        if c.kind == 'mfma':
            if inter(p.D, c.C):
                if not (c.C == p.D and c.passes == p.passes): n = max(n, 10 if big else 6)
            if inter(p.D, c.A + c.B): n = max(n, 12 if big else 8)
            if inter(p.D, c.D) and not inter(p.D, c.C): n = max(n, 10 if big else 6)
        elif c.kind in ('valu', 'vmem', 'ds'):
            if inter(p.D, c.rd + c.wr): n = max(n, 12 if big else 8)
            if c.kind == 'valu' and inter(p.C, c.wr): n = max(n, 7 if big else 3)
    elif p.kind == 'valu':
        vw = [r for r in p.wr if r[0] in 'va']
        sw = [r for r in p.wr if r[0] == 's']
        if c.kind == 'mfma':
            if inter(vw, c.rd): n = max(n, 2)
            if any(r[1] in ('exec_lo', 'exec_hi') for r in sw): n = max(n, 4)
        if c.kind == 'valu':
            if c.dpp and inter(vw, c.rd): n = max(n, 2)
            if c.op.startswith('v_permlane') and inter(vw, c.rd): n = max(n, 2)
            if c.op.startswith(('v_readlane', 'v_readfirstlane')) and inter(vw, c.rd): n = max(n, 1)
            pb = p.op.replace('_e32', '').replace('_e64', '')
            if pb in TRANS and inter(vw, c.rd): n = max(n, 1)
            if any('op_sel' in m or 'dst_sel' in m for m in p.mods) and inter(vw, c.rd + c.wr): n = max(n, 1)
            crd = list(c.rd)
            if c.op.startswith('v_cndmask') and len(c.ops) == 3: crd += parse_reg('vcc')
            if inter(sw, crd):
                n = max(n, 4 if c.op.startswith(('v_readlane', 'v_writelane')) else 2)
            if any(r[1] in ('exec_lo', 'exec_hi') for r in sw):
                n = max(n, 5 if c.dpp else 4)
        if c.kind == 'vmem' and inter(sw, c.rd): n = max(n, 5)
    elif p.kind == 'salu':
        if ('s', 'm0') in pw and c.ldsdma: n = max(n, 1)
    elif p.kind == 'vmem':
        if p.wide and inter(p.sdata, c.wr): n = max(n, 2 if c.kind in ('valu', 'mfma') else 1)
    return n

class Asm:
    def __init__(self):
        self.items = []
        self.uid = 0
    def __call__(self, text):
        for line in text.split('\n'):
            t = line.strip()
            if not t or t.startswith(';'): continue
            if t.endswith(':') and ' ' not in t: self.items.append(('l', t[:-1]))
            elif t.startswith('.'): self.items.append(('r', t))
            else: self.items.append(('i', Ins(t)))
        return self
    def label(self, name): self.items.append(('l', name))
    def newlabel(self, p='L'):
        self.uid += 1
        return f'{p}_{self.uid}'
    def nops(self, states):
        while states > 0:
            k = min(states, 16); self(f's_nop {k-1}'); states -= k

    def fix_hazards(self, verbose=False):
        MAXD = 13
        inserted = 0
        changed = True
        while changed:
            changed = False
            items = self.items
            lab = {}
            for i, (k, v) in enumerate(items):
                if k == 'l': lab[v] = i
            jumps = {}
            for i, (k, v) in enumerate(items):
                if k == 'i' and v.target is not None:
                    assert v.target in lab, v.text
                    jumps.setdefault(lab[v.target], []).append(i)
            out = []
            extra = {}
            for i, (k, c) in enumerate(items):
                if k != 'i' or c.kind == 'salu': continue
                req = 0
                stack = [(i - 1, 0)]
                seen = {}
                while stack:
                    j, d = stack.pop()
                    while j >= 0 and d < MAXD:
                        if seen.get(j, 99) <= d: break
                        seen[j] = d
                        kk, p = items[j]
                        if kk == 'l':
                            for src in jumps.get(j, []): stack.append((src, d))
                            jj = j - 1
                            while jj >= 0 and items[jj][0] != 'i' and items[jj][0] != 'l': jj -= 1
                            if jj >= 0 and items[jj][0] == 'i' and items[jj][1].op in ('s_branch', 's_endpgm', 's_setpc_b64'): break
                        elif kk == 'i':
                            r = need(p, c) - d
                            if r > req: req = r
                            d += p.states + extra.get(j, 0)
                        j -= 1
                if req > 0:
                    extra[i] = req
            if extra:
                new = []
                for i, it in enumerate(items):
                    if i in extra:
                        if verbose: print('nop', extra[i], 'before', it[1].text)
                        new.append(('i', Ins(f's_nop {extra[i]-1}')))
                        inserted += 1
                    new.append(it)
                self.items = new
                changed = True
        return inserted

    def text(self):
        o = []
        for k, v in self.items:
            if k == 'i': o.append('  ' + v.text)
            elif k == 'l': o.append(v + ':')
            else: o.append(v)
        return '\n'.join(o) + '\n'
```

```python
from asmlib import *
from layout import *

KNAME = "interleave_layers__memory_aug_recurrent_mem_tr__dense_activation_relu__prompt_kernel"
S_BUD = 's3'
S_W   = 's4'
S_G   = 's5'
S_I   = 's6'
S_L   = 's7'
WS    = 's[8:11]'
DBG   = 's[24:27]'
P_X, P_MEM0, P_WQ, P_WK, P_WV, P_WO, P_W1, P_W2, P_OUT, P_DBG, P_WS = 64, 66, 68, 70, 72, 74, 80, 82, 84, 86, 88
BUDGET = 400000

def srd(a, d, p, size):
    a(f"""s_mov_b32 s{d}, s{p}
s_mov_b32 s{d+1}, s{p+1}
s_mov_b32 s{d+2}, {size}
s_mov_b32 s{d+3}, 0x20000""")

def spin_dec(a, code):
    a(f"""s_sub_u32 {S_BUD}, {S_BUD}, 1
s_cbranch_scc1 bail_{code}""")
    a.bails.add(code)

def emit_bails(a):
    for c in sorted(a.bails):
        a(f"""bail_{c}:
s_movk_i32 s28, {c}
s_branch bail_common""")
    a(f"""bail_common:
s_mov_b64 exec, 1
s_lshl_b32 s29, {S_G}, 16
s_or_b32 s28, s28, s29
s_lshl_b32 s29, {S_I}, 8
s_or_b32 s28, s28, s29
s_lshl_b32 s29, {S_W}, 24
s_or_b32 s28, s28, s29
s_or_b32 s28, s28, 0x80000000
s_and_b32 s29, {S_G}, 7
s_lshl_b32 s29, s29, 2
s_add_u32 s29, s29, {D_ERR*4}
v_mov_b32 v2, s28
v_mov_b32 v3, s29
buffer_store_dword v2, v3, {DBG}, 0 offen sc1
s_waitcnt vmcnt(0)
s_endpgm""")

def allreduce(a, v, t, op='add'):
    for r in (8, 4, 2, 1):
        a(f"v_{op}_f32_dpp {v}, {v}, {v} row_ror:{r} row_mask:0xf bank_mask:0xf")
    a(f"""v_mov_b32 {t}, {v}
v_permlane16_swap_b32 {t}, {v}
v_{op}_f32 {v}, {v}, {t}
v_mov_b32 {t}, {v}
v_permlane32_swap_b32 {t}, {v}
v_{op}_f32 {v}, {v}, {t}""")

def layernorm8(a, x, o, t):
    s, u = f'v{t}', f'v{t+1}'
    a(f"""v_add_f32 {s}, v{x}, v{x+1}
v_add_f32 {u}, v{x+2}, v{x+3}
v_add_f32 {s}, {s}, v{x+4}
v_add_f32 {u}, {u}, v{x+5}
v_add_f32 {s}, {s}, v{x+6}
v_add_f32 {u}, {u}, v{x+7}
v_add_f32 {s}, {s}, {u}""")
    allreduce(a, s, u)
    a(f"v_mul_f32 {s}, 0x3b000000, {s}")
    for i in range(8): a(f"v_sub_f32 v{x+i}, v{x+i}, {s}")
    a(f"v_mul_f32 {s}, v{x}, v{x}\nv_mul_f32 {u}, v{x+1}, v{x+1}")
    for i in range(2, 8): a(f"v_fmac_f32 {s if i%2==0 else u}, v{x+i}, v{x+i}")
    a(f"v_add_f32 {s}, {s}, {u}")
    allreduce(a, s, u)
    a(f"""v_mov_b32 {u}, 0x3727c5ac
v_fmac_f32 {u}, 0x3b000000, {s}
v_rsq_f32 {u}, {u}""")
    for i in range(8): a(f"v_mul_f32 v{x+i}, v{x+i}, {u}")
    for i in range(4): a(f"v_cvt_pk_bf16_f32 v{o+i}, v{x+2*i}, v{x+2*i+1}")

def load_counters(a, v):
    a(f"""v_and_b32 v{v+1}, 15, v1
v_lshlrev_b32 v{v+1}, 2, v{v+1}
v_add_u32 v{v+1}, {D_TICK*4}, v{v+1}
v_cmp_eq_u32 vcc, {D_TICK*4}, v{v+1}
v_cndmask_b32 v{v+1}, v{v+1}, 0, vcc
buffer_load_dword v{v}, v{v+1}, {DBG}, 0 offen sc1
s_waitcnt vmcnt(0)""".replace("v_cndmask_b32 v%d, v%d, 0, vcc" % (v+1, v+1), "v_cndmask_b32_e64 v%d, v%d, 0, vcc" % (v+1, v+1)))

def total_counters(a, v, sd, st):
    a(f"v_readlane_b32 s{sd}, v{v}, 0")
    for x in range(1, 16):
        a(f"v_readlane_b32 s{st}, v{v}, {x}\ns_nop 0\ns_add_u32 s{sd}, s{sd}, s{st}")

def prologue(a, opt):
    a(f"""s_cmp_ge_u32 s2, 256
s_cbranch_scc1 the_end
s_load_dwordx16 s[64:79], s[0:1], 0
s_load_dwordx8 s[80:87], s[0:1], 64
s_load_dwordx2 s[88:89], s[0:1], 96
s_getreg_b32 s30, hwreg(HW_REG_XCC_ID)
s_and_b32 s30, s30, 15
s_mov_b32 {S_BUD}, {BUDGET}
s_mov_b32 {S_G}, 0
s_mov_b32 {S_I}, 0
s_mov_b32 {S_L}, 0
v_lshrrev_b32 v1, 6, v0
v_readfirstlane_b32 {S_W}, v1
v_and_b32 v1, 63, v0""")
    if opt.get('fake_xcc') == 'all9': a("s_mov_b32 s30, 9")
    if opt.get('fake_xcc') == 'some':
        a("""s_and_b32 s31, s2, 0x19
s_cmp_eq_u32 s31, 0x19
s_cselect_b32 s30, 9, s30""")
    a("s_waitcnt lgkmcnt(0)")
    srd(a, 8, P_WS, hex(WS_SIZE))
    srd(a, 24, P_DBG, 256)
    if not opt.get('noinit'):
        a(f"""s_cmp_eq_u32 s2, 0
s_cbranch_scc0 pro_nz
v_lshlrev_b32 v2, 4, v0
v_mov_b32 v4, 0
v_mov_b32 v5, 0
v_mov_b32 v6, 0
v_mov_b32 v7, 0""")
        for i in range(FLG_SIZE // 4096):
            a(f"s_mov_b32 s31, {FLG + i*4096}\nbuffer_store_dwordx4 v[4:7], v2, {WS}, s31 offen sc1")
        a("pro_nz:")
    a(f"""s_cmp_eq_u32 {S_W}, 0
s_cbranch_scc0 pro_nt
s_lshl_b32 s31, s30, 2
s_add_u32 s31, s31, {D_TICK*4}
s_cmp_eq_u32 s30, 0
s_cselect_b32 s31, {D_TICK0*4}, s31
s_mov_b64 exec, 1
v_mov_b32 v2, s31
v_mov_b32 v3, 1
buffer_atomic_add v3, v2, {DBG}, 0 offen sc0 sc1
v_mov_b32 v2, 0
s_waitcnt vmcnt(0)
ds_write_b32 v2, v3
s_mov_b64 exec, -1
pro_nt:
s_waitcnt vmcnt(0) lgkmcnt(0)
s_barrier
v_mov_b32 v2, 0
ds_read_b32 v3, v2""")
    if not opt.get('noinit'):
        a(f"""s_or_b32 s31, s2, {S_W}
s_cmp_eq_u32 s31, 0
s_cbranch_scc0 pro_ni
s_mov_b64 exec, 1
v_mov_b32 v4, 1
v_mov_b32 v5, {D_INIT*4}
buffer_store_dword v4, v5, {DBG}, 0 offen sc1
s_mov_b64 exec, -1
pro_ni:""")
    a(f"""s_waitcnt lgkmcnt(0)
v_readfirstlane_b32 {S_I}, v3
s_barrier
s_mov_b32 {S_G}, s30
s_cmp_lt_u32 s30, 8
s_cselect_b32 s31, 32, 0
s_cmp_lt_u32 {S_I}, s31
s_cbranch_scc1 pro_done
s_sub_u32 s32, {S_I}, s31
pro_ov:""")
    spin_dec(a, 1)
    a("s_sleep 8")
    load_counters(a, 4)
    total_counters(a, 4, 33, 34)
    a("""s_cmp_lt_u32 s33, 256
s_cbranch_scc1 pro_ov""")
    for x in range(15):
        cap = 32 if x < 8 else 0
        a(f"""v_readlane_b32 s34, v4, {x}
s_nop 0
s_max_u32 s34, s34, {cap}
s_sub_u32 s34, s34, {cap}
s_cmp_gt_u32 s30, {x}
s_cselect_b32 s34, s34, 0
s_add_u32 s32, s32, s34""")
    for g in range(8):
        a(f"""v_readlane_b32 s34, v4, {g}
s_nop 0
s_min_u32 s34, s34, 32
s_mov_b32 {S_G}, {g}
s_add_u32 {S_I}, s34, s32
s_cmp_lt_u32 {S_I}, 32
s_cbranch_scc1 pro_done
s_sub_u32 s32, {S_I}, 32""")
    a("s_branch the_end\npro_done:")
    a(f"s_and_b32 {S_I}, {S_I}, 31\ns_and_b32 {S_G}, {S_G}, 7")

def decide_mode(a, slow_label, vt=4):
    L = a.newlabel('dm'); F = a.newlabel('dmf')
    a(f"{L}:")
    load_counters(a, vt)
    a(f"""v_readlane_b32 s34, v{vt}, {S_G}
s_nop 0
s_cmp_ge_u32 s34, 32
s_cbranch_scc1 {F}""")
    total_counters(a, vt, 33, 34)
    a(f"""s_cmp_ge_u32 s33, 256
s_cbranch_scc1 {slow_label}""")
    spin_dec(a, 2)
    a(f"s_sleep 8\ns_branch {L}\n{F}:")

def wait_dbg(a, idx_expr_sgpr_or_const, thr, code, vt=4):
    L = a.newlabel('wd'); D = a.newlabel('wdd')
    a(f"""v_mov_b32 v{vt+1}, {idx_expr_sgpr_or_const}
{L}:
buffer_load_dword v{vt}, v{vt+1}, {DBG}, 0 offen sc1
s_waitcnt vmcnt(0)
v_cmp_gt_u32 vcc, {thr}, v{vt}
s_cbranch_vccz {D}""")
    spin_dec(a, code)
    a(f"s_sleep 4\ns_branch {L}\n{D}:")

def stage_tr(a, n, slots, slot_bytes, s_m0base, dma, consume, per=1):
    def issue(i):
        for q in range(per):
            a(f"s_add_u32 m0, {s_m0base}, {(i % slots) * slot_bytes + q * 1024}")
            dma(i, q)
    for i in range(min(slots, n)): issue(i)
    for i in range(n):
        out = min(n, i + slots) - (i + 1) if i == 0 else min(n, i - 1 + slots) - (i + 1)
        a(f"s_waitcnt vmcnt({max(out,0)*per})")
        nrd = consume(i, (i % slots) * slot_bytes)
        if i >= 1 and i - 1 + slots < n:
            a(f"s_waitcnt lgkmcnt({nrd})")
            issue(i - 1 + slots)
    a("s_waitcnt lgkmcnt(0)")

def tr_stamp(a, opt, k):
    if opt.get('trace'): a(f"s_memtime s[{90+2*k}:{91+2*k}]")
def tr_flush(a, opt, lane, ks, vb, wait=False):
    if opt.get('trace'):
        if wait: a("s_waitcnt lgkmcnt(0)")
        a(f"s_mov_b32 s100, m0\ns_mov_b32 m0, {lane}")
        for k in ks: a(f"v_writelane_b32 v{vb+k}, s{90+2*k}, m0")
        a("s_mov_b32 m0, s100")
def tr_begin(a, opt):
    if opt.get('trace'):
        a(f"""s_memrealtime s[90:91]
s_memtime s[92:93]
s_lshl_b32 s94, {S_G}, 5
s_add_u32 s94, s94, {S_I}
s_lshl_b32 s94, s94, 2
s_add_u32 s94, s94, {S_W}
s_lshl_b32 s94, s94, 11
s_add_u32 s101, s94, {TRACE}
s_waitcnt lgkmcnt(0)
v_mov_b32 v2, s90
v_mov_b32 v3, s92
v_mov_b32 v4, 0
s_mov_b64 exec, 1
buffer_store_dwordx2 v[2:3], v4, {WS}, s101 offen offset:2040
s_mov_b64 exec, -1
s_waitcnt vmcnt(0)""")
def tr_dump(a, opt, n, vb, vt):
    if opt.get('trace'):
        a(f"v_lshlrev_b32 v{vt}, 2, v1")
        for k in range(n): a(f"buffer_store_dword v{vb+k}, v{vt}, {WS}, s101 offen offset:{256*k}")
        a(f"""s_memrealtime s[90:91]
s_memtime s[92:93]
s_waitcnt lgkmcnt(0) vmcnt(0)
v_mov_b32 v{vb}, s90
v_mov_b32 v{vb+1}, s92
s_mov_b64 exec, 1
buffer_store_dwordx2 v[{vb}:{vb+1}], v{vt}, {WS}, s101 offen offset:2032
s_mov_b64 exec, -1""")


class Cnt:
    def __init__(self, a, name, mx):
        self.a, self.name, self.mx, self.q, self.done = a, name, mx, [], 0
    def issue(self, text, tag=None):
        self.a(text); self.q.append(tag)
    def wait(self, *tags):
        idx = max(max(i for i, t in enumerate(self.q) if t == tag) for tag in tags)
        if idx < self.done: return
        n = len(self.q) - 1 - idx
        self.a(f"s_waitcnt {self.name}({min(n, self.mx)})")
        self.done = idx + 1 if n <= self.mx else len(self.q) - self.mx
    def all(self):
        self.a(f"s_waitcnt {self.name}(0)"); self.done = len(self.q)
```

```python
MB = 1 << 20
FLG      = 0x0000000
F_KV     = FLG + 0x0000
F_Q      = FLG + 0x2000
F_KM     = FLG + 0x4000
F_LN1    = FLG + 0x6000
F_AOR    = FLG + 0x6400
F_FFR    = FLG + 0x6500
F_AOD    = FLG + 0x6600
F_FFD    = FLG + 0x6700
FLG_SIZE = 0x8000
XN       = 1 * MB
XNF      = 5 * MB
XA       = 9 * MB
XF       = 13 * MB
CRING    = 16 * MB
CMEM_OFF = 512 * 1024
AORING   = 18 * MB
FFRING   = 22 * MB
KM       = 24 * MB
QKV      = 40 * MB
TRACE    = 140 * MB
WS_SIZE  = 256 * MB
D_TICK0  = 0
D_TICK   = 32
D_INIT   = 48
D_GINIT  = 49
D_ERR    = 8
```

```python
from common import *
SCL = 0x3e0293ee
SYNC = 0x4000
BIG = 0x40000000

def lds_spin(a, vaddr, vt, nwords, off, thr, code, sleep=1):
    L = a.newlabel('ls'); D = a.newlabel('lsd')
    a(f"{L}:")
    if nwords == 1:
        a(f"ds_read_b32 v{vt}, {vaddr} offset:{off}\ns_waitcnt lgkmcnt(0)")
    else:
        a(f"ds_read2_b32 v[{vt}:{vt+1}], {vaddr} offset0:{off//4} offset1:{off//4+1}\ns_waitcnt lgkmcnt(0)\nv_min_i32 v{vt}, v{vt}, v{vt+1}")
    a(f"v_cmp_gt_i32 vcc, {thr}, v{vt}\ns_cbranch_vccz {D}")
    spin_dec(a, code)
    if sleep: a(f"s_sleep {sleep}")
    a(f"s_branch {L}\n{D}:")

def load_w_perm(a, srdname, vaddr, s_base, nz, row_of, colbyte, dst, tmp):
    a("s_mov_b32 s58, 0x05040100\ns_mov_b32 s59, 0x07060302")
    NB = 6
    def issue(z):
        for j in range(8):
            r = tmp + 16 * (z % NB) + 2 * j
            a(f"s_add_u32 s33, {s_base}, {row_of(z, j) + colbyte(z)}")
            a(f"buffer_load_dwordx2 v[{r}:{r+1}], {vaddr}, {srdname}, s33 offen")
    for z in range(min(NB, nz)): issue(z)
    t = tmp + 16 * NB
    for z in range(nz):
        a(f"s_waitcnt vmcnt({8 * (min(nz, z + NB) - z - 1)})")
        b = tmp + 16 * (z % NB)
        for tau in range(4):
            for i in range(4):
                lo, hi = b + 4*i + (tau >> 1), b + 4*i + 2 + (tau >> 1)
                a(f"v_perm_b32 v{t + (i&1)}, v{hi}, v{lo}, {'s58' if tau % 2 == 0 else 's59'}")
                a(f"v_accvgpr_write_b32 a{dst(tau, z) + i}, v{t + (i&1)}")
        if z + NB < nz: issue(z + NB)

def group_epilogue(G, PK, vaddr, s_slot, s_phase, TS, imm, SC1):
    L = []
    for pi, r in enumerate(range(0, 16, 2)):
        p = PK + 4 * (pi % 4)
        L += [f"v_cvt_pk_bf16_f32 v{p}, v{G+r}, v{G+16+r}", f"v_cvt_pk_bf16_f32 v{p+2}, v{G+r+1}, v{G+16+r+1}",
              f"v_cvt_pk_bf16_f32 v{p+1}, v{G+32+r}, v{G+48+r}", f"v_cvt_pk_bf16_f32 v{p+3}, v{G+32+r+1}, v{G+48+r+1}",
              f"s_add_u32 s33, {s_slot}, {(8*(r>>2) + (r&3)) * TS}",
              f"v_permlane16_swap_b32 v{p}, v{p+2}", f"v_permlane16_swap_b32 v{p+1}, v{p+3}",
              f"v_and_or_b32 v{p}, v{p}, -2, {s_phase}",
              f"buffer_store_dwordx4 v[{p}:{p+3}], {vaddr}, {WS}, s33 offen offset:{imm}{SC1}"]
    return L

def part_addr(a, v, t, TS):
    a(f"""v_bfe_u32 {v}, v1, 5, 1
v_lshlrev_b32 {v}, 2, {v}
v_bfe_u32 {t}, v1, 4, 1
v_add_u32 {v}, {v}, {t}
v_mul_u32_u24 {v}, {TS}, {v}
v_and_b32 {t}, 15, v1
v_lshl_add_u32 {v}, {t}, 4, {v}""")

def selectors(a, S1, S2, t):
    a(f"""v_bfe_u32 v{t}, v1, 1, 3
v_and_b32 v{t+1}, 1, v1
v_lshlrev_b32 v{t+1}, 4, v{t+1}
v_mov_b32 v{t+2}, 0x3f80
v_lshlrev_b32 v{t+1}, v{t+1}, v{t+2}""")
    for q in range(4):
        a(f"v_cmp_eq_u32 vcc, {q}, v{t}\nv_cndmask_b32 v{S1+q}, 0, v{t+1}, vcc")
        a(f"v_cmp_eq_u32 vcc, {q+4}, v{t}\nv_cndmask_b32 v{S2+q}, 0, v{t+1}, vcc")

def reduce_loads(a, NQ, vaddrs, s_base, D):
    for q in range(NQ):
        if q: a(f"s_add_u32 s33, {s_base}, {4096*q}")
        for G in range(4):
            r = D + 4 * (4*q + G)
            a(f"buffer_load_dwordx4 v[{r}:{r+3}], {vaddrs[q]}, {WS}, {'s33' if q else s_base} offen offset:{256*G} sc1")

def reduce_sum(a, NQ, D, S1, S2, R, vt, s_phase, after, lastmask=None):
    n = 4 * NQ
    for i in range(n):
        q, G = i // 4, i % 4
        r = D + 4 * i
        a(f"s_waitcnt vmcnt({n - 1 - i + after})")
        acc = R + 4 * (G >> 1)
        first = (q == 0 and G % 2 == 0)
        S = S1 if G % 2 == 0 else S2
        a(f"v_mfma_f32_16x16x32_bf16 v[{acc}:{acc+3}], v[{S}:{S+3}], v[{r}:{r+3}], {'0' if first else f'v[{acc}:{acc+3}]'}")
        tv = vt + 1 if (lastmask and q == NQ - 1) else vt
        if i == 0 or (lastmask and i == n - 4): a(f"v_xor_b32 v{tv}, {s_phase}, v{r}")
        else: a(f"v_bitop3_b32 v{tv}, v{tv}, {s_phase}, v{r} bitop3:0xf6")
    if lastmask: a(f"v_and_or_b32 v{vt}, v{vt+1}, {lastmask}, v{vt}")
    a(f"v_and_b32 v{vt}, 1, v{vt}\nv_cmp_ne_u32 vcc, 0, v{vt}")

def add_resid(a, R, X, O):
    for i in range(4):
        a(f"""v_lshlrev_b32 v{O}, 16, v{X+i}
v_and_b32 v{O+1}, 0xffff0000, v{X+i}
v_add_f32 v{R+2*i}, v{R+2*i}, v{O}
v_add_f32 v{R+2*i+1}, v{R+2*i+1}, v{O+1}""")
    for i in range(4): a(f"v_cvt_pk_bf16_f32 v{O+i}, v{R+2*i}, v{R+2*i+1}")

def unpack8(a, R, O):
    for i in range(4): a(f"v_lshlrev_b32 v{R+2*i}, 16, v{O+i}\nv_and_b32 v{R+2*i+1}, 0xffff0000, v{O+i}")

def flag_store(a, val, vt, vz, soff):
    a(f"""v_mov_b32 v{vt}, {val}
s_mov_b64 exec, 1
buffer_store_dword v{vt}, {vz}, {WS}, {soff} offen sc1
s_mov_b64 exec, -1""")

def phase_slot(a, s_seg, s_phase, s_slot, s_ring, shift):
    a(f"""s_lshr_b32 {s_phase}, {s_seg}, 1
s_and_b32 {s_phase}, {s_phase}, 1
s_xor_b32 {s_phase}, {s_phase}, 1
s_and_b32 {s_slot}, {s_seg}, 1
s_lshl_b32 {s_slot}, {s_slot}, {shift}
s_add_u32 {s_slot}, {s_slot}, {s_ring}""")

def role_ao(a, opt):
    if 'ao_layers' in opt:
        for l in (0, 1):
            if l not in opt['ao_layers']: a(f"s_cmp_eq_u32 {S_L}, {l}\ns_cbranch_scc1 the_end")
    a(f"""v_lshlrev_b32 v2, 2, v1
v_add_u32 v2, {SYNC}, v2
v_mov_b32 v3, 0
ds_write_b32 v2, v3
s_waitcnt lgkmcnt(0)
s_barrier
v_mov_b32 v2, {SYNC}
v_lshlrev_b32 v3, 4, v1
s_mov_b32 s20, 0
s_cmp_eq_u32 {S_W}, 0
s_cbranch_scc1 ao_A
s_cmp_eq_u32 {S_W}, 3
s_cbranch_scc1 ao_R""")
    def wait_init(code):
        if not opt.get('noinit'):
            a(f"s_lshl_b32 s33, {S_L}, 2\ns_add_u32 s33, s33, {D_GINIT*4}")
            wait_dbg(a, 's33', 32, code, vt=4)
    srd(a, 12, P_WO, 0x400000)
    a(f"""s_sub_u32 s36, {S_W}, 1
s_lshl_b32 s37, {S_I}, 17
s_lshl_b32 s33, s36, 9
s_add_u32 s37, s37, s33
v_lshrrev_b32 v4, 5, v1
v_lshlrev_b32 v4, 12, v4
v_and_b32 v5, 31, v1
v_lshl_add_u32 v4, v5, 3, v4""")
    load_w_perm(a, 's[12:15]', 'v4', 's37', 16, lambda z, j: (16*(z & 7) + 8*(j >> 2) + (j & 3)) * 1024, lambda z: 256 * (z >> 3),
                lambda tau, z: (((z >> 3)*4 + tau)*8 + (z & 7)) * 4, 16)
    wait_init(20)
    part_addr(a, 'v6', 'v7', 32768)
    a(f"""s_lshl_b32 s38, {S_L}, 21
s_add_u32 s38, s38, {AORING}
s_lshl_b32 s33, {S_I}, 10
s_add_u32 s38, s38, s33
s_lshl_b32 s33, s36, 9
s_add_u32 s38, s38, s33
s_lshl_b32 s33, s36, 2
v_add_u32 v7, s33, v2
v_mov_b32 v8, v3""")
    decide_mode(a, 'aows_top')
    OFR, PK, G0, G1 = 16, 48, 64, 128
    for P, SC1 in (('aowf', ''), ('aows', ' sc1')):
        a(f"{P}_top:\ns_add_u32 s21, s20, 1")
        lds_spin(a, 'v2', 10, 1, 0, 's21', 21)
        tr_stamp(a, opt, 0)
        for z in range(8): a(f"ds_read_b128 v[{OFR+4*z}:{OFR+4*z+3}], v8 offset:{1024*z}")
        phase_slot(a, 's20', 's22', 's23', 's38', 20)
        a(f"v_mov_b32 v9, s21\nv_xor_b32 v8, 0x2000, v8")
        epi = []
        for gam, G in ((0, G0), (1, G1)):
            for z in range(8):
                if gam == 0: a(f"s_waitcnt lgkmcnt({7-z})")
                if gam == 0 and z == 7: a("ds_write_b32 v7, v9 offset:4")
                for tau in range(4):
                    b = ((gam*4 + tau)*8 + z) * 4
                    A = G + 16*tau
                    a(f"v_mfma_f32_32x32x16_bf16 v[{A}:{A+15}], v[{OFR+4*z}:{OFR+4*z+3}], a[{b}:{b+3}], {'0' if z==0 else f'v[{A}:{A+15}]'}")
                    if gam == 1 and (z > 0 or tau >= 2):
                        for _ in range(3):
                            if epi: a(epi.pop(0))
            assert gam == 0 or not epi
            epi = group_epilogue(G, PK, 'v6', 's23', 's22', 32768, 256*gam, SC1)
        tr_stamp(a, opt, 1)
        for x in epi: a(x)
        a(f"ds_write_b32 v7, v9 offset:12")
        tr_stamp(a, opt, 2)
        tr_flush(a, opt, 's20', range(3), 240, wait=True)
        a(f"""s_mov_b32 s20, s21
s_cmp_lt_u32 s20, 64
s_cbranch_scc1 {P}_top""")
        tr_dump(a, opt, 3, 240, 10)
        a("s_branch the_end")
    S1, S2, R, X, O, D = 16, 20, 24, 32, 36, 64
    a("ao_R:")
    a(f"""s_cmp_eq_u32 {S_L}, 0
s_cselect_b32 s12, s{P_X}, s{P_WS}
s_cselect_b32 s13, s{P_X+1}, s{P_WS+1}
s_mov_b32 s14, {hex(WS_SIZE)}
s_cselect_b32 s14, {hex(2*MB)}, s14
s_mov_b32 s15, 0x20000
s_cselect_b32 s36, 0, {XF}
s_lshl_b32 s33, {S_I}, 10
s_add_u32 s36, s36, s33
s_lshl_b32 s34, {S_L}, 21
s_add_u32 s37, s34, s33
s_add_u32 s37, s37, {XA}
s_lshl_b32 s33, {S_I}, 15
s_add_u32 s38, s34, s33
s_add_u32 s38, s38, {AORING}
s_lshl_b32 s33, {S_L}, 7
s_lshl_b32 s34, {S_I}, 2
s_add_u32 s33, s33, s34
s_add_u32 s39, s33, {F_AOR}
s_add_u32 s40, s33, {F_AOD}
v_lshrrev_b32 v6, 4, v1
v_lshlrev_b32 v6, 10, v6
v_and_b32 v7, 15, v1
v_lshl_add_u32 v6, v7, 4, v6
v_lshlrev_b32 v7, 3, v1
v_mov_b32 v8, 0""")
    selectors(a, S1, S2, 10)
    wait_init(22)
    a(f"""aor_top:
s_add_u32 s21, s20, 1""")
    phase_slot(a, 's20', 's22', 's23', 's38', 20)
    lds_spin(a, 'v2', 10, 1, 0, 's21', 23, sleep=4)
    a(f"""buffer_load_dwordx2 v[{X}:{X+1}], v7, s[12:15], s36 offen sc1
buffer_load_dwordx2 v[{X+2}:{X+3}], v7, s[12:15], s36 offen offset:512 sc1""")
    lds_spin(a, 'v2', 10, 2, 12, 's21', 24)
    tr_stamp(a, opt, 0)
    a("aor_try:")
    reduce_loads(a, 8, ['v6']*8, 's23', D)
    reduce_sum(a, 8, D, S1, S2, R, 10, 's22', 0)
    a("s_cbranch_vccnz aor_retry")
    tr_stamp(a, opt, 1)
    flag_store(a, 's21', 9, 'v8', 's40')
    add_resid(a, R, X, O)
    a(f"""buffer_store_dwordx2 v[{O}:{O+1}], v7, {WS}, s37 offen sc1
buffer_store_dwordx2 v[{O+2}:{O+3}], v7, {WS}, s37 offen offset:512 sc1""")
    unpack8(a, R, O)
    layernorm8(a, R, O+4, 10)
    a(f"""s_sub_u32 s33, s37, {XA - XNF}
buffer_store_dwordx2 v[{O+4}:{O+5}], v7, {WS}, s33 offen sc1
buffer_store_dwordx2 v[{O+6}:{O+7}], v7, {WS}, s33 offen offset:512 sc1
s_add_u32 s36, s36, 32768
s_add_u32 s37, s37, 32768""")
    tr_stamp(a, opt, 2)
    a("s_waitcnt vmcnt(0)")
    flag_store(a, 's21', 9, 'v8', 's39')
    tr_stamp(a, opt, 3)
    tr_flush(a, opt, 's20', range(4), 240, wait=True)
    a(f"""s_mov_b32 s20, s21
s_cmp_lt_u32 s20, 64
s_cbranch_scc1 aor_top""")
    tr_dump(a, opt, 4, 240, 10)
    a("s_branch the_end\naor_retry:")
    spin_dec(a, 25)
    a("s_sleep 1\ns_branch aor_try")
    FA, FT, FD, KMA, VMA, OW = 4, 5, 6, 7, 8, 9
    BI, S, SM, PF, PM, KMF, VMF, OA, OP = 16, 32, 48, 52, 60, 64, 96, 112, 176
    a(f"""ao_A:
s_lshl_b32 s33, {S_L}, 5
s_add_u32 s33, s33, {S_I}
s_lshl_b32 s33, s33, 7
s_add_u32 s40, s33, {F_KM}
s_add_u32 s41, s33, {F_KV - 16}
s_lshl_b32 s33, {S_L}, 4
s_lshr_b32 s34, {S_I}, 1
s_add_u32 s33, s33, s34
s_lshl_b32 s33, s33, 7
s_add_u32 s42, s33, {F_Q - 32}
s_lshl_b32 s33, {S_L}, 7
s_add_u32 s43, s33, {F_AOD - 128}
v_mov_b32 v{FA}, s43
v_mov_b32 v{FD}, -1
v_mov_b32 v10, s42
v_mov_b32 v11, -100
v_cmp_gt_u32 vcc, 32, v1
v_cndmask_b32 v{FA}, v{FA}, v10, vcc
v_cndmask_b32 v{FD}, v{FD}, v11, vcc
v_cmp_gt_u32 vcc, 12, v1
v_cndmask_b32_e64 v{FD}, v{FD}, 2, vcc
v_mov_b32 v10, s41
v_cmp_gt_u32 vcc, 8, v1
v_cndmask_b32 v{FA}, v{FA}, v10, vcc
v_mov_b32 v10, s40
v_cmp_gt_u32 vcc, 4, v1
v_cndmask_b32 v{FA}, v{FA}, v10, vcc
v_cndmask_b32_e64 v{FD}, v{FD}, 1, vcc
v_lshl_add_u32 v{FA}, v1, 2, v{FA}
v_bfe_u32 v10, v1, 3, 1
v_lshlrev_b32 v10, 2, v10
v_and_b32 v11, 3, v1
v_add_u32 v10, v10, v11
v_lshlrev_b32 v10, 8, v10
v_lshrrev_b32 v11, 5, v1
v_lshl_add_u32 v{KMA}, v11, 4, v10
v_bfe_u32 v10, v1, 2, 1
v_bfe_u32 v11, v1, 4, 1
v_xor_b32 v10, v10, v11
v_lshl_add_u32 v{KMA}, v10, 30, v{KMA}
v_and_b32 v10, 31, v1
v_lshlrev_b32 v10, 4, v10
v_lshrrev_b32 v11, 5, v1
v_lshl_add_u32 v{VMA}, v11, 3, v10
v_mov_b32 v{OW}, v3
v_lshlrev_b32 v11, 2, v11
v_and_b32 v10, 31, v1
v_sub_u32 v10, v10, v11
v_mov_b32 v11, 0xf149f2ca""")
    for r in range(16):
        a(f"v_cmp_gt_i32 vcc, {8*(r>>2) + (r&3)}, v10\nv_cndmask_b32 v{BI+r}, 0, v11, vcc")
    a(f"""s_mul_i32 s33, {S_L}, {48*MB}
s_mul_i32 s34, {S_I}, 24576
s_add_u32 s33, s33, s34
s_add_u32 s36, s33, {QKV}
s_lshl_b32 s33, {S_L}, 23
s_lshl_b32 s34, {S_I}, 12
s_add_u32 s33, s33, s34
s_add_u32 s37, s33, {KM}
s_mov_b32 s38, {SCL}""")
    def poll(seg, code):
        L = a.newlabel('ap'); Dn = a.newlabel('apd')
        a(f"""v_add_u32 v{FT}, {seg}, v{FD}
v_min_i32 v{FT}, 64, v{FT}
{L}:
buffer_load_dword v10, v{FA}, {WS}, 0 offen sc1
s_waitcnt vmcnt(0)
v_cmp_gt_i32 vcc, v{FT}, v10
s_cbranch_vccz {Dn}""")
        spin_dec(a, code)
        a(f"s_sleep 1\ns_branch {L}\n{Dn}:")
    def qkv_loads(base):
        for f in range(24):
            if f % 4 == 0: a(f"s_add_u32 s33, s36, {1024*f}")
            a(f"buffer_load_dwordx4 a[{base+4*f}:{base+4*f+3}], v3, {WS}, s33 offen offset:{1024*(f%4)} sc1")
        a(f"s_add_u32 s36, s36, {32*24576}")
    poll(-1, 26)
    qkv_loads(0)
    a("aoa_top:")
    for half in range(2):
        Xb, Yb = 96*half, 96*(1-half)
        q = lambda z: f"a[{Xb+4*z}:{Xb+4*z+3}]"
        k = lambda z: f"a[{Xb+32+4*z}:{Xb+32+4*z+3}]"
        v = lambda z: f"a[{Xb+64+4*z}:{Xb+64+4*z+3}]"
        a("s_waitcnt vmcnt(0)")
        for z in range(8):
            a(f"v_mfma_f32_32x32x16_bf16 v[{S}:{S+15}], {k(z)}, {q(z)}, v[{BI if z==0 else S}:{(BI if z==0 else S)+15}]")
        m, t = 12, 13
        poll('s20', 27)
        tr_stamp(a, opt, 0)
        for z in range(8): a(f"buffer_load_dwordx4 v[{KMF+4*z}:{KMF+4*z+3}], v{KMA}, {WS}, s37 offen offset:{32*z} sc1")
        for T in range(4): a(f"buffer_load_dwordx2 v[{VMF+2*T}:{VMF+2*T+1}], v{VMA}, {WS}, s37 offen offset:{2048+512*T} sc1")
        a(f"s_add_u32 s37, s37, {32*4096}")
        a(f"s_cmp_eq_u32 s20, 63\ns_cselect_b32 s33, {32*24576}, 0\ns_sub_u32 s36, s36, s33")
        qkv_loads(Yb)
        a(f"v_max3_f32 v{m}, v{S}, v{S+1}, v{S+2}\nv_max3_f32 v{t}, v{S+3}, v{S+4}, v{S+5}")
        for i in range(6, 16, 4):
            a(f"v_max3_f32 v{m}, v{m}, v{S+i}, v{S+i+1}")
            if i + 2 < 16: a(f"v_max3_f32 v{t}, v{t}, v{S+i+2}, v{S+i+3}")
        for z in range(8):
            a(f"s_waitcnt vmcnt({7 - z + 28})")
            a(f"v_mfma_f32_16x16x32_bf16 v[{SM}:{SM+3}], v[{KMF+4*z}:{KMF+4*z+3}], {q(z)}, {'0' if z==0 else f'v[{SM}:{SM+3}]'}")
        tr_stamp(a, opt, 1)
        a(f"""v_max3_f32 v{m}, v{m}, v{SM}, v{SM+1}
v_max3_f32 v{t}, v{t}, v{SM+2}, v{SM+3}
v_max_f32 v{m}, v{m}, v{t}
v_mov_b32 v{t}, v{m}
v_permlane32_swap_b32 v{t}, v{m}
v_max_f32 v{m}, v{m}, v{t}
v_mul_f32 v{m}, s38, v{m}""")
        for i in range(20): a(f"v_fma_f32 v{S+i}, v{S+i}, s38, -v{m}")
        for i in range(20): a(f"v_exp_f32 v{S+i}, v{S+i}")
        for i in range(10): a(f"v_cvt_pk_bf16_f32 v{PF+i}, v{S+2*i}, v{S+2*i+1}")
        fill = []
        for i in range(2, 20, 2): fill.append(f"v_pk_add_f32 v[{S}:{S+1}], v[{S}:{S+1}], v[{S+i}:{S+i+1}]")
        fill += [f"v_add_f32 v{S}, v{S}, v{S+1}", f"v_mov_b32 v{S+1}, v{S}", f"v_permlane32_swap_b32 v{S+1}, v{S}",
                 f"v_add_f32 v{S}, v{S}, v{S+1}", f"v_rcp_f32 v{S}, v{S}"]
        def fin(T):
            L = []
            for i in range(8):
                r = OA + 16*T + 2*i
                L += [f"v_pk_mul_f32 v[{r}:{r+1}], v[{r}:{r+1}], v[{S}:{S+1}] op_sel_hi:[1,0]", f"v_cvt_pk_bf16_f32 v{OP+8*T+i}, v{r}, v{r+1}"]
            return L
        a("s_waitcnt vmcnt(24)")
        for T in range(4):
            A = OA + 16*T
            ms = [f"v_mfma_f32_32x32x16_bf16 v[{A}:{A+15}], {v(2*T)}, v[{PF}:{PF+3}], 0",
                  f"v_mfma_f32_32x32x16_bf16 v[{A}:{A+15}], {v(2*T+1)}, v[{PF+4}:{PF+7}], v[{A}:{A+15}]",
                  f"v_mfma_f32_32x32x8_bf16 v[{A}:{A+15}], v[{VMF+2*T}:{VMF+2*T+1}], v[{PM}:{PM+1}], v[{A}:{A+15}]"]
            for j, x in enumerate(ms):
                a(x)
                if T >= 1 and j == 1: fill += fin(T-1)
                for _ in range(6):
                    if fill: a(fill.pop(0))
        fill += fin(3)
        for x in fill: a(x)
        a("s_sub_u32 s21, s20, 1")
        lds_spin(a, 'v2', 10, 2, 4, 's21', 28)
        for z in range(8): a(f"ds_write_b128 v{OW}, v[{OP+4*z}:{OP+4*z+3}] offset:{1024*z}")
        a(f"""s_add_u32 s21, s20, 1
v_mov_b32 v10, s21
v_xor_b32 v{OW}, 0x2000, v{OW}
s_waitcnt lgkmcnt(0)
ds_write_b32 v2, v10""")
        tr_stamp(a, opt, 2)
        tr_flush(a, opt, 's20', range(3), 240, wait=True)
        a("s_mov_b32 s20, s21")
    a("s_cmp_lt_u32 s20, 64\ns_cbranch_scc1 aoa_top")
    tr_dump(a, opt, 3, 240, 10)
    a("s_waitcnt lgkmcnt(0)")
```

```python
from common import *

MEMB, KB, VB, QX, KX, VX = 0x20000, 0x22000, 0x24000, 0x26000, 0x26A00, 0x27400
QROW = 288
IDX, SEL, L16, WK, HI, M0A, ST, PUB, QW, QR, VW, VR, KG, VG, KMS, VMS, FL, TAGM, PD = \
    2, 4, 3, 8, 9, 10, 14, 15, 16, 17, 18, 19, 20, 21, 22, 23, 0, 1, 24
T0 = 25
MEMF = 28
RING = 60
NRING = 5
ACC = 100
VAC = 116
BM = 124
FV = 126
X2 = 127
SC = 0x3e0293ee

def role_chain(a, opt):
    D1 = opt.get('D1', [64, 128, 192, 256]); D2 = opt.get('D2', 192)
    a("role_chain:")
    if 'chain_layers' in opt:
        for l in (0, 1):
            if l not in opt['chain_layers']: a(f"s_cmp_eq_u32 {S_L}, {l}\ns_cbranch_scc1 the_end")
    srd(a, 12, P_WQ, 0x400000); srd(a, 16, P_WV, 0x400000); srd(a, 20, P_WO, 0x400000); srd(a, 28, P_WK, 0x400000)
    a(f"""s_lshl_b32 s36, {S_W}, 15
s_lshl_b32 s37, {S_I}, 8
s_lshl_b32 s38, {S_W}, 6
s_add_u32 s37, s37, s38
s_lshl_b32 s39, {S_I}, 17
s_add_u32 s39, s39, s38
v_lshrrev_b32 v2, 2, v1
v_and_b32 v3, 3, v1
v_lshlrev_b32 v3, 4, v3
v_lshl_add_u32 v4, v2, 13, v3
v_lshl_add_u32 v5, v2, 10, v3
v_lshrrev_b32 v6, 4, v1
v_bfe_u32 v7, v1, 2, 2
v_lshlrev_b32 v8, 9, v6
v_lshl_add_u32 v8, v7, 6, v8
v_add_u32 v8, s36, v8
v_and_b32 v9, 3, v1
v_lshl_add_u32 v10, v9, 3, v8
v_bfe_u32 v11, v1, 1, 1
v_lshl_add_u32 v11, v11, 5, v8
v_and_b32 v12, 1, v1
v_lshl_add_u32 v11, v12, 3, v11
v_bfe_u32 v12, v1, 4, 1
v_lshlrev_b32 v12, 5, v12
v_bfe_u32 v13, v1, 5, 1
v_lshl_add_u32 v12, v13, 2, v12
v_bfe_u32 v13, v1, 3, 1
v_lshl_add_u32 v12, v13, 4, v12
v_bfe_u32 v13, v1, 2, 1
v_add_u32 v12, v13, v12
v_lshlrev_b32 v12, 6, v12
v_lshl_add_u32 v12, v9, 4, v12
v_add_u32 v12, s36, v12
v_lshlrev_b32 v13, 4, v1
v_add_u32 v13, s36, v13""")
    for sg in range(8):
        a(f"""s_lshl_b32 s33, {S_W}, 1
s_add_u32 s33, s33, {sg}
s_and_b32 s33, s33, 7
s_lshl_b32 s33, s33, 19
s_add_u32 s{40+sg}, s33, s37""")
    order = ['q', 'v', 'o', 'k']
    def dma(i, q):
        m, j = order[i // 8], i % 8
        if m == 'o':
            phi, kp = j >> 1, j & 1
            a(f"s_add_u32 s33, s39, {phi*256 + (kp*64 + q*16)*1024}")
            a(f"buffer_load_dwordx4 v5, s[20:23], s33 offen lds")
        else:
            a(f"s_add_u32 s33, s{40+j}, {q*16*8192}")
            a(f"buffer_load_dwordx4 v4, {dict(q='s[12:15]', v='s[16:19]', k='s[28:31]')[m]}, s33 offen lds")
    def consume(i, off):
        m, j = order[i // 8], i % 8
        for t in range(2):
            for u in range(4):
                if m == 'o':
                    phi, kp = j >> 1, j & 1
                    r = 128 + ((2*phi + t)*2 + kp)*8 + 2*u
                    a(f"ds_read_b64_tr_b16 a[{r}:{r+1}], v12 offset:{off + (8*(u>>1) + 2*(u&1))*64 + 8*t}")
                else:
                    ro = (32*(u>>1) + 4*(u&1))*64
                    if m == 'q':
                        r = (2*j + t)*8 + 2*u
                        a(f"ds_read_b64_tr_b16 a[{r}:{r+1}], v11 offset:{off + ro + 16*t}")
                    elif m == 'v':
                        r = 128 + (2*j + t)*8 + 2*u
                        a(f"ds_read_b64_tr_b16 v[{r}:{r+1}], v10 offset:{off + ro + 32*t}")
                    else:
                        r = 32 + t*8 + 2*u
                        a(f"ds_read_b64_tr_b16 v[{r}:{r+1}], v11 offset:{off + ro + 16*t}")
        if m == 'k':
            a("s_waitcnt lgkmcnt(0)")
            for x in range(4): a(f"ds_write_b128 v13, v[{32+4*x}:{35+4*x}] offset:{off + 1024*x}")
            a("s_waitcnt lgkmcnt(0)")
            return 0
        return 8
    stage_tr(a, 32, 8, 4096, 's36', dma, consume, per=4)
    if not opt.get('noinit'):
        wait_dbg(a, D_INIT*4, 1, 10, vt=4)
        a(f"s_lshl_b32 s33, {S_L}, 2\ns_add_u32 s33, s33, {D_GINIT*4}")
        wait_dbg(a, 's33', 32, 11, vt=4)
    a("s_mov_b32 s60, 0")
    decide_mode(a, 'ch_setslow')
    a("s_branch ch_mode\nch_setslow:\ns_mov_b32 s60, 1\nch_mode:")
    n, c, t1, t2 = 'v28', 'v29', 'v30', 'v31'
    a(f"""v_and_b32 {n}, 15, v1
v_lshrrev_b32 {c}, 4, v1
v_lshlrev_b32 v{L16}, 4, v1
v_add_u32 v{WK}, s36, v{L16}
v_add_u32 v{HI}, {MEMB}, v{L16}
; idx
v_bfe_u32 {t1}, v1, 1, 1
v_mul_u32_u24 {t1}, 0xaaaa, {t1}
v_add_u32 v{IDX}, 0x4444, {t1}""")
    for q in range(4):
        a(f"""s_add_u32 s33, {S_W}, {q}
s_and_b32 s33, s33, 3
s_lshl_b32 s33, s33, 11
v_add_u32 v{M0A+q}, s33, v{HI}""")
    a(f"""v_and_b32 {t1}, 3, v1
v_lshlrev_b32 {t1}, 1, {t1}
v_bfe_u32 {t2}, v1, 2, 1
v_add_u32 {t1}, {t1}, {t2}
v_bfe_u32 {t2}, v1, 3, 1
v_lshlrev_b32 {t2}, 4, {t2}
v_mov_b32 v32, 0x3f80
v_lshlrev_b32 {t2}, {t2}, v32""")
    for q in range(4):
        a(f"v_cmp_eq_u32 vcc, {q}, {t1}\nv_cndmask_b32 v{SEL+q}, 0, {t2}, vcc")
    a(f"""; partial store offset: (8w+4m+c)*8192 + h*64 + (n&7)*8
v_bfe_u32 {t1}, v1, 3, 1
v_lshl_add_u32 {t1}, {t1}, 2, {c}
s_lshl_b32 s33, {S_W}, 3
v_add_u32 {t1}, s33, {t1}
v_lshlrev_b32 {t1}, 13, {t1}
v_and_b32 {t2}, 7, v1
v_lshl_add_u32 {t1}, {t2}, 3, {t1}
s_lshl_b32 s33, {S_I}, 6
v_add_u32 v{ST}, s33, {t1}
v_and_b32 {t1}, 1, v1
v_lshlrev_b32 {t1}, 5, {t1}
v_bfe_u32 {t2}, v1, 5, 1
v_lshl_add_u32 {t1}, {t2}, 4, {t1}
v_bfe_u32 {t2}, v1, 1, 1
v_lshl_add_u32 {t1}, {t2}, 3, {t1}
v_bfe_u32 {t2}, v1, 4, 1
v_lshl_add_u32 {t1}, {t2}, 2, {t1}
v_bfe_u32 {t2}, v1, 2, 1
v_lshl_add_u32 {t1}, {t2}, 14, {t1}
s_lshl_b32 s34, {S_W}, 11
s_add_u32 s33, s33, s34
s_add_u32 s33, s33, 8192
v_add_u32 v{PUB}, s33, {t1}
v_mov_b32 v{PD}, -1
v_mul_u32_u24 {t1}, {2*QROW}, {c}
v_lshl_add_u32 {t1}, {n}, 2, {t1}
s_lshl_b32 s33, {S_W}, 6
s_add_u32 s34, s33, {QX}
v_add_u32 v{QW}, s34, {t1}
v_bfe_u32 {t1}, v1, 2, 2
v_lshlrev_b32 {t1}, 1, {t1}
v_and_b32 {t2}, 1, v1
v_add_u32 {t1}, {t1}, {t2}
v_mul_u32_u24 {t1}, {QROW}, {t1}
v_lshl_add_u32 {t1}, {c}, 4, {t1}
v_add_u32 v{QR}, {QX}, {t1}
v_lshlrev_b32 {t1}, 9, {c}
v_lshl_add_u32 {t1}, {n}, 2, {t1}
v_add_u32 v{KMS}, s33, {t1}
v_lshlrev_b32 {t1}, 4, {n}
v_lshl_add_u32 {t1}, {c}, 2, {t1}
s_lshl_b32 s33, {S_W}, 9
s_add_u32 s33, s33, 2048
v_add_u32 v{VMS}, s33, {t1}
v_add_u32 v{VR}, {VX - MEMB}, v{HI}
s_lshr_b32 s33, {S_W}, 1
s_lshl_b32 s33, s33, 10
s_and_b32 s34, {S_W}, 1
s_lshl_b32 s34, s34, 3
s_add_u32 s33, s33, s34
v_add_u32 v{VW}, s33, v{VR}
v_bfe_u32 {t1}, v1, 5, 1
v_lshlrev_b32 {t1}, 10, {t1}
v_bfe_u32 {t2}, v1, 4, 1
v_lshl_add_u32 {t1}, {t2}, 9, {t1}
s_lshl_b32 s33, {S_W}, 11
v_add_u32 {t1}, s33, {t1}
v_lshl_add_u32 v{VG}, {n}, 4, {t1}
v_bfe_u32 {t2}, v1, 3, 1
v_lshl_add_u32 v{KG}, {t2}, 7, v{VG}
v_mov_b32 v{BM}, 0
v_mov_b32 v{BM+1}, 0
v_and_b32 v{FL}, 3, v1
v_lshlrev_b32 v{FL}, 2, v{FL}
v_and_b32 v{TAGM}, 1, v1
v_xor_b32 v{TAGM}, 1, v{TAGM}""")
    a(f"""s_lshl_b32 s33, {S_L}, 20
s_add_u32 s54, s33, {CRING}
s_add_u32 s37, s54, {CMEM_OFF}
s_lshl_b32 s53, {S_I}, 13
s_lshl_b32 s33, {S_W}, 11
s_add_u32 s53, s53, s33
s_add_u32 s55, s37, s33
s_add_u32 s43, s33, {KB}
s_lshl_b32 s33, {S_L}, 23
s_lshl_b32 s34, {S_I}, 12
s_add_u32 s33, s33, s34
s_add_u32 s39, s33, {KM}
s_mul_i32 s33, {S_L}, {48*MB}
s_mul_i32 s34, {S_I}, 24576
s_add_u32 s33, s33, s34
s_add_u32 s40, s33, {QKV + 8192}
s_lshl_b32 s33, {S_L}, 5
s_add_u32 s33, s33, {S_I}
s_lshl_b32 s33, s33, 7
s_add_u32 s41, s33, {F_KV}
s_lshl_b32 s34, {S_W}, 2
s_add_u32 s33, s33, s34
s_add_u32 s42, s33, {F_KM}
s_mov_b32 s44, 0x33333333
s_mov_b32 s45, 0x33333333
s_mov_b32 s46, 0xcccccccc
s_mov_b32 s47, 0xcccccccc
s_mov_b32 s48, 0x000f000f
s_mov_b32 s49, 0x000f000f
s_mov_b32 s50, 0x00ff00ff
s_mov_b32 s51, 0x00ff00ff
s_mov_b32 s52, {SC}
s_mov_b32 s20, 0
s_mov_b32 s38, s55""")
    a(f"s_add_u32 s33, s54, s53")
    for sl in range(2):
        for q in range(2): a(f"buffer_load_dwordx4 v[28:31], v{L16}, {WS}, s33 offen offset:{1024*q} sc1")
        a("s_add_u32 s33, s33, 0x40000")
    for sl in range(1, 4):
        a(f"s_add_u32 s33, s55, {8192*sl}")
        for q in range(2): a(f"buffer_load_dwordx4 v[28:31], v{L16}, {WS}, s33 offen offset:{1024*q} sc1")
    def kv_dma(i):
        if i < 2:
            a(f"s_add_u32 m0, s43, {1024*i - 128*i}")
            return f"buffer_load_dwordx4 v{KG}, {WS}, s40 offen offset:{128*i} sc1 lds"
        t = i - 2
        a(f"s_add_u32 m0, s43, {VB - KB + 1024*t - 256*t}\ns_add_u32 s33, s40, 8192")
        return f"buffer_load_dwordx4 v{VG}, {WS}, s33 offen offset:{256*t} sc1 lds"
    a(f"""ch_kv0:
buffer_load_dword v{FV}, v{FL}, {WS}, s41 offen sc1
s_waitcnt vmcnt(0)
v_cmp_eq_u32 vcc, 0, v{FV}
s_cbranch_vccz ch_kv0ok""")
    spin_dec(a, 12)
    a("s_sleep 4\ns_branch ch_kv0\nch_kv0ok:")
    for i in range(4): a(kv_dma(i))
    a(f"s_add_u32 s40, s40, {32*24576}")
    a("s_cmp_eq_u32 s60, 1\ns_cbranch_scc1 chs_entry")
    for mode in ('chf', 'chs'):
        step_loop(a, opt, mode, '' if mode == 'chf' else ' sc1', D1, D2, kv_dma)
    a(f"""ch_fin:
s_waitcnt vmcnt(0)
v_mov_b32 v{T0}, 64
s_mov_b64 exec, 1
buffer_store_dword v{T0}, v{FL}, {WS}, s42 offen sc1
s_mov_b64 exec, -1""")
    if opt.get('trace'):
        a("v_mbcnt_lo_u32_b32 v1, -1, 0\nv_mbcnt_hi_u32_b32 v1, -1, v1")
        for k in range(5): a(f"v_accvgpr_read_b32 v{40+k}, a{k}") if False else None
    a("s_branch the_end")

def step_loop(a, opt, P, SC1, D1, D2, kv_dma):
    lds = Cnt(a, 'lgkmcnt', 15)
    memf = lambda s: f"v[{MEMF+4*s}:{MEMF+4*s+3}]"
    ring = lambda f: RING + 8 * (f % NRING)
    def wk_read(f):
        r = ring(f)
        lds.issue(f"ds_read_b128 v[{r}:{r+3}], v{WK} offset:{2048*f}", ('wk', f))
        lds.issue(f"ds_read_b128 v[{r+4}:{r+7}], v{WK} offset:{2048*f+1024}", ('wk', f))
    def sq(s, t): a(f"v_smfmac_f32_16x16x64_bf16 v[{ACC+4*t}:{ACC+4*t+3}], {memf(s)}, a[{(2*s+t)*8}:{(2*s+t)*8+7}], v{IDX}")
    def sk(s, t):
        r = ring(2*s+t)
        a(f"v_smfmac_f32_16x16x64_bf16 v[{ACC+8+4*t}:{ACC+8+4*t+3}], {memf(s)}, v[{r}:{r+7}], v{IDX}")
    def sv(s, t): a(f"v_smfmac_f32_16x16x64_bf16 v[{VAC+4*t}:{VAC+4*t+3}], {memf(s)}, v[{128+(2*s+t)*8}:{128+(2*s+t)*8+7}], v{IDX}")
    def prep():
        for f in range(NRING): wk_read(f)
        for r in range(ACC, ACC + 24, 2): a(f"v_mov_b64 v[{r}:{r+1}], 0")
    a(f"{P}_entry:")
    prep()
    a(f"""{P}_h2:
buffer_load_dwordx4 {memf(0)}, v{L16}, {WS}, s38 offen sc1
buffer_load_dwordx4 {memf(1)}, v{L16}, {WS}, s38 offen offset:1024 sc1
s_waitcnt vmcnt(1)
ds_write_b128 v{M0A}, {memf(0)}
s_waitcnt vmcnt(0)
ds_write_b128 v{M0A}, {memf(1)} offset:1024
v_max_u32 v{T0}, v{MEMF}, v{MEMF+4}
v_cmp_eq_u32 vcc, -1, v{T0}
s_cbranch_vccnz {P}_h2retry""")
    tr_stamp(a, opt, 0)
    sq(0, 0); sq(0, 1)
    a("s_waitcnt lgkmcnt(2)")
    sk(0, 0); sk(0, 1)
    lds.all()
    a("s_barrier")
    for s in range(2, 8):
        lds.issue(f"ds_read_b128 {memf(s)}, v{M0A + (s>>1)} offset:{1024*(s&1)}", ('m', s))
    sq(1, 0); wk_read(NRING); sq(1, 1); wk_read(NRING + 1); sk(1, 0)
    a(f"""v_mov_b32 v{T0}, s20
s_mov_b64 exec, 1
buffer_store_dword v{T0}, v{FL}, {WS}, s42 offen sc1
s_mov_b64 exec, -1""")
    sk(1, 1)
    a(f"buffer_load_dword v{FV}, v{FL}, {WS}, s41 offen sc1")
    nxt = NRING + 2
    for s in range(2, 8):
        lds.wait(('m', s))
        sq(s, 0)
        if nxt < 16 and nxt - NRING < 2*s: wk_read(nxt); nxt += 1
        sq(s, 1)
        if nxt < 16 and nxt - NRING < 2*s: wk_read(nxt); nxt += 1
        lds.wait(('wk', 2*s)); sk(s, 0)
        if nxt < 16 and nxt - NRING < 2*s + 1 and nxt == 2*s + 1 + 0: pass
        lds.wait(('wk', 2*s + 1)); sk(s, 1)
    assert nxt == 16
    tr_stamp(a, opt, 1)
    KF = RING
    QF = [92, 96, ACC + 8, ACC + 12]
    KMF = [MEMF + 4*i for i in range(4)]
    vq = [(s, t) for s in range(8) for t in range(2)]
    def nv(k=1):
        for _ in range(k):
            if vq: sv(*vq.pop(0))
    def kread(f): lds.issue(f"ds_read_b128 v[{KF+4*f}:{KF+4*f+3}], v{HI} offset:{KB - MEMB + 1024*f}", ('K', f))
    nv(); a(f"v_pk_add_f32 v[{ACC}:{ACC+1}], v[{ACC}:{ACC+1}], v[{ACC+2}:{ACC+3}]")
    nv(); a(f"v_pk_add_f32 v[{ACC+4}:{ACC+5}], v[{ACC+4}:{ACC+5}], v[{ACC+6}:{ACC+7}]")
    kread(2); kread(3)
    nv(); a(f"v_cvt_pk_bf16_f32 v{ACC+2}, v{ACC}, v{ACC+4}\nv_cvt_pk_bf16_f32 v{ACC+3}, v{ACC+1}, v{ACC+5}")
    a(f"v_pk_add_f32 v[{ACC+8}:{ACC+9}], v[{ACC+8}:{ACC+9}], v[{ACC+10}:{ACC+11}]")
    a(f"v_pk_add_f32 v[{ACC+12}:{ACC+13}], v[{ACC+12}:{ACC+13}], v[{ACC+14}:{ACC+15}]")
    lds.issue(f"ds_write2_b32 v{QW}, v{ACC+2}, v{ACC+3} offset1:{QROW//4}", 'qw')
    a(f"v_cvt_pk_bf16_f32 v{T0+1}, v{ACC+8}, v{ACC+12}\nv_cvt_pk_bf16_f32 v{T0+2}, v{ACC+9}, v{ACC+13}")
    lds.issue(f"ds_write_b32 v{QW}, v{T0+1} offset:{KX - QX}", 'kw')
    lds.issue(f"ds_write_b32 v{QW}, v{T0+2} offset:{KX - QX + QROW}", 'kw')
    nv(); kread(4); kread(5); nv(); kread(6); kread(7); nv(); kread(0); kread(1); nv()
    lds.wait('kw')
    a("s_barrier")
    for i in range(4): lds.issue(f"ds_read_b128 v[{QF[i]}:{QF[i]+3}], v{QR} offset:{64*i}", ('q', i))
    nv()
    a(f"buffer_store_dword v{T0+1}, v{KMS}, {WS}, s39 offen sc1")
    nv()
    a(f"buffer_store_dword v{T0+2}, v{KMS}, {WS}, s39 offen offset:256 sc1")
    nv()
    for i in range(4): lds.issue(f"ds_read_b128 v[{KMF[i]}:{KMF[i]+3}], v{QR} offset:{KX - QX + 64*i}", ('k', i))
    nv(16)
    tr_stamp(a, opt, 2)
    X0, X1, SM = ACC, ACC + 4, MEMF + 16
    order = [1, 2, 3, 0]
    for n_, i in enumerate(order):
        lds.wait(('q', i), ('K', 2*i), ('K', 2*i+1))
        for T in range(2):
            X = X0 + 4*T
            a(f"v_mfma_f32_16x16x32_bf16 v[{X}:{X+3}], v[{KF+4*(2*i+T)}:{KF+4*(2*i+T)+3}], v[{QF[i]}:{QF[i]+3}], {'0' if n_==0 else f'v[{X}:{X+3}]'}")
        if n_ == 1:
            a(f"v_pk_add_f32 v[{VAC}:{VAC+1}], v[{VAC}:{VAC+1}], v[{VAC+2}:{VAC+3}]")
            a(f"v_pk_add_f32 v[{VAC+4}:{VAC+5}], v[{VAC+4}:{VAC+5}], v[{VAC+6}:{VAC+7}]")
        if n_ == 2:
            a(f"v_cvt_pk_bf16_f32 v{VAC+2}, v{VAC}, v{VAC+1}\nv_cvt_pk_bf16_f32 v{VAC+3}, v{VAC+4}, v{VAC+5}")
            lds.issue(f"ds_write_b64 v{VW}, v[{VAC+2}:{VAC+3}]", 'vw')
    VF = RING
    for i in range(4):
        lds.wait(('k', i))
        a(f"v_mfma_f32_16x16x32_bf16 v[{SM}:{SM+3}], v[{KMF[i]}:{KMF[i]+3}], v[{QF[i]}:{QF[i]+3}], {'0' if i==0 else f'v[{SM}:{SM+3}]'}")
        if i == 0: a(f"buffer_store_dword v{VAC+2}, v{VMS}, {WS}, s39 offen sc1")
        if i == 1: a(f"buffer_store_dword v{VAC+3}, v{VMS}, {WS}, s39 offen offset:256 sc1")
        for f in (2*i, 2*i+1):
            lds.issue(f"ds_read_b128 v[{VF+4*f}:{VF+4*f+3}], v{HI} offset:{VB - MEMB + 1024*f}", ('V', f))
    a(f"s_cmp_eq_u32 s20, 63\ns_cbranch_scc1 ch_fin")
    m, m2, B0, B1 = T0, T0+1, MEMF + 20, MEMF + 24
    a(f"""v_max3_f32 v{m}, v{X0}, v{X0+1}, v{X0+2}
v_max3_f32 v{m2}, v{X0+3}, v{X1}, v{X1+1}
v_max3_f32 v{m}, v{m}, v{X1+2}, v{X1+3}
v_max3_f32 v{m2}, v{m2}, v{SM}, v{SM+1}
v_max_f32 v{m}, v{m}, v{m2}
v_mov_b32 v{m2}, v{m}
v_permlane16_swap_b32 v{m2}, v{m}
v_max_f32 v{m}, v{m}, v{m2}
v_mov_b32 v{m2}, v{m}
v_permlane32_swap_b32 v{m2}, v{m}
v_max_f32 v{m}, v{m}, v{m2}
v_mul_f32 v{m}, s52, v{m}""")
    E = [X0+i for i in range(8)] + [SM, SM+1]
    for e in E: a(f"v_fma_f32 v{e}, v{e}, s52, -v{m}")
    for e in E[:4]: a(f"v_exp_f32 v{e}, v{e}")
    lds.all()
    a("s_barrier")
    AM = MEMF
    lds.issue(f"ds_read_b128 v[{AM}:{AM+3}], v{VR}", 'am')
    lds.issue(f"ds_read_b128 v[{AM+4}:{AM+7}], v{VR} offset:1024", 'am')
    for e in E[4:]: a(f"v_exp_f32 v{e}, v{e}")
    for r in range(B0, B0 + 8, 2): a(f"v_mov_b64 v[{r}:{r+1}], 0")
    a("s_mov_b64 exec, s[44:45]")
    for i in range(4): a(f"v_cvt_pk_bf16_f32 v{B0+i}, v{X0+2*i}, v{X0+2*i+1}")
    a(f"v_cvt_pk_bf16_f32 v{BM}, v{SM}, v{SM+1}")
    a("s_mov_b64 exec, s[46:47]")
    for i in range(4): a(f"v_cvt_pk_bf16_f32 v{B1+i}, v{X0+2*i}, v{X0+2*i+1}")
    a(f"v_cvt_pk_bf16_f32 v{BM+1}, v{SM}, v{SM+1}")
    a("s_mov_b64 exec, -1")
    tr_stamp(a, opt, 3)
    O = [92, 96, ACC + 8, ACC + 12]
    fill = [f"v_pk_add_f32 v[{X0}:{X0+1}], v[{X0}:{X0+1}], v[{X0+2}:{X0+3}]",
            f"v_pk_add_f32 v[{X1}:{X1+1}], v[{X1}:{X1+1}], v[{X1+2}:{X1+3}]",
            f"v_pk_add_f32 v[{X0}:{X0+1}], v[{X0}:{X0+1}], v[{SM}:{SM+1}]",
            f"v_pk_add_f32 v[{X0}:{X0+1}], v[{X0}:{X0+1}], v[{X1}:{X1+1}]",
            f"v_add_f32 v{X0}, v{X0}, v{X0+1}", f"v_mov_b32 v{X0+1}, v{X0}", None,
            f"v_permlane16_swap_b32 v{X0+1}, v{X0}", f"v_add_f32 v{X0}, v{X0}, v{X0+1}", f"v_mov_b32 v{X0+1}, v{X0}", None,
            f"v_permlane32_swap_b32 v{X0+1}, v{X0}", f"v_add_f32 v{X0}, v{X0}, v{X0+1}", f"v_rcp_f32 v{X0}, v{X0}"]
    def ff(k):
        for _ in range(k):
            if fill:
                x = fill.pop(0)
                if x: a(x)
    for T in range(4):
        a(f"v_mfma_f32_16x16x32_bf16 v[{O[T]}:{O[T]+3}], v[{VF+8*T}:{VF+8*T+3}], v[{B0}:{B0+3}], 0"); ff(2)
        a(f"v_mfma_f32_16x16x32_bf16 v[{O[T]}:{O[T]+3}], v[{VF+8*T+4}:{VF+8*T+7}], v[{B1}:{B1+3}], v[{O[T]}:{O[T]+3}]"); ff(2)
    lds.wait('am')
    a(f"""s_cmp_eq_u32 s20, 62
s_cbranch_scc1 {P}_nodma
s_waitcnt vmcnt(4)
s_add_u32 s33, s20, 1
v_cmp_ge_u32 vcc, s33, v{FV}
s_cbranch_vccnz {P}_kvwait
{P}_kvok:""")
    for i in range(4): a(kv_dma(i))
    a(f"s_add_u32 s40, s40, {32*24576}\n{P}_nodma:")
    WA = RING
    for T in range(4):
        a(f"v_mfma_f32_16x16x16_bf16 v[{O[T]}:{O[T]+3}], v[{AM+2*T}:{AM+2*T+1}], v[{BM}:{BM+1}], v[{O[T]}:{O[T]+3}]")
        for r in range(WA + 8*T, WA + 8*T + 8, 2): a(f"v_mov_b64 v[{r}:{r+1}], 0")
    ff(20)
    OF = MEMF + 8
    for T in range(4):
        for i in range(2):
            a(f"v_pk_mul_f32 v[{O[T]+2*i}:{O[T]+2*i+1}], v[{O[T]+2*i}:{O[T]+2*i+1}], v[{X0}:{X0+1}] op_sel_hi:[1,0]")
        for i in range(2):
            a(f"v_cvt_pk_bf16_f32 v{OF+2*T+i}, v{O[T]+2*i}, v{O[T]+2*i+1}")
    a(f"""s_lshr_b32 s21, s20, 1
s_and_b32 s21, s21, 1
s_xor_b32 s21, s21, 1
s_and_b32 s33, s20, 1
s_lshl_b32 s33, s33, 18
s_add_u32 s22, s54, s33
s_add_u32 s23, s22, 4096
s_add_u32 s36, s22, s53""")
    tr_stamp(a, opt, 4)
    def so(tau, kp):
        b = 128 + (2*tau + kp)*8
        a(f"v_smfmac_f32_16x16x64_bf16 v[{WA+4*tau}:{WA+4*tau+3}], v[{OF+4*kp}:{OF+4*kp+3}], a[{b}:{b+7}], v{IDX}")
    def epi(phi):
        A_, B_ = WA + 8*phi, WA + 8*phi + 4
        return [f"v_pk_add_f32 v[{A_}:{A_+1}], v[{A_}:{A_+1}], v[{A_+2}:{A_+3}]",
                f"v_pk_add_f32 v[{B_}:{B_+1}], v[{B_}:{B_+1}], v[{B_+2}:{B_+3}]",
                f"v_cvt_pk_bf16_f32 v{A_+2}, v{A_}, v{A_+1}", f"v_cvt_pk_bf16_f32 v{A_+3}, v{B_}, v{B_+1}",
                f"v_bfi_b32 v{A_+2}, v{TAGM}, s21, v{A_+2}",
                f"buffer_store_dwordx2 v[{A_+2}:{A_+3}], v{ST}, {WS}, {'s22' if phi < 2 else 's23'} offen offset:{2048*(phi&1)}{SC1}"]
    pend = []
    for phi in range(4):
        seq = [(2*phi, 0), (2*phi+1, 0), (2*phi, 1), (2*phi+1, 1)]
        for j, (tau, kp) in enumerate(seq):
            so(tau, kp)
            if j >= 2:
                for _ in range(3):
                    if pend: a(pend.pop(0))
        pend = epi(phi)
    for x in pend: a(x)
    lds.q = []; lds.done = 0
    a(f"""s_add_u32 s20, s20, 1
s_add_u32 s39, s39, {32*4096}
s_and_b32 s33, s20, 3
s_lshl_b32 s33, s33, 13
s_add_u32 s38, s55, s33""")
    tr_flush(a, opt, 's20', range(5), 0, wait=True) if False else None
    prep()
    a.nops(max(0, D1[0] - 100)//4)
    for w in (1, 2, 3):
        a(f"s_cmp_lt_u32 {S_W}, {w}\ns_cbranch_scc1 {P}_h1")
        a.nops(max(0, max(D1[w],100) - max(D1[w-1],100) - 8)//4)
    H = MEMF + 8
    R = MEMF + 16
    a(f"""{P}_h1:
buffer_load_dwordx4 v[{H}:{H+3}], v{L16}, {WS}, s36 offen sc1
buffer_load_dwordx4 v[{H+4}:{H+7}], v{L16}, {WS}, s36 offen offset:1024 sc1
s_waitcnt vmcnt(1)
v_mfma_f32_16x16x32_bf16 v[{R}:{R+3}], v[{SEL}:{SEL+3}], v[{H}:{H+3}], 0
v_xor_b32 v{T0}, s21, v{H}
s_waitcnt vmcnt(0)
v_mfma_f32_16x16x32_bf16 v[{R}:{R+3}], v[{SEL}:{SEL+3}], v[{H+4}:{H+7}], v[{R}:{R+3}]
v_bitop3_b32 v{T0}, v{T0}, s21, v{H+4} bitop3:0xf6
v_and_b32 v{T0}, 1, v{T0}
v_cmp_ne_u32 vcc, 0, v{T0}
s_cbranch_vccnz {P}_h1retry
v_add_f32_dpp v{R}, v{R}, v{R} row_ror:4 row_mask:0xf bank_mask:0xf
v_add_f32_dpp v{R+1}, v{R+1}, v{R+1} row_ror:4 row_mask:0xf bank_mask:0xf
v_add_f32_dpp v{R}, v{R}, v{R} row_ror:8 row_mask:0xf bank_mask:0xf
v_add_f32_dpp v{R+1}, v{R+1}, v{R+1} row_ror:8 row_mask:0xf bank_mask:0xf
s_mov_b64 exec, s[48:49]
v_cvt_pk_bf16_f32 v{PD}, v{R}, v{R+1}
v_min_u32 v{PD}, -2, v{PD}
s_mov_b64 exec, s[50:51]
buffer_store_dword v{PD}, v{PUB}, {WS}, s37 offen{SC1}
s_mov_b64 exec, -1
v_add_u32 v{PUB}, 0x2000, v{PUB}
v_and_b32 v{PUB}, 0x7fff, v{PUB}""")
    a.nops(max(0, D2 - 48)//4)
    a(f"s_branch {P}_h2")
    a(f"{P}_h2retry:"); spin_dec(a, 13); a(f"s_branch {P}_h2")
    a(f"{P}_h1retry:"); spin_dec(a, 14); a(f"s_branch {P}_h1")
    a(f"{P}_kvwait:"); spin_dec(a, 15)
    a(f"""s_sleep 1
buffer_load_dword v{FV}, v{FL}, {WS}, s41 offen sc1
s_waitcnt vmcnt(0)
v_cmp_ge_u32 vcc, s33, v{FV}
s_cbranch_vccnz {P}_kvwait
s_branch {P}_kvok""")
```

```python
from common import *
from r_qkv import xtile_setup, xtile_dma
from r_ao import load_w_perm, group_epilogue, part_addr, selectors, reduce_loads, reduce_sum, add_resid, unpack8, phase_slot
HB = 0x20000
TS = 16384

def role_ffn(a, opt):
    a(f"""role_ffn:
s_lshr_b32 {S_L}, {S_I}, 4
s_and_b32 s35, {S_I}, 15""")
    if 'ffn_layers' in opt:
        for l in (0, 1):
            if l not in opt['ffn_layers']: a(f"s_cmp_eq_u32 {S_L}, {l}\ns_cbranch_scc1 the_end")
    a(f"""s_cmp_eq_u32 s35, 15
s_cbranch_scc1 the_end
s_cmp_ge_u32 s35, 11
s_cbranch_scc1 ffn_R""")
    def wait_init(code):
        if not opt.get('noinit'):
            wait_dbg(a, D_INIT*4, 1, code, vt=10)
            a(f"s_lshl_b32 s33, {S_L}, 2\ns_add_u32 s33, s33, {D_GINIT*4}")
            wait_dbg(a, 's33', 32, code + 1, vt=10)
    srd(a, 12, P_W1, 512*2752); srd(a, 16, P_W2, 1376*1024)
    a(f"""s_lshl_b32 s33, s35, 2
s_add_u32 s33, s33, {S_W}
s_lshl_b32 s50, s33, 6
s_cmp_eq_u32 s33, 43
s_cselect_b32 s50, 0x200000, s50
v_lshrrev_b32 v2, 2, v1
v_mul_u32_u24 v2, 2752, v2
v_and_b32 v3, 3, v1
v_lshl_add_u32 v2, v3, 4, v2
s_mul_i32 s52, {S_W}, 40960
v_lshrrev_b32 v3, 5, v1
v_lshlrev_b32 v3, 9, v3
v_bfe_u32 v4, v1, 2, 2
v_lshl_add_u32 v3, v4, 6, v3
v_bfe_u32 v4, v1, 4, 1
v_lshl_add_u32 v3, v4, 5, v3
v_and_b32 v4, 3, v1
v_lshl_add_u32 v3, v4, 3, v3
v_add_u32 v3, s52, v3""")
    def dma(i, q):
        a(f"buffer_load_dwordx4 v2, s[12:15], s50 offen lds\ns_add_u32 s50, s50, {16*2752}")
    def consume(i, off):
        r = 4 * i
        a(f"ds_read_b64_tr_b16 a[{r}:{r+1}], v3 offset:{off}")
        a(f"ds_read_b64_tr_b16 a[{r+2}:{r+3}], v3 offset:{off+256}")
        return 2
    stage_tr(a, 32, 32, 1024, 's52', dma, consume)
    a(f"""s_lshl_b32 s37, s35, 17
s_lshl_b32 s33, {S_W}, 8
s_add_u32 s37, s37, s33
v_lshrrev_b32 v4, 5, v1
v_lshlrev_b32 v4, 12, v4
v_and_b32 v5, 31, v1
v_lshl_add_u32 v4, v5, 3, v4""")
    load_w_perm(a, 's[16:19]', 'v4', 's37', 8, lambda z, j: (16*z + 8*(j >> 2) + (j & 3)) * 1024, lambda z: 0,
                lambda tau, z: 128 + (tau*8 + z) * 4, 16)
    wait_init(30)
    xtile_setup(a, 'v4', 'v5', 's36')
    part_addr(a, 'v8', 'v9', TS)
    a(f"""s_lshl_b32 s37, {S_L}, 21
s_add_u32 s37, s37, {XNF}
s_lshl_b32 s33, {S_W}, 13
s_add_u32 s37, s37, s33
s_lshl_b32 s38, {S_L}, 20
s_add_u32 s38, s38, {FFRING}
s_lshl_b32 s33, s35, 10
s_add_u32 s38, s38, s33
s_lshl_b32 s33, {S_W}, 8
s_add_u32 s38, s38, s33
s_lshl_b32 s33, {S_L}, 7
s_lshl_b32 s34, {S_W}, 5
s_add_u32 s34, s34, s33
s_add_u32 s34, s34, {F_AOR}
s_add_u32 s33, s33, {F_FFD - 128}
v_and_b32 v6, 7, v1
v_lshl_add_u32 v6, v6, 2, s34
v_lshl_add_u32 v9, v1, 2, s33
v_mov_b32 v12, -1
v_cmp_gt_u32 vcc, 32, v1
v_cndmask_b32 v6, v9, v6, vcc
v_cndmask_b32_e64 v12, v12, 2, vcc
; h exchange
v_add_u32 v14, {HB}, v4
s_lshl_b32 s33, {S_W}, 11
v_add_u32 v13, s33, v14
s_mov_b32 s20, -1
s_barrier""")
    decide_mode(a, 'ffs_wait', vt=10)
    FR, H, PK, HF, G = 16, 48, 64, 80, 128
    def flag_load(): a(f"buffer_load_dword v7, v6, {WS}, 0 offen sc1")
    def issue_dma():
        xtile_dma(a, 'v4', 's36', 's37', 's33')
        a(f"s_xor_b32 s36, s36, 0x10000\ns_add_u32 s37, s37, 32768\ns_mov_b32 s39, 1")
    for P, SC1 in (('fff', ''), ('ffs', ' sc1')):
        a(f"""{P}_wait:
v_add_u32 v9, s20, v12
{P}_poll:""")
        flag_load()
        a(f"""s_waitcnt vmcnt(0)
v_cmp_gt_i32 vcc, v9, v7
s_cmp_eq_u32 vcc_lo, 0
s_cbranch_scc1 {P}_rdy""")
        spin_dec(a, 32)
        a(f"s_sleep 1\ns_branch {P}_poll\n{P}_rdy:")
        issue_dma()
        a(f"""s_waitcnt vmcnt(0)
{P}_top:
s_barrier
s_add_u32 s20, s20, 1""")
        tr_stamp(a, opt, 0)
        for k in range(6): a(f"ds_read_b128 v[{FR+4*k}:{FR+4*k+3}], v5 offset:{32*k}")
        a(f"s_cmp_eq_u32 s20, 63\ns_cselect_b32 s39, 1, 0\nv_add_u32 v9, s20, v12")
        phase_slot(a, 's20', 's22', 's23', 's38', 19)
        for k in range(32):
            f = FR + 4 * (k % 8)
            a(f"s_waitcnt lgkmcnt({min(31, k + 5) - k})")
            a(f"v_mfma_f32_32x32x16_bf16 v[{H}:{H+15}], a[{4*k}:{4*k+3}], v[{f}:{f+3}], {f'v[{H}:{H+15}]' if k else '0'}")
            if k + 6 < 32:
                n = FR + 4 * ((k + 6) % 8)
                a(f"ds_read_b128 v[{n}:{n+3}], v5 offset:{32*(k+6)}")
            if k == 8: flag_load()
        a("v_xor_b32 v5, 0x10000, v5")
        for i in range(8): a(f"v_cvt_pk_bf16_f32 v{PK+i}, v{H+2*i}, v{H+2*i+1}")
        for i in range(8): a(f"v_pk_max_i16 v{PK+i}, v{PK+i}, 0")
        a(f"""ds_write_b128 v13, v[{PK}:{PK+3}]
ds_write_b128 v13, v[{PK+4}:{PK+7}] offset:1024
s_waitcnt vmcnt(0)
v_cmp_gt_i32 vcc, v9, v7
s_or_b32 s33, vcc_lo, s39
s_mov_b32 s40, vcc_hi
s_waitcnt lgkmcnt(0)
s_barrier""")
        tr_stamp(a, opt, 1)
        for z in range(8): a(f"ds_read_b128 v[{HF+4*z}:{HF+4*z+3}], v14 offset:{1024*z}")
        a(f"s_cmp_eq_u32 s33, 0\ns_cbranch_scc0 {P}_nd")
        issue_dma()
        a(f"{P}_nd:")
        for z in range(8):
            a(f"s_waitcnt lgkmcnt({7-z})")
            for tau in range(4):
                b = 128 + (tau*8 + z) * 4
                A = G + 16*tau
                a(f"v_mfma_f32_32x32x16_bf16 v[{A}:{A+15}], v[{HF+4*z}:{HF+4*z+3}], a[{b}:{b+3}], {'0' if z==0 else f'v[{A}:{A+15}]'}")
        a(f"s_cmp_eq_u32 s40, 0\ns_cbranch_scc0 {P}_ringwait\n{P}_ringok:")
        tr_stamp(a, opt, 2)
        for x in group_epilogue(G, PK, 'v8', 's23', 's22', TS, 0, SC1): a(x)
        tr_stamp(a, opt, 3)
        tr_flush(a, opt, 's20', range(4), 240, wait=True)
        a(f"""s_cmp_eq_u32 s20, 63
s_cbranch_scc1 ffn_fin
s_cmp_eq_u32 s39, 1
s_cbranch_scc0 {P}_wait
s_waitcnt vmcnt(8)
s_branch {P}_top
{P}_ringwait:""")
        spin_dec(a, 33)
        flag_load()
        a(f"""s_waitcnt vmcnt(0)
v_cmp_gt_i32 vcc, v9, v7
s_cmp_eq_u32 vcc_hi, 0
s_cbranch_scc1 {P}_ringok
s_sleep 1
s_branch {P}_ringwait""")
    a("ffn_fin:")
    tr_dump(a, opt, 4, 240, 10)
    a("s_branch the_end")
    S1, S2, R, X, O, D = 16, 20, 24, 40, 48, 64
    a(f"""ffn_R:
s_sub_u32 s35, s35, 11
s_lshl_b32 s35, s35, 3
s_lshl_b32 s33, {S_W}, 1
s_add_u32 s35, s35, s33
s_cmp_eq_u32 {S_L}, 0
s_cselect_b32 s12, s{P_WS}, s{P_OUT}
s_cselect_b32 s13, s{P_WS+1}, s{P_OUT+1}
s_mov_b32 s14, {hex(2*MB)}
s_cselect_b32 s14, {hex(WS_SIZE)}, s14
s_mov_b32 s15, 0x20000
s_cselect_b32 s37, {XF}, 0
s_lshl_b32 s33, s35, 10
s_add_u32 s37, s37, s33
s_lshl_b32 s34, {S_L}, 21
s_add_u32 s36, s34, s33
s_add_u32 s36, s36, {XA}
s_lshl_b32 s33, s35, 14
s_lshl_b32 s34, {S_L}, 20
s_add_u32 s38, s33, s34
s_add_u32 s38, s38, {FFRING}
s_lshl_b32 s33, {S_L}, 7
s_lshl_b32 s34, s35, 2
s_add_u32 s33, s33, s34
s_add_u32 s39, s33, {F_FFR}
s_add_u32 s40, s33, {F_FFD}
s_add_u32 s41, s33, {F_AOR}
v_lshrrev_b32 v6, 4, v1
v_lshlrev_b32 v6, 10, v6
v_and_b32 v7, 15, v1
v_lshl_add_u32 v6, v7, 4, v6
v_lshlrev_b32 v7, 3, v1
v_and_b32 v8, 1, v1
v_lshlrev_b32 v8, 2, v8
v_cmp_gt_u32 vcc, 48, v1
v_cndmask_b32_e64 v5, 0, -1, vcc
v_mov_b32 v4, 0x40000000
v_cndmask_b32 v4, v4, v6, vcc
v_min_u32 v3, 43, v1
v_lshlrev_b32 v3, 8, v3
s_mov_b32 s20, 0""")
    selectors(a, S1, S2, 10)
    wait_init(34)
    a(f"""ffr_top:
s_add_u32 s21, s20, 1""")
    phase_slot(a, 's20', 's22', 's23', 's38', 19)
    a(f"""ffr_w1:
buffer_load_dword v10, v8, {WS}, s41 offen sc1
s_waitcnt vmcnt(0)
v_cmp_gt_u32 vcc, s21, v10
s_cbranch_vccz ffr_w1d""")
    spin_dec(a, 36)
    a(f"""s_sleep 4
s_branch ffr_w1
ffr_w1d:""")
    for i in range(4): a(f"buffer_load_dwordx2 v[{X+2*i}:{X+2*i+1}], v7, {WS}, s36 offen offset:{512*i} sc1")
    a(f"""ffr_probe:
buffer_load_dword v10, v3, {WS}, s23 offen sc1
s_waitcnt vmcnt(0)
v_xor_b32 v10, s22, v10
v_and_b32 v10, 1, v10
v_cmp_ne_u32 vcc, 0, v10
s_cbranch_vccnz ffr_retry""")
    tr_stamp(a, opt, 0)
    reduce_loads(a, 3, ['v6', 'v6', 'v4'], 's23', D)
    a(f"s_add_u32 s34, s23, {TS}")
    reduce_loads(a, 3, ['v6', 'v6', 'v4'], 's34', D + 48)
    reduce_sum(a, 3, D, S1, S2, R, 10, 's22', 12, lastmask='v5')
    a("s_cbranch_vccnz ffr_retry")
    add_resid(a, R, X, O)
    reduce_sum(a, 3, D + 48, S1, S2, R + 8, 10, 's22', 0, lastmask='v5')
    a("s_cbranch_vccnz ffr_retry")
    tr_stamp(a, opt, 1)
    a(f"""v_mov_b32 v9, s21
s_mov_b64 exec, 3
buffer_store_dword v9, v8, {WS}, s40 offen sc1
s_mov_b64 exec, -1""")
    add_resid(a, R + 8, X + 4, O + 4)
    for i in range(4): a(f"buffer_store_dwordx2 v[{O+2*i}:{O+2*i+1}], v7, s[12:15], s37 offen offset:{512*i} sc1")
    a(f"s_cmp_eq_u32 {S_L}, 0\ns_cbranch_scc0 ffr_next")
    a(f"s_sub_u32 s33, s37, {XF - (XN + 2*MB)}")
    for t in range(2):
        unpack8(a, R, O + 4*t)
        layernorm8(a, R, O + 8 + 4*t, 10)
        for i in range(2):
            r = O + 8 + 4*t + 2*i
            a(f"buffer_store_dwordx2 v[{r}:{r+1}], v7, {WS}, s33 offen offset:{1024*t + 512*i} sc1")
    tr_stamp(a, opt, 2)
    a(f"""s_waitcnt vmcnt(0)
s_mov_b64 exec, 3
buffer_store_dword v9, v8, {WS}, s39 offen sc1
s_mov_b64 exec, -1
ffr_next:""")
    tr_stamp(a, opt, 3)
    tr_flush(a, opt, 's20', range(4), 240, wait=True)
    a(f"""s_add_u32 s36, s36, 32768
s_add_u32 s37, s37, 32768
s_mov_b32 s20, s21
s_cmp_lt_u32 s20, 64
s_cbranch_scc1 ffr_top""")
    tr_dump(a, opt, 4, 240, 10)
    a("s_branch the_end\nffr_retry:")
    spin_dec(a, 37)
    a("s_sleep 2\ns_branch ffr_probe")
```

```python
from common import *

def ln1_and_init(a, opt):
    srd(a, 12, P_X, hex(2*MB))
    a(f"""s_lshl_b32 s31, {S_L}, 5
s_add_u32 s31, s31, {S_I}
s_lshl_b32 s31, s31, 2
s_add_u32 s36, s31, {S_W}
s_lshl_b32 s37, s36, 10
v_lshlrev_b32 v2, 4, v1""")
    for p in range(8):
        a(f"s_add_u32 s31, s37, {p*256*1024}\nbuffer_load_dwordx4 v[{16+4*p}:{19+4*p}], v2, s[12:15], s31 offen")
    for p in range(8):
        a(f"s_waitcnt vmcnt(7)")
        for i in range(4):
            a(f"v_lshlrev_b32 v{4+2*i}, 16, v{16+4*p+i}\nv_and_b32 v{5+2*i}, 0xffff0000, v{16+4*p+i}")
        layernorm8(a, 4, 16+4*p, 12)
        a(f"s_add_u32 s31, s37, {XN + p*256*1024}\nbuffer_store_dwordx4 v[{16+4*p}:{19+4*p}], v2, {WS}, s31 offen sc1")
    if not opt.get('noinit'): wait_dbg(a, D_INIT*4, 1, 5, vt=4)
    a(f"""s_waitcnt vmcnt(0)
s_lshl_b32 s31, s36, 2
s_add_u32 s31, s31, {F_LN1}
v_mov_b32 v4, 8
v_mov_b32 v5, 0
s_mov_b64 exec, 1
buffer_store_dword v4, v5, {WS}, s31 offen sc1
s_mov_b64 exec, -1""")
    if opt.get('noinit'): return
    a(f"""v_lshlrev_b32 v2, 4, v0
v_mov_b32 v4, 0
v_mov_b32 v5, 0
v_mov_b32 v6, 0
v_mov_b32 v7, 0""")
    for base, stride, size in ((CRING, MB, 512*1024), (AORING, 2*MB, 2*MB), (FFRING, MB, MB)):
        per = size // 32
        a(f"""s_mul_i32 s31, {S_L}, {stride}
s_mul_i32 s32, {S_I}, {per}
s_add_u32 s31, s31, s32
s_add_u32 s31, s31, {base}""")
        for i in range(per // 4096):
            a(f"buffer_store_dwordx4 v[4:7], v2, {WS}, s31 offen sc1\ns_add_u32 s31, s31, 4096")
    srd(a, 12, P_MEM0, 8192)
    a(f"""s_cmp_lt_u32 {S_I}, 8
s_cbranch_scc0 init_nomem
v_mov_b32 v8, -1
v_mov_b32 v9, -1
v_mov_b32 v10, -1
v_mov_b32 v11, -1
s_cmp_lt_u32 {S_I}, 2
s_cbranch_scc0 init_poison
v_bfe_u32 v12, v0, 2, 2
v_lshlrev_b32 v12, 11, v12
v_and_b32 v13, 1, v0
v_lshl_add_u32 v12, v13, 10, v12
v_lshrrev_b32 v13, 4, v0
v_lshl_add_u32 v12, v13, 5, v12
v_bfe_u32 v13, v0, 1, 1
v_lshl_add_u32 v12, v13, 2, v12
s_lshl_b32 s31, {S_I}, 9
buffer_load_dword v8, v12, s[12:15], s31 offen
buffer_load_dword v9, v12, s[12:15], s31 offen offset:8
buffer_load_dword v10, v12, s[12:15], s31 offen offset:16
buffer_load_dword v11, v12, s[12:15], s31 offen offset:24
s_waitcnt vmcnt(0)
v_min_u32 v8, -2, v8
v_min_u32 v9, -2, v9
v_min_u32 v10, -2, v10
v_min_u32 v11, -2, v11
init_poison:
s_lshl_b32 s31, {S_L}, 20
s_lshl_b32 s32, {S_I}, 12
s_add_u32 s31, s31, s32
s_add_u32 s31, s31, {CRING + CMEM_OFF}
buffer_store_dwordx4 v[8:11], v2, {WS}, s31 offen sc1
init_nomem:
s_waitcnt vmcnt(0)
s_barrier
s_cmp_eq_u32 {S_W}, 0
s_cbranch_scc0 init_done
s_lshl_b32 s31, {S_L}, 2
s_add_u32 s31, s31, {D_GINIT*4}
s_mov_b64 exec, 1
v_mov_b32 v4, 1
v_mov_b32 v5, s31
buffer_atomic_add v4, v5, {DBG}, 0 offen sc1
s_mov_b64 exec, -1
init_done:""")
```

```python
from common import *

XROW = 1040
def xtile_setup(a, vga, vrd, s_m0):
    a(f"""v_lshlrev_b32 {vga}, 4, v1
v_and_b32 {vrd}, 31, v1
v_mul_u32_u24 {vrd}, {XROW}, {vrd}
v_lshrrev_b32 v2, 5, v1
v_lshl_add_u32 {vrd}, v2, 4, {vrd}
s_mul_i32 {s_m0}, {S_W}, {8*XROW}""")

def xtile_dma(a, vga, s_m0, s_src, st):
    for r in range(8):
        a(f"s_add_u32 m0, {s_m0}, {r*XROW}")
        if r: a(f"s_add_u32 {st}, {s_src}, {r*1024}")
        a(f"buffer_load_dwordx4 {vga}, {WS}, {st if r else s_src} offen sc1 lds")

def role_qkv(a, opt, g0):
    a(f"""role_qkv:
s_sub_u32 s20, {S_G}, {g0}
s_lshl_b32 s20, s20, 4
s_and_b32 s31, {S_I}, 15
s_add_u32 s20, s20, s31
s_lshr_b32 {S_L}, {S_I}, 4""")
    if 'qkv_layers' in opt:
        for l in (0, 1):
            if l not in opt['qkv_layers']: a(f"s_cmp_eq_u32 {S_L}, {l}\ns_cbranch_scc1 the_end")
    a(f"""s_cmp_lt_u32 s20, 32
s_cselect_b32 s12, s{P_WK}, s{P_WQ}
s_cselect_b32 s13, s{P_WK+1}, s{P_WQ+1}
s_cselect_b32 s16, s{P_WV}, s{P_WQ}
s_cselect_b32 s17, s{P_WV+1}, s{P_WQ+1}
s_mov_b32 s14, 0x400000
s_mov_b32 s15, 0x20000
s_mov_b32 s18, 0x400000
s_mov_b32 s19, 0x20000
s_sub_u32 s31, s20, 32
s_lshl_b32 s31, s31, 1
s_add_u32 s32, s31, 1
s_cmp_lt_u32 s20, 32
s_cselect_b32 s46, s20, s31
s_cselect_b32 s47, s20, s32
s_cselect_b32 s48, 8192, 0
s_cselect_b32 s49, 16384, 0
s_lshl_b32 s31, {S_W}, 6
s_lshl_b32 s50, s46, 8
s_add_u32 s50, s50, s31
s_lshl_b32 s51, s47, 8
s_add_u32 s51, s51, s31
v_lshrrev_b32 v2, 2, v1
v_lshlrev_b32 v2, 13, v2
v_and_b32 v3, 3, v1
v_lshl_add_u32 v2, v3, 4, v2
s_mul_i32 s52, {S_W}, 40960
v_lshrrev_b32 v3, 5, v1
v_lshlrev_b32 v3, 9, v3
v_bfe_u32 v4, v1, 2, 2
v_lshl_add_u32 v3, v4, 6, v3
v_bfe_u32 v4, v1, 4, 1
v_lshl_add_u32 v3, v4, 5, v3
v_and_b32 v4, 3, v1
v_lshl_add_u32 v3, v4, 3, v3
v_add_u32 v3, s52, v3""")
    def dma(i, q):
        z, k = i // 32, i % 32
        sr = 's50' if z == 0 else 's51'
        a(f"buffer_load_dwordx4 v2, {'s[12:15]' if z==0 else 's[16:19]'}, {sr} offen lds")
        a(f"s_add_u32 {sr}, {sr}, {16*8192}")
    def consume(i, off):
        r = 4 * i
        a(f"ds_read_b64_tr_b16 a[{r}:{r+1}], v3 offset:{off}")
        a(f"ds_read_b64_tr_b16 a[{r+2}:{r+3}], v3 offset:{off+256}")
        return 2
    stage_tr(a, 64, 40, 1024, 's52', dma, consume)
    xtile_setup(a, 'v4', 'v5', 's36')
    a(f"""s_lshl_b32 s37, {S_L}, 21
s_add_u32 s37, s37, {XN}
s_lshl_b32 s31, {S_W}, 13
s_add_u32 s37, s37, s31
s_mul_i32 s31, {S_L}, {48*MB}
s_add_u32 s31, s31, {QKV}
s_lshl_b32 s32, {S_W}, 11
s_add_u32 s31, s31, s32
s_mul_i32 s38, s46, 24576
s_add_u32 s38, s38, s31
s_add_u32 s38, s38, s48
s_mul_i32 s39, s47, 24576
s_add_u32 s39, s39, s31
s_add_u32 s39, s39, s49
s_mov_b32 s40, {F_FFR}
s_cmp_eq_u32 {S_L}, 0
s_cselect_b32 s40, {F_LN1}, s40
s_cselect_b32 s41, 7, 0
s_cselect_b32 s42, 3, 0
s_lshl_b32 s31, {S_L}, 5
s_add_u32 s31, s31, s20
s_lshl_b32 s31, s31, 7
s_add_u32 s31, s31, {F_KV}
s_lshl_b32 s32, {S_L}, 4
s_add_u32 s32, s32, s20
s_sub_u32 s32, s32, 32
s_lshl_b32 s32, s32, 7
s_add_u32 s32, s32, {F_Q}
s_cmp_lt_u32 s20, 32
s_cselect_b32 s43, s31, s32
s_lshl_b32 s31, {S_W}, 2
s_add_u32 s43, s43, s31
v_and_b32 v6, 7, v1
v_lshlrev_b32 v6, 2, v6
s_lshl_b32 s31, {S_W}, 5
v_add_u32 v6, s31, v6
v_mov_b32 v8, 0
s_mov_b32 s21, -1
s_barrier""")
    if not opt.get('noinit'): wait_dbg(a, D_INIT*4, 1, 3, vt=10)
    def flag_params():
        a(f"""s_add_u32 s44, s21, 1
s_and_b32 s45, s44, s41
s_lshl_b32 s45, s45, 7
s_add_u32 s45, s45, s40
s_lshr_b32 s44, s44, s42""")
    def flag_load(): a(f"buffer_load_dword v7, v6, {WS}, s45 offen sc1")
    def publish(delta):
        a(f"""s_add_u32 s31, s21, {delta}
v_mov_b32 v9, s31
s_mov_b64 exec, 1
buffer_store_dword v9, v8, {WS}, s43 offen sc1
s_mov_b64 exec, -1""")
    def issue_dma():
        xtile_dma(a, 'v4', 's36', 's37', 's31')
        a(f"s_xor_b32 s36, s36, 0x10000\ns_add_u32 s37, s37, 32768\ns_mov_b32 s22, 1")
    a(f"s_cmp_lt_u32 s20, 32\ns_cbranch_scc0 qq_wait")
    FR, A0, A1, PK = 16, 48, 64, 80
    for var in ('kv', 'qq'):
        a(f"{var}_wait:")
        flag_params()
        a(f"{var}_poll:")
        flag_load()
        a(f"""s_waitcnt vmcnt(0)
v_cmp_ge_u32 vcc, s44, v7
s_cbranch_vccz {var}_rdy""")
        spin_dec(a, 4)
        a(f"s_sleep 2\ns_branch {var}_poll\n{var}_rdy:")
        issue_dma()
        a(f"s_waitcnt vmcnt(0)")
        a(f"""{var}_top:
s_barrier
s_add_u32 s21, s21, 1""")
        tr_stamp(a, opt, 0)
        for k in range(6): a(f"ds_read_b128 v[{FR+4*k}:{FR+4*k+3}], v5 offset:{32*k}")
        a(f"s_cmp_eq_u32 s21, 63\ns_cselect_b32 s22, 1, 0")
        flag_params()
        flag_load()
        for k in range(32):
            f = FR + 4 * (k % 8)
            rem = min(31, k + 5) - k
            a(f"s_waitcnt lgkmcnt({rem})")
            c0 = f"v[{A0}:{A0+15}]" if k else "0"
            c1 = f"v[{A1}:{A1+15}]" if k else "0"
            a(f"v_mfma_f32_32x32x16_bf16 v[{A0}:{A0+15}], a[{4*k}:{4*k+3}], v[{f}:{f+3}], {c0}")
            if k + 6 < 32:
                n = FR + 4 * ((k + 6) % 8)
                a(f"ds_read_b128 v[{n}:{n+3}], v5 offset:{32*(k+6)}")
            if var == 'kv': a(f"v_mfma_f32_32x32x16_bf16 v[{A1}:{A1+15}], v[{f}:{f+3}], a[{128+4*k}:{128+4*k+3}], {c1}")
            else: a(f"v_mfma_f32_32x32x16_bf16 v[{A1}:{A1+15}], a[{128+4*k}:{128+4*k+3}], v[{f}:{f+3}], {c1}")
            if k in (12, 24):
                if k == 12:
                    tr_stamp(a, opt, 1)
                    a("s_waitcnt vmcnt(0)")
                    tr_stamp(a, opt, 2)
                    publish(0)
                a(f"""s_cmp_eq_u32 s22, 1
s_cbranch_scc1 {var}_sk{k}""")
                if k == 24: a("s_waitcnt vmcnt(0)")
                a(f"""v_cmp_ge_u32 vcc, s44, v7
s_cbranch_vccnz {var}_nr{k}""")
                issue_dma()
                if k == 12:
                    a(f"s_branch {var}_sk{k}\n{var}_nr{k}:")
                    flag_load()
                else:
                    a(f"{var}_nr{k}:")
                a(f"{var}_sk{k}:")
        a("v_xor_b32 v5, 0x10000, v5")
        tr_stamp(a, opt, 3)
        for z, A in ((0, A0), (1, A1)):
            nat = (var == 'kv' and z == 1)
            for u in range(2):
                for i in range(4):
                    r0, r1 = (A + 8*u + 2*i, A + 8*u + 2*i + 1) if nat else (A + 8*u + i, A + 8*u + 4 + i)
                    a(f"v_cvt_pk_bf16_f32 v{PK+8*z+4*u+i}, v{r0}, v{r1}")
                p = PK + 8*z + 4*u
                a(f"buffer_store_dwordx4 v[{p}:{p+3}], v4, {WS}, {'s38' if z==0 else 's39'} offen offset:{1024*u} sc1")
        tr_stamp(a, opt, 4)
        tr_flush(a, opt, 's21', range(5), 240, wait=True)
        a(f"""s_add_u32 s38, s38, {32*24576}
s_add_u32 s39, s39, {32*24576}
s_cmp_eq_u32 s21, 63
s_cbranch_scc1 qkv_fin
s_cmp_eq_u32 s22, 1
s_cbranch_scc0 {var}_late
s_waitcnt vmcnt(4)
s_branch {var}_top
{var}_late:
s_waitcnt vmcnt(0)""")
        publish(1)
        a(f"s_branch {var}_wait")
    a("qkv_fin:\ns_waitcnt vmcnt(0)")
    publish(1)
    tr_dump(a, opt, 5, 240, 10)
    a("s_branch the_end")
```

```python
import sys, json
from common import *
from r_qkv import role_qkv
from r_init import ln1_and_init

HDR = open('interleave_layers__memory_aug_recurrent_mem_tr__dense_activation_relu__prompt.s.ref').read().split('; Override launch')[0]

G_CH0, G_CH1, G_AO0, G_AO1, G_FFN, G_QKV = 0, 1, 2, 3, 4, 5

def generate(opt):
    a = Asm(); a.bails = set()
    prologue(a, opt)
    tr_begin(a, opt)
    roles = opt.get('roles', ('chain', 'ao', 'ffn', 'qkv'))
    a(f"""s_cmp_ge_u32 {S_G}, {G_QKV}
s_cbranch_scc1 {'role_qkv' if 'qkv' in roles else 'the_end'}
s_cmp_eq_u32 {S_G}, {G_FFN}
s_cbranch_scc1 {'role_ffn' if 'ffn' in roles else 'the_end'}
s_and_b32 {S_L}, {S_G}, 1
s_cmp_lt_u32 {S_G}, {G_AO0}
s_cbranch_scc1 {'role_chain' if 'chain' in roles else 'the_end'}""")
    if not opt.get('noln1'): ln1_and_init(a, opt)
    if 'ao' in roles:
        from r_ao import role_ao
        role_ao(a, opt)
    a("the_end:\ns_waitcnt vmcnt(0)\ns_endpgm")
    if opt.get('WB'):
        a(f"end_wb:\ns_waitcnt vmcnt(0)\ns_and_b32 s33, {S_I}, 15\ns_cmp_eq_u32 s33, 11\ns_cbranch_scc0 the_end\nbuffer_wbl2 sc1\ns_branch the_end")
    emitted_end = True
    if 'qkv' in roles: role_qkv(a, opt, G_QKV)
    if 'ffn' in roles:
        from r_ffn import role_ffn
        role_ffn(a, opt)
    if 'chain' in roles:
        from r_chain import role_chain
        role_chain(a, opt)
    emit_bails(a)
    n = a.fix_hazards(opt.get('verbose'))
    txt = HDR + f"""; @launch grid=(256,1,1) block=(256,1,1) lds=163840
; opts {json.dumps(opt)}
.amdgcn_target "amdgcn-amd-amdhsa--gfx950"
.text
.globl {KNAME}
.p2align 8
.type {KNAME},@function
{KNAME}:
""" + a.text() + f""".section .rodata,"a"
.p2align 6
.amdhsa_kernel {KNAME}
  .amdhsa_next_free_vgpr 512
  .amdhsa_next_free_sgpr 102
  .amdhsa_accum_offset 256
  .amdhsa_group_segment_fixed_size 0
  .amdhsa_kernarg_size 104
  .amdhsa_user_sgpr_count 2
  .amdhsa_user_sgpr_kernarg_segment_ptr 1
  .amdhsa_system_sgpr_workgroup_id_x 1
.end_amdhsa_kernel
"""
    return txt

if __name__ == '__main__':
    out = sys.argv[1]
    opt = json.loads(sys.argv[2]) if len(sys.argv) > 2 else {}
    t = generate(opt)
    open(out, 'w').write(t)
    print(out, len(t), 'bytes', t.count('\n'), 'lines')
```

```python
import re

REG_RE = re.compile(r'^(-?|\|?)(abs\()?([vas])(\d+|\[(\d+):(\d+)\])\)?\|?$')

def parse_reg(tok):
    t = tok.strip()
    if t.startswith('-'): t = t[1:]
    if t.startswith('abs(') and t.endswith(')'): t = t[4:-1]
    if t.startswith('|') and t.endswith('|'): t = t[1:-1]
    if t == 'vcc': return [('s', 'vcc_lo'), ('s', 'vcc_hi')]
    if t in ('vcc_lo', 'vcc_hi'): return [('s', t)]
    if t == 'exec': return [('s', 'exec_lo'), ('s', 'exec_hi')]
    if t in ('exec_lo', 'exec_hi'): return [('s', t)]
    if t == 'm0': return [('s', 'm0')]
    m = re.match(r'^([vas])(\d+)$', t)
    if m: return [(m.group(1), int(m.group(2)))]
    m = re.match(r'^([vas])\[(\d+):(\d+)\]$', t)
    if m: return [(m.group(1), i) for i in range(int(m.group(2)), int(m.group(3)) + 1)]
    return []

TRANS = ('v_exp_f32', 'v_log_f32', 'v_rcp_f32', 'v_rsq_f32', 'v_sqrt_f32', 'v_sin_f32', 'v_cos_f32', 'v_rcp_iflag_f32')

class Ins:
    __slots__ = ('text', 'op', 'ops', 'mods', 'kind', 'wr', 'rd', 'passes', 'A', 'B', 'C', 'D', 'target', 'states', 'dpp', 'sdata', 'wide', 'ldsdma')
    def __init__(self, text):
        self.text = text
        body = text.split(';')[0].strip()
        parts = body.split(None, 1)
        self.op = parts[0]
        rest = parts[1] if len(parts) > 1 else ''
        rest = re.sub(r':\[([0-9,]+)\]', lambda m: ':<' + m.group(1).replace(',', '_') + '>', rest)
        toks = [x.strip() for x in rest.split(',')] if rest else []
        mods = []
        if toks:
            lp = toks[-1].split()
            toks[-1] = lp[0] if lp else ''
            mods = lp[1:]
        self.ops, self.mods = toks, mods
        self.wr, self.rd = [], []
        self.passes = 0; self.A = self.B = self.C = self.D = []
        self.target = None; self.states = 1; self.dpp = False; self.sdata = []; self.wide = False; self.ldsdma = False
        op = self.op
        R = [parse_reg(t) for t in toks]
        flat = lambda l: [x for y in l for x in y]
        if op.startswith('v_mfma') or op.startswith('v_smfmac'):
            self.kind = 'mfma'
            self.passes = 8 if '32x32' in op else 4
            self.D, self.A, self.B = R[0], R[1], R[2]
            if op.startswith('v_smfmac'):
                self.C = R[0]; self.A = R[1] + R[3]
            else:
                self.C = R[3]
            self.wr = self.D; self.rd = self.A + self.B + self.C
        elif op.startswith('v_'):
            self.kind = 'valu'
            base = op.replace('_e32', '').replace('_e64', '').replace('_dpp', '')
            self.dpp = op.endswith('_dpp') or any(m.startswith(('row_', 'quad_perm', 'wave_')) for m in mods)
            if base.startswith('v_cmp'):
                self.wr = R[0]; self.rd = flat(R[1:])
                if base.startswith('v_cmpx'): self.wr = self.wr + parse_reg('exec')
            elif base.startswith('v_permlane') and 'swap' in base:
                self.wr = R[0] + R[1]; self.rd = R[0] + R[1]
            elif base in ('v_add_co_u32', 'v_sub_co_u32', 'v_addc_co_u32', 'v_subb_co_u32', 'v_mad_u64_u32'):
                self.wr = R[0] + R[1]; self.rd = flat(R[2:])
            elif base == 'v_nop':
                pass
            else:
                self.wr = R[0]; self.rd = flat(R[1:])
                if base.startswith(('v_fmac', 'v_pk_fmac', 'v_writelane', 'v_dot2c')) or self.dpp: self.rd = self.rd + R[0]
        elif op.startswith(('buffer_', 'global_', 'flat_')):
            self.kind = 'vmem'
            lds = 'lds' in mods or '_lds_' in op
            self.ldsdma = lds
            if op in ('buffer_inv', 'buffer_wbl2'):
                pass
            elif op.startswith('buffer_'):
                if lds: self.rd = flat(R)
                elif 'load' in op: self.wr = R[0]; self.rd = flat(R[1:])
                else:
                    self.rd = flat(R); self.sdata = R[0]
                    if 'atomic' in op and 'sc0' in mods: self.wr = R[0]
            else:
                if lds: self.rd = flat(R)
                elif 'load' in op: self.wr = R[0]; self.rd = flat(R[1:])
                elif 'atomic' in op and 'sc0' in mods: self.wr = R[0]; self.rd = flat(R[1:]); self.sdata = R[2]
                else: self.rd = flat(R); self.sdata = R[1]
            self.wide = ('store' in op) and (op.endswith('x3') or op.endswith('x4'))
            if lds: self.rd = self.rd + [('s', 'm0')]
        elif op.startswith('ds_'):
            self.kind = 'ds'
            if 'read' in op or 'permute' in op or 'swizzle' in op or '_rtn' in op:
                self.wr = R[0]; self.rd = flat(R[1:])
            else:
                self.rd = flat(R)
        elif op.startswith('s_'):
            self.kind = 'salu'
            if op == 's_nop': self.states = int(toks[0], 0) + 1
            elif op.startswith('s_cbranch') or op == 's_branch': self.target = toks[0]
            elif op.startswith(('s_cmp', 's_waitcnt', 's_barrier', 's_endpgm', 's_sleep', 's_setprio', 's_bitcmp', 's_setpc')):
                self.rd = flat(R)
            else:
                if R:
                    self.wr = R[0]; self.rd = flat(R[1:])
                if 'saveexec' in op: self.wr = self.wr + parse_reg('exec')
        else:
            raise ValueError('unknown instruction: ' + text)

def need(p, c):
    n = 0
    pw = set(p.wr)
    inter = lambda a, b: bool(set(a) & set(b))
    if p.kind == 'mfma':
        big = p.passes == 8
        if c.kind == 'mfma':
            if inter(p.D, c.C):
                if not (c.C == p.D and c.passes == p.passes): n = max(n, 10 if big else 6)
            if inter(p.D, c.A + c.B): n = max(n, 12 if big else 8)
            if inter(p.D, c.D) and not inter(p.D, c.C): n = max(n, 10 if big else 6)
        elif c.kind in ('valu', 'vmem', 'ds'):
            if inter(p.D, c.rd + c.wr): n = max(n, 12 if big else 8)
            if c.kind == 'valu' and inter(p.C, c.wr): n = max(n, 7 if big else 3)
    elif p.kind == 'valu':
        vw = [r for r in p.wr if r[0] in 'va']
        sw = [r for r in p.wr if r[0] == 's']
        if c.kind == 'mfma':
            if inter(vw, c.rd): n = max(n, 2)
            if any(r[1] in ('exec_lo', 'exec_hi') for r in sw): n = max(n, 4)
        if c.kind == 'valu':
            if c.dpp and inter(vw, c.rd): n = max(n, 2)
            if c.op.startswith('v_permlane') and inter(vw, c.rd): n = max(n, 2)
            if c.op.startswith(('v_readlane', 'v_readfirstlane')) and inter(vw, c.rd): n = max(n, 1)
            pb = p.op.replace('_e32', '').replace('_e64', '')
            if pb in TRANS and inter(vw, c.rd): n = max(n, 1)
            if not p.op.startswith('v_pk_') and any('op_sel' in m or 'dst_sel' in m for m in p.mods) and inter(vw, c.rd + c.wr): n = max(n, 1)
            crd = list(c.rd)
            if c.op.startswith('v_cndmask') and len(c.ops) == 3: crd += parse_reg('vcc')
            if inter(sw, crd):
                n = max(n, 4 if c.op.startswith(('v_readlane', 'v_writelane')) else 2)
            if any(r[1] in ('exec_lo', 'exec_hi') for r in sw):
                n = max(n, 5 if c.dpp else 4)
        if c.kind == 'vmem' and inter(sw, c.rd): n = max(n, 5)
    elif p.kind == 'salu':
        if ('s', 'm0') in pw and c.ldsdma: n = max(n, 1)
    elif p.kind == 'vmem':
        if p.wide and inter(p.sdata, c.wr): n = max(n, 2 if c.kind in ('valu', 'mfma') else 1)
    return n

PIPE_MODEL = True

class Asm:
    def __init__(self):
        self.items = []
        self.uid = 0
    def __call__(self, text):
        for line in text.split('\n'):
            t = line.strip()
            if not t or t.startswith(';'): continue
            if t.endswith(':') and ' ' not in t: self.items.append(('l', t[:-1]))
            elif t.startswith('.'): self.items.append(('r', t))
            else: self.items.append(('i', Ins(t)))
        return self
    def label(self, name): self.items.append(('l', name))
    def newlabel(self, p='L'):
        self.uid += 1
        return f'{p}_{self.uid}'
    def nops(self, states):
        while states > 0:
            k = min(states, 16); self(f's_nop {k-1}'); states -= k

    def fix_hazards(self, verbose=False):
        MAXD = 13
        inserted = 0
        changed = True
        while changed:
            changed = False
            items = self.items
            lab = {}
            for i, (k, v) in enumerate(items):
                if k == 'l': lab[v] = i
            jumps = {}
            for i, (k, v) in enumerate(items):
                if k == 'i' and v.target is not None:
                    assert v.target in lab, v.text
                    jumps.setdefault(lab[v.target], []).append(i)
            out = []
            extra = {}
            for i, (k, c) in enumerate(items):
                if k != 'i' or c.kind == 'salu': continue
                req = 0
                stack = [(i - 1, 0, (0 if c.kind == 'mfma' else None))]
                seen = {}
                while stack:
                    j, d, dm = stack.pop()
                    while j >= 0 and d < MAXD:
                        key = (j, dm)
                        if seen.get(key, 99) <= d: break
                        seen[key] = d
                        kk, p = items[j]
                        if kk == 'l':
                            for src in jumps.get(j, []): stack.append((src, d, dm))
                            jj = j - 1
                            while jj >= 0 and items[jj][0] != 'i' and items[jj][0] != 'l': jj -= 1
                            if jj >= 0 and items[jj][0] == 'i' and items[jj][1].op in ('s_branch', 's_endpgm', 's_setpc_b64'): break
                        elif kk == 'i':
                            if p.kind == 'mfma' and PIPE_MODEL:
                                el = d + 1 if dm is None else max(d + 1, p.passes + dm)
                                r = need(p, c) - (el - 1)
                                if r > 0 and c.kind == 'mfma' and dm == 0: r = need(p, c) - d
                                d = el - 1
                                dm = el
                            else:
                                r = need(p, c) - d
                            if r > req: req = r
                            d += p.states + extra.get(j, 0)
                        j -= 1
                if req > 0:
                    extra[i] = req
            if extra:
                new = []
                for i, it in enumerate(items):
                    if i in extra:
                        if verbose: print('nop', extra[i], 'before', it[1].text)
                        new.append(('i', Ins(f's_nop {extra[i]-1}')))
                        inserted += 1
                    new.append(it)
                self.items = new
                changed = True
        return inserted

    def text(self):
        o = []
        for k, v in self.items:
            if k == 'i': o.append('  ' + v.text)
            elif k == 'l': o.append(v + ':')
            else: o.append(v)
        return '\n'.join(o) + '\n'
```

```python
from asmlib import *
from layout import *

KNAME = "interleave_layers__memory_aug_recurrent_mem_tr__dense_activation_relu__prompt_kernel"
S_BUD = 's3'
S_W   = 's4'
S_G   = 's5'
S_I   = 's6'
S_L   = 's7'
WS    = 's[8:11]'
DBG   = 's[24:27]'
P_X, P_MEM0, P_WQ, P_WK, P_WV, P_WO, P_W1, P_W2, P_OUT, P_DBG, P_WS = 64, 66, 68, 70, 72, 74, 80, 82, 84, 86, 88
BUDGET = 400000

def srd(a, d, p, size):
    a(f"""s_mov_b32 s{d}, s{p}
s_mov_b32 s{d+1}, s{p+1}
s_mov_b32 s{d+2}, {size}
s_mov_b32 s{d+3}, 0x20000""")

def spin_dec(a, code):
    a(f"""s_sub_u32 {S_BUD}, {S_BUD}, 1
s_cbranch_scc1 bail_{code}""")
    a.bails.add(code)

def emit_bails(a):
    for c in sorted(a.bails):
        a(f"""bail_{c}:
s_movk_i32 s28, {c}
s_branch bail_common""")
    a(f"""bail_common:
s_mov_b64 exec, 1
s_lshl_b32 s29, {S_G}, 16
s_or_b32 s28, s28, s29
s_lshl_b32 s29, {S_I}, 8
s_or_b32 s28, s28, s29
s_lshl_b32 s29, {S_W}, 24
s_or_b32 s28, s28, s29
s_or_b32 s28, s28, 0x80000000
s_and_b32 s29, {S_G}, 7
s_lshl_b32 s29, s29, 2
s_add_u32 s29, s29, {D_ERR*4}
v_mov_b32 v2, s28
v_mov_b32 v3, s29
buffer_store_dword v2, v3, {DBG}, 0 offen sc1
s_waitcnt vmcnt(0)
s_endpgm""")

def allreduce(a, v, t, op='add'):
    for r in (8, 4, 2, 1):
        a(f"v_{op}_f32_dpp {v}, {v}, {v} row_ror:{r} row_mask:0xf bank_mask:0xf")
    a(f"""v_mov_b32 {t}, {v}
v_permlane16_swap_b32 {t}, {v}
v_{op}_f32 {v}, {v}, {t}
v_mov_b32 {t}, {v}
v_permlane32_swap_b32 {t}, {v}
v_{op}_f32 {v}, {v}, {t}""")

def layernorm8(a, x, o, t):
    s, u = f'v{t}', f'v{t+1}'
    a(f"""v_add_f32 {s}, v{x}, v{x+1}
v_add_f32 {u}, v{x+2}, v{x+3}
v_add_f32 {s}, {s}, v{x+4}
v_add_f32 {u}, {u}, v{x+5}
v_add_f32 {s}, {s}, v{x+6}
v_add_f32 {u}, {u}, v{x+7}
v_add_f32 {s}, {s}, {u}""")
    allreduce(a, s, u)
    a(f"v_mul_f32 {s}, 0x3b000000, {s}")
    for i in range(8): a(f"v_sub_f32 v{x+i}, v{x+i}, {s}")
    a(f"v_mul_f32 {s}, v{x}, v{x}\nv_mul_f32 {u}, v{x+1}, v{x+1}")
    for i in range(2, 8): a(f"v_fmac_f32 {s if i%2==0 else u}, v{x+i}, v{x+i}")
    a(f"v_add_f32 {s}, {s}, {u}")
    allreduce(a, s, u)
    a(f"""v_mov_b32 {u}, 0x3727c5ac
v_fmac_f32 {u}, 0x3b000000, {s}
v_rsq_f32 {u}, {u}""")
    for i in range(8): a(f"v_mul_f32 v{x+i}, v{x+i}, {u}")
    for i in range(4): a(f"v_cvt_pk_bf16_f32 v{o+i}, v{x+2*i}, v{x+2*i+1}")

def load_counters(a, v):
    a(f"""v_and_b32 v{v+1}, 15, v1
v_lshlrev_b32 v{v+1}, 2, v{v+1}
v_add_u32 v{v+1}, {D_TICK*4}, v{v+1}
v_cmp_eq_u32 vcc, {D_TICK*4}, v{v+1}
v_cndmask_b32 v{v+1}, v{v+1}, 0, vcc
buffer_load_dword v{v}, v{v+1}, {DBG}, 0 offen sc1
s_waitcnt vmcnt(0)""".replace("v_cndmask_b32 v%d, v%d, 0, vcc" % (v+1, v+1), "v_cndmask_b32_e64 v%d, v%d, 0, vcc" % (v+1, v+1)))

def total_counters(a, v, sd, st):
    a(f"v_readlane_b32 s{sd}, v{v}, 0")
    for x in range(1, 16):
        a(f"v_readlane_b32 s{st}, v{v}, {x}\ns_nop 0\ns_add_u32 s{sd}, s{sd}, s{st}")

def prologue(a, opt):
    a(f"""s_cmp_ge_u32 s2, 256
s_cbranch_scc1 the_end
s_load_dwordx16 s[64:79], s[0:1], 0
s_load_dwordx8 s[80:87], s[0:1], 64
s_load_dwordx2 s[88:89], s[0:1], 96
s_memrealtime s[90:91]
s_getreg_b32 s30, hwreg(HW_REG_XCC_ID)
s_and_b32 s30, s30, 15
s_mov_b32 {S_BUD}, {BUDGET}
s_mov_b32 {S_G}, 0
s_mov_b32 {S_I}, 0
s_mov_b32 {S_L}, 0
v_lshrrev_b32 v1, 6, v0
v_readfirstlane_b32 {S_W}, v1
v_and_b32 v1, 63, v0""")
    if opt.get('fake_xcc') == 'all9': a("s_mov_b32 s30, 9")
    if opt.get('fake_xcc') == 'some':
        a("""s_and_b32 s31, s2, 0x19
s_cmp_eq_u32 s31, 0x19
s_cselect_b32 s30, 9, s30""")
    mp = opt.get('MAP', [0, 1, 2, 3, 4, 5, 6, 7])
    assert sorted(mp) == list(range(8))
    a(f"""s_lshl_b32 s31, s30, 2
s_lshr_b32 s31, {hex(sum(g << (4*x) for x, g in enumerate(mp)))}, s31
s_and_b32 s31, s31, 7
s_cmp_lt_u32 s30, 8
s_cselect_b32 s30, s31, s30""")
    a("s_waitcnt lgkmcnt(0)")
    srd(a, 8, P_WS, hex(WS_SIZE))
    srd(a, 24, P_DBG, 256)
    a(f"""s_cmp_eq_u32 {S_W}, 0
s_cbranch_scc0 pro_nt
s_lshl_b32 s31, s30, 2
s_add_u32 s31, s31, {D_TICK*4}
s_cmp_eq_u32 s30, 0
s_cselect_b32 s31, {D_TICK0*4}, s31
s_mov_b64 exec, 1
v_mov_b32 v2, s31
v_mov_b32 v3, 1
buffer_atomic_add v3, v2, {DBG}, 0 offen sc0 sc1
s_add_u32 s90, s90, {opt.get('CALD', 300)}
s_or_b32 s90, s90, 3
v_mov_b32 v8, s90
v_mov_b32 v9, 0
s_cmp_lt_u32 s30, 2
s_cbranch_scc0 pro_nc
s_lshl_b32 s31, s30, 2
buffer_atomic_cmpswap v[8:9], off, {DBG}, s31 offset:{D_CAL*4} sc0 sc1
pro_nc:
v_mov_b32 v2, 0
s_waitcnt vmcnt(0)
v_mov_b32 v9, s90
v_cmp_eq_u32 vcc, 0, v8
v_cndmask_b32 v8, v8, v9, vcc
ds_write2_b32 v2, v3, v8 offset1:1
s_mov_b64 exec, -1
pro_nt:
s_waitcnt vmcnt(0) lgkmcnt(0)
s_barrier
v_mov_b32 v2, 0
ds_read2_b32 v[8:9], v2 offset1:1""")
    a(f"""s_waitcnt lgkmcnt(0)
v_readfirstlane_b32 {S_I}, v8
v_readfirstlane_b32 s99, v9
s_barrier
s_mov_b32 {S_G}, s30
s_cmp_lt_u32 s30, 8
s_cselect_b32 s31, 32, 0
s_cmp_lt_u32 {S_I}, s31
s_cbranch_scc1 pro_done
s_sub_u32 s32, {S_I}, s31
pro_ov:""")
    spin_dec(a, 1)
    a("s_sleep 8")
    load_counters(a, 4)
    total_counters(a, 4, 33, 34)
    a("""s_cmp_lt_u32 s33, 256
s_cbranch_scc1 pro_ov""")
    for x in range(15):
        cap = 32 if x < 8 else 0
        a(f"""v_readlane_b32 s34, v4, {x}
s_nop 0
s_max_u32 s34, s34, {cap}
s_sub_u32 s34, s34, {cap}
s_cmp_gt_u32 s30, {x}
s_cselect_b32 s34, s34, 0
s_add_u32 s32, s32, s34""")
    for g in range(8):
        a(f"""v_readlane_b32 s34, v4, {g}
s_nop 0
s_min_u32 s34, s34, 32
s_mov_b32 {S_G}, {g}
s_add_u32 {S_I}, s34, s32
s_cmp_lt_u32 {S_I}, 32
s_cbranch_scc1 pro_done
s_sub_u32 s32, {S_I}, 32""")
    a("s_branch the_end\npro_done:")
    a(f"s_and_b32 {S_I}, {S_I}, 31\ns_and_b32 {S_G}, {S_G}, 7")

def decide_mode(a, slow_label, vt=4):
    L = a.newlabel('dm'); F = a.newlabel('dmf')
    a(f"{L}:")
    load_counters(a, vt)
    a(f"""v_readlane_b32 s34, v{vt}, {S_G}
s_nop 0
s_cmp_ge_u32 s34, 32
s_cbranch_scc1 {F}""")
    total_counters(a, vt, 33, 34)
    a(f"""s_cmp_ge_u32 s33, 256
s_cbranch_scc1 {slow_label}""")
    spin_dec(a, 2)
    a(f"s_sleep 8\ns_branch {L}\n{F}:")

def wait_dbg(a, idx_expr_sgpr_or_const, thr, code, vt=4, sleep=8):
    L = a.newlabel('wd'); D = a.newlabel('wdd')
    a(f"""v_mov_b32 v{vt+1}, {idx_expr_sgpr_or_const}
s_mov_b64 exec, 1
{L}:
buffer_load_dword v{vt}, v{vt+1}, {DBG}, 0 offen sc1
s_waitcnt vmcnt(0)
v_cmp_gt_u32 vcc, {thr}, v{vt}
s_cbranch_vccz {D}""")
    spin_dec(a, code)
    a(f"s_sleep {sleep}\ns_branch {L}\n{D}:\ns_mov_b64 exec, -1")

def stage_tr(a, n, slots, slot_bytes, s_m0base, dma, consume, per=1, hook=None):
    def issue(i):
        for q in range(per):
            a(f"s_add_u32 m0, {s_m0base}, {(i % slots) * slot_bytes + q * 1024}")
            dma(i, q)
    for i in range(min(slots, n)):
        issue(i)
        if hook and i == 1: hook()
    for i in range(n):
        out = min(n, i + slots) - (i + 1) if i == 0 else min(n, i - 1 + slots) - (i + 1)
        a(f"s_waitcnt vmcnt({max(out,0)*per})")
        nrd = consume(i, (i % slots) * slot_bytes)
        if i >= 1 and i - 1 + slots < n:
            a(f"s_waitcnt lgkmcnt({nrd})")
            issue(i - 1 + slots)
    a("s_waitcnt lgkmcnt(0)")

def tr_stamp(a, opt, k):
    if opt.get('trace'): a(f"{'s_memrealtime' if opt.get('rt') else 's_memtime'} s[{90+2*k}:{91+2*k}]")
def tr_flush(a, opt, lane, ks, vb, wait=False):
    if opt.get('trace'):
        if wait: a("s_waitcnt lgkmcnt(0)")
        a(f"s_mov_b32 s100, m0\ns_mov_b32 m0, {lane}")
        for k in ks: a(f"v_writelane_b32 v{vb+k}, s{90+2*k}, m0")
        a("s_mov_b32 m0, s100")
def tr_begin(a, opt):
    if opt.get('trace'):
        a(f"""s_memrealtime s[90:91]
s_memtime s[92:93]
s_lshl_b32 s94, {S_G}, 5
s_add_u32 s94, s94, {S_I}
s_lshl_b32 s94, s94, 2
s_add_u32 s94, s94, {S_W}
s_lshl_b32 s94, s94, 11
s_add_u32 s101, s94, {TRACE}
s_waitcnt lgkmcnt(0)
v_mov_b32 v2, s90
v_mov_b32 v3, s92
v_mov_b32 v4, 0
s_mov_b64 exec, 1
buffer_store_dwordx2 v[2:3], v4, {WS}, s101 offen offset:2040
s_mov_b64 exec, -1
s_waitcnt vmcnt(0)""")
def tr_dump(a, opt, n, vb, vt):
    if opt.get('trace'):
        a(f"v_lshlrev_b32 v{vt}, 2, v1")
        for k in range(n): a(f"buffer_store_dword v{vb+k}, v{vt}, {WS}, s101 offen offset:{256*k}")
        a(f"""s_memrealtime s[90:91]
s_memtime s[92:93]
s_waitcnt lgkmcnt(0) vmcnt(0)
v_mov_b32 v{vb}, s90
v_mov_b32 v{vb+1}, s92
s_mov_b64 exec, 1
buffer_store_dwordx2 v[{vb}:{vb+1}], v{vt}, {WS}, s101 offen offset:2032
s_mov_b64 exec, -1""")


class Cnt:
    def __init__(self, a, name, mx):
        self.a, self.name, self.mx, self.q, self.done = a, name, mx, [], 0
    def issue(self, text, tag=None):
        self.a(text); self.q.append(tag)
    def wait(self, *tags):
        idx = max(max(i for i, t in enumerate(self.q) if t == tag) for tag in tags)
        if idx < self.done: return
        n = len(self.q) - 1 - idx
        self.a(f"s_waitcnt {self.name}({min(n, self.mx)})")
        self.done = idx + 1 if n <= self.mx else len(self.q) - self.mx
    def all(self):
        self.a(f"s_waitcnt {self.name}(0)"); self.done = len(self.q)

def tr_direct(a, opt, seg, n, v1, v2):
    if opt.get('trace'):
        a("s_waitcnt lgkmcnt(0)")
        for k in range(n): a(f"v_writelane_b32 v{v1}, s{90+2*k}, {k}")
        a(f"""v_lshlrev_b32 v{v2}, 8, v1
s_lshl_b32 s100, {seg}, 2
s_add_u32 s100, s100, s101
s_mov_b64 exec, {(1<<n)-1}
buffer_store_dword v{v1}, v{v2}, {WS}, s100 offen
s_mov_b64 exec, -1""")

def layernorm8f(a, x, o, t):
    P2 = lambda r: f"v[{r}:{r+1}]"
    a(f"""v_pk_add_f32 {P2(t)}, {P2(x)}, {P2(x+2)}
v_pk_mul_f32 {P2(t+2)}, {P2(x)}, {P2(x)}
v_pk_add_f32 {P2(t)}, {P2(t)}, {P2(x+4)}
v_pk_fma_f32 {P2(t+2)}, {P2(x+2)}, {P2(x+2)}, {P2(t+2)}
v_pk_add_f32 {P2(t)}, {P2(t)}, {P2(x+6)}
v_pk_fma_f32 {P2(t+2)}, {P2(x+4)}, {P2(x+4)}, {P2(t+2)}
v_add_f32 v{t}, v{t}, v{t+1}
v_pk_fma_f32 {P2(t+2)}, {P2(x+6)}, {P2(x+6)}, {P2(t+2)}
v_add_f32 v{t+2}, v{t+2}, v{t+3}""")
    a(f"""v_permlane32_swap_b32 v{t}, v{t+2}
v_add_f32 v{t}, v{t}, v{t+2}""")
    for r in (8, 4, 2, 1):
        a(f"v_add_f32_dpp v{t}, v{t}, v{t} row_ror:{r} row_mask:0xf bank_mask:0xf")
    a(f"""v_mov_b32 v{t+1}, v{t}
v_permlane16_swap_b32 v{t+1}, v{t}
v_add_f32 v{t+2}, v{t}, v{t+1}
v_add_f32 v{t}, v{t}, v{t+1}
v_mov_b32 v{t+3}, 0x3727c5ac
v_permlane32_swap_b32 v{t}, v{t+2}
v_mul_f32 v{t}, 0x3b000000, v{t}
v_mul_f32 v{t+2}, 0x3b000000, v{t+2}
v_fma_f32 v{t+2}, -v{t}, v{t}, v{t+2}
v_max_f32 v{t+2}, 0, v{t+2}
v_add_f32 v{t+2}, v{t+2}, v{t+3}
v_rsq_f32 v{t+2}, v{t+2}""")
    for i in range(0, 8, 2): a(f"v_pk_add_f32 {P2(x+i)}, {P2(x+i)}, {P2(t)} op_sel_hi:[1,0] neg_lo:[0,1] neg_hi:[0,1]")
    for i in range(0, 8, 2): a(f"v_pk_mul_f32 {P2(x+i)}, {P2(x+i)}, {P2(t+2)} op_sel_hi:[1,0]")
    for i in range(4): a(f"v_cvt_pk_bf16_f32 v{o+i}, v{x+2*i}, v{x+2*i+1}")

def interleave(a, fns):
    L = []
    for f in fns:
        b = Asm(); f(b); L.append(list(b.items))
    while any(L):
        for x in L:
            if x: a.items.append(x.pop(0))

def warm_weights(a, g0):
    srd(a, 40, P_WO, 0x400000)
    a(f"""s_lshl_b32 s33, {S_I}, 2
s_add_u32 s33, s33, {S_W}
s_lshl_b32 s33, s33, 15
v_lshlrev_b32 v60, 7, v1""")
    for k in range(4):
        a(f"buffer_load_dword v61, v60, s[40:43], s33 offen\ns_add_u32 s33, s33, 8192")
```

```python
MB = 1 << 20
FLG      = 0x0000000
F_KV     = FLG + 0x00000
F_Q      = FLG + 0x08000
F_KM     = FLG + 0x0C000
F_LN1    = FLG + 0x14000
F_AOR    = FLG + 0x1C000
F_FFR    = FLG + 0x1E000
F_AOD    = FLG + 0x24000
F_FFD    = FLG + 0x24200
F_SIG    = FLG + 0x24400
F_SIG2   = FLG + 0x20000
F_SIG3   = FLG + 0x22000
F_AOM    = FLG + 0x25000
F_FFM    = FLG + 0x25800
F_AOP    = FLG + 0x25C00
FLG_SIZE = 0x28000
NZERO    = 10
XN       = 1 * MB
XNF      = 5 * MB
XA       = 9 * MB
XF       = 13 * MB
CRING    = 16 * MB
CMEM_OFF = 640 * 1024
CSTR     = 8448
CSLOT    = 0x50000
AORING   = 136 * MB
AOR      = 2
FFRING   = 18 * MB
FFR      = 3
KM       = 24 * MB
QKV      = 40 * MB
TRACE    = 148 * MB
WS_SIZE  = 256 * MB
D_TICK0  = 0
D_TICK   = 32
D_INIT   = 48
D_GINIT  = 49
D_CAL    = 16
D_WLD    = 56
D_CINIT  = 52
D_ERR    = 8
DONE     = -28
```

```python
from common import *
SCL = 0x3e0293ee
SYNC = 0x4000
BIG = 0x40000000

def lds_spin(a, vaddr, vt, nwords, off, thr, code, sleep=1):
    L = a.newlabel('ls'); D = a.newlabel('lsd')
    a(f"{L}:")
    if nwords == 1:
        a(f"ds_read_b32 v{vt}, {vaddr} offset:{off}\ns_waitcnt lgkmcnt(0)")
    else:
        a(f"ds_read2_b32 v[{vt}:{vt+1}], {vaddr} offset0:{off//4} offset1:{off//4+1}\ns_waitcnt lgkmcnt(0)\nv_min_i32 v{vt}, v{vt}, v{vt+1}")
    a(f"v_cmp_gt_i32 vcc, {thr}, v{vt}\ns_cbranch_vccz {D}")
    spin_dec(a, code)
    if sleep: a(f"s_sleep {sleep}")
    a(f"s_branch {L}\n{D}:")

def load_w_perm8(a, srdname, vaddr, s_base, nz, dst, tmp):
    a("s_mov_b32 s58, 0x05040100\ns_mov_b32 s59, 0x07060302")
    NB = 4
    def issue(z):
        sb, off = s_base(z)
        for j in range(8):
            r = tmp + 32 * (z % NB) + 4 * j
            a(f"s_add_u32 s33, {sb}, {off + (8*(j >> 2) + (j & 3)) * 1024}")
            a(f"buffer_load_dwordx4 v[{r}:{r+3}], {vaddr}, {srdname}, s33 offen")
    for z in range(min(NB, nz)): issue(z)
    t = tmp + 32 * NB
    for z in range(nz):
        a(f"s_waitcnt vmcnt({8 * (min(nz, z + NB) - z - 1)})")
        b = tmp + 32 * (z % NB)
        for tau in range(8):
            for i in range(4):
                lo, hi = b + 8*i + (tau >> 1), b + 8*i + 4 + (tau >> 1)
                a(f"v_perm_b32 v{t + (i&1)}, v{hi}, v{lo}, {'s58' if tau % 2 == 0 else 's59'}")
                a(f"v_accvgpr_write_b32 a{dst(tau, z) + i}, v{t + (i&1)}")
        if z + NB < nz: issue(z + NB)

def w_addr(a, v, t):
    a(f"""v_bfe_u32 {v}, v1, 4, 1
v_lshlrev_b32 {v}, 14, {v}
v_lshrrev_b32 {t}, 5, v1
v_lshl_add_u32 {v}, {t}, 12, {v}
v_and_b32 {t}, 15, v1
v_lshl_add_u32 {v}, {t}, 4, {v}""")

def half_epilogue(G, PK, vaddr, s_slot, s_phase, TS, half, SC1):
    L = []
    for r in range(4):
        p = PK + 4 * r
        L += [f"v_cvt_pk_bf16_f32 v{p+i}, v{G+8*i+r}, v{G+8*i+4+r}" for i in range(4)]
        L += [f"v_and_or_b32 v{p}, v{p}, -2, {s_phase}", f"s_add_u32 s33, {s_slot}, {(16*half + r) * TS}",
              f"buffer_store_dwordx4 v[{p}:{p+3}], {vaddr}, {WS}, s33 offen{SC1}"]
    return L

def shadow16(a, L):
    if L and not L[0].startswith('v_'): a(L.pop(0))
    for _ in range(2):
        if L and L[0].startswith('v_'): a(L.pop(0))

def part_addr(a, v, t, TS):
    a(f"""v_lshrrev_b32 {v}, 4, v1
v_mul_u32_u24 {v}, {4*TS}, {v}
v_and_b32 {t}, 15, v1
v_lshl_add_u32 {v}, {t}, 4, {v}""")

def swap4(a, r):
    a(f"v_permlane16_swap_b32 v{r}, v{r+2}\nv_permlane16_swap_b32 v{r+1}, v{r+3}")

def selectors(a, S1, S2, t):
    a(f"""v_bfe_u32 v{t}, v1, 1, 3
v_and_b32 v{t+1}, 1, v1
v_lshlrev_b32 v{t+1}, 4, v{t+1}
v_mov_b32 v{t+2}, 0x3f80
v_lshlrev_b32 v{t+1}, v{t+1}, v{t+2}""")
    for q in range(4):
        a(f"v_cmp_eq_u32 vcc, {q}, v{t}\nv_cndmask_b32 v{S1+q}, 0, v{t+1}, vcc")
        a(f"v_cmp_eq_u32 vcc, {q+4}, v{t}\nv_cndmask_b32 v{S2+q}, 0, v{t+1}, vcc")

def reduce_loads(a, NQ, vaddrs, s_base, D, groups=(0, 1, 2, 3)):
    for q in range(NQ):
        if q: a(f"s_add_u32 s33, {s_base}, {4096*q}")
        for gi, G in enumerate(groups):
            r = D + 4 * (len(groups)*q + gi)
            a(f"buffer_load_dwordx4 v[{r}:{r+3}], {vaddrs[q]}, {WS}, {'s33' if q else s_base} offen offset:{256*G} sc1")

def reduce_sum(a, NQ, D, S1, S2, R, vt, s_phase, after, lastmask=None, groups=(0, 1, 2, 3), cin=None, mid=None):
    n = len(groups) * NQ
    started = set()
    for i in range(n):
        q, G = i // len(groups), groups[i % len(groups)]
        r = D + 4 * i
        a(f"s_waitcnt vmcnt({n - 1 - i + after})")
        acc = R + 4 * (G & 1)
        first = acc not in started
        started.add(acc)
        S = S1 if G < 2 else S2
        c0 = '0' if cin is None else f'v[{cin + 4*(G&1)}:{cin + 4*(G&1) + 3}]'
        a(f"v_mfma_f32_16x16x32_bf16 v[{acc}:{acc+3}], v[{S}:{S+3}], v[{r}:{r+3}], {c0 if first else f'v[{acc}:{acc+3}]'}")
        if mid and i == 0: mid()
        tv = vt + 1 if (lastmask and q == NQ - 1) else vt
        if i == 0 or (lastmask and i == n - 4): a(f"v_xor_b32 v{tv}, {s_phase}, v{r}")
        else: a(f"v_bitop3_b32 v{tv}, v{tv}, {s_phase}, v{r} bitop3:0xf6")
    if lastmask: a(f"v_and_or_b32 v{vt}, v{vt+1}, {lastmask}, v{vt}")
    a(f"v_and_b32 v{vt}, 1, v{vt}\nv_cmp_ne_u32 vcc, 0, v{vt}")

def add_resid(a, R, X, O):
    for i in range(4):
        a(f"""v_lshlrev_b32 v{O}, 16, v{X+i}
v_and_b32 v{O+1}, 0xffff0000, v{X+i}
v_add_f32 v{R+2*i}, v{R+2*i}, v{O}
v_add_f32 v{R+2*i+1}, v{R+2*i+1}, v{O+1}""")
    for i in range(4): a(f"v_cvt_pk_bf16_f32 v{O+i}, v{R+2*i}, v{R+2*i+1}")

def add_resid2(a, R, U, O):
    for i in range(0, 8, 2): a(f"v_pk_add_f32 v[{R+i}:{R+i+1}], v[{R+i}:{R+i+1}], v[{U+i}:{U+i+1}]")
    for i in range(4): a(f"v_cvt_pk_bf16_f32 v{O+i}, v{R+2*i}, v{R+2*i+1}")

def unpack8(a, R, O):
    for i in range(4): a(f"v_lshlrev_b32 v{R+2*i}, 16, v{O+i}\nv_and_b32 v{R+2*i+1}, 0xffff0000, v{O+i}")

def flag_store(a, val, vt, vz, soff):
    a(f"""v_mov_b32 v{vt}, {val}
s_mov_b64 exec, 1
buffer_store_dword v{vt}, {vz}, {WS}, {soff} offen sc1
s_mov_b64 exec, -1""")

def done_store(a, val, vt, vz, soff, smode, ex):
    L = a.newlabel('dn'); E = a.newlabel('dne')
    a(f"""v_mov_b32 v{vt}, {val}
s_mov_b64 exec, {ex}
s_cmp_eq_u32 {smode}, 0
s_cbranch_scc0 {L}
buffer_store_dword v{vt}, {vz}, {WS}, {soff} offen
s_branch {E}
{L}:
buffer_store_dword v{vt}, {vz}, {WS}, {soff} offen sc1
{E}:
s_mov_b64 exec, -1""")

def phase_slot(a, s_seg, s_phase, s_slot, s_ring, shift):
    a(f"""s_lshr_b32 {s_phase}, {s_seg}, 1
s_and_b32 {s_phase}, {s_phase}, 1
s_xor_b32 {s_phase}, {s_phase}, 1
s_and_b32 {s_slot}, {s_seg}, 1
s_lshl_b32 {s_slot}, {s_slot}, {shift}
s_add_u32 {s_slot}, {s_slot}, {s_ring}""")

def ring_next(a, s_idx, s_phase, s_slot, s_ring, shift, R):
    a(f"""s_add_u32 {s_idx}, {s_idx}, 1
s_cmp_eq_u32 {s_idx}, {R}
s_cselect_b32 {s_idx}, 0, {s_idx}
s_cselect_b32 {s_slot}, 1, 0
s_xor_b32 {s_phase}, {s_phase}, {s_slot}
s_lshl_b32 {s_slot}, {s_idx}, {shift}
s_add_u32 {s_slot}, {s_slot}, {s_ring}""")

def role_ao(a, opt):
    AOR = opt.get('AOR', globals()['AOR'])
    if 'ao_layers' in opt:
        for l in (0, 1):
            if l not in opt['ao_layers']: a(f"s_cmp_eq_u32 {S_L}, {l}\ns_cbranch_scc1 the_end")
    a(f"""v_lshlrev_b32 v2, 2, v1
v_add_u32 v2, {SYNC}, v2
v_mov_b32 v3, 0
ds_write_b32 v2, v3
s_waitcnt lgkmcnt(0)
s_barrier
v_mov_b32 v2, {SYNC}
v_lshlrev_b32 v3, 4, v1
s_mov_b32 s20, 0
s_mov_b32 s44, {AOR-1}
s_mov_b32 s22, 0
s_cmp_eq_u32 {S_W}, 0
s_cbranch_scc1 ao_A
s_cmp_eq_u32 {S_W}, 3
s_cbranch_scc1 ao_R""")
    def wait_init(code):
        if not opt.get('noinit'):
            a(f"s_lshl_b32 s33, {S_L}, 2\ns_add_u32 s33, s33, {D_GINIT*4}")
            wait_dbg(a, 's33', 32, code, vt=4)
    OHO = AOR * MB // 2
    srd(a, 12, P_WO, 0x400000)
    a(f"""s_sub_u32 s36, {S_W}, 1
s_and_b32 s33, {S_I}, 1
s_lshl_b32 s33, s33, 1
s_add_u32 s45, s33, s36
s_lshl_b32 s33, s45, 8
s_lshl_b32 s37, {S_I}, 17
s_add_u32 s37, s37, s33
s_xor_b32 s46, s37, 0x20000
""")
    w_addr(a, 'v4', 'v5')
    load_w_perm8(a, 's[12:15]', 'v4', lambda z: ('s37' if z < 4 else 's46', (z & 3) * 32768), 8, lambda tau, z: (tau*8 + z) * 4, 16)
    wait_init(20)
    part_addr(a, 'v6', 'v7', 16384)
    a(f"""s_lshl_b32 s38, {S_L}, 22
s_add_u32 s38, s38, {AORING}
s_xor_b32 s33, {S_I}, 1
s_lshl_b32 s33, s33, 13
s_add_u32 s47, s38, s33
s_add_u32 s47, s47, {OHO}
s_lshr_b32 s33, {S_I}, 1
s_lshl_b32 s33, s33, 10
s_add_u32 s38, s38, s33
s_lshl_b32 s33, s45, 8
s_add_u32 s38, s38, s33
s_lshl_b32 s33, s36, 2
v_add_u32 v7, s33, v2
s_lshl_b32 s33, {S_L}, 7
s_add_u32 s39, s33, {F_AOD}
s_lshl_b32 s33, {S_L}, 9
s_lshl_b32 s34, s36, 7
s_add_u32 s33, s33, s34
s_lshl_b32 s34, {S_I}, 2
s_add_u32 s33, s33, s34
s_add_u32 s41, s33, {F_AOM}
s_lshl_b32 s33, {S_L}, 8
s_lshl_b32 s34, {S_I}, 3
s_add_u32 s33, s33, s34
s_lshl_b32 s34, s36, 2
s_add_u32 s33, s33, s34
s_add_u32 s42, s33, {F_AOP}
v_and_b32 v12, 31, v1
v_lshlrev_b32 v12, 2, v12""")
    a("""v_bfe_u32 v8, v1, 4, 1
v_lshlrev_b32 v8, 10, v8
v_lshrrev_b32 v11, 5, v1
v_lshl_add_u32 v8, v11, 9, v8
v_and_b32 v11, 15, v1
v_lshl_add_u32 v8, v11, 4, v8
v_mov_b32 v15, v8""")
    decide_mode(a, 'aows_top')
    OFR, PK, GS, PFR = 16, 48, (80, 112), 144
    for P, SC1 in (('aowf', ''), ('aows', ' sc1')):
        def pld(f): return f"buffer_load_dwordx4 v[{PFR+4*f}:{PFR+4*f+3}], v15, {WS}, {'s49' if (f&3) < 2 else 's50'} offen offset:{2048*(f&1) + 256*(f>>2)} sc1"
        def pchk():
            return [f"v_xor_b32 v14, s48, v{PFR}"] + [f"v_bitop3_b32 v14, v14, s48, v{PFR+4*z} bitop3:0xf6" for z in range(1, 8)] + \
                   ["v_and_b32 v14, 1, v14", "v_cmp_ne_u32 vcc, 0, v14"]
        a(f"{P}_top:\ns_add_u32 s21, s20, 1")
        lds_spin(a, 'v2', 10, 1, 0, 's21', 21)
        tr_stamp(a, opt, 0)
        for f in range(8): a(f"ds_read_b128 v[{OFR+4*f}:{OFR+4*f+3}], v8 offset:{2048*(f&3) + 256*(f>>2)}")
        a(f"""s_lshr_b32 s48, s20, 1
s_and_b32 s48, s48, 1
s_xor_b32 s48, s48, 1
s_and_b32 s49, s20, 1
s_lshl_b32 s49, s49, 18
s_add_u32 s49, s49, s47
s_add_u32 s50, s49, 4096
v_mov_b32 v9, s21
v_xor_b32 v8, 0x2000, v8""")
        ring_next(a, 's44', 's22', 's23', 's38', 19, AOR)
        side = []
        n_ = 0
        PL = opt.get('APL', 12)
        for own, half in ((1, 0), (1, 1), (0, 0), (0, 1)):
            for T in range(4):
                f = 4*half + T
                if own: a(f"s_waitcnt lgkmcnt({7-f})")
                fr = (OFR if own else PFR) + 4*f
                z = T if own else 4 + T
                for tau in range(8):
                    b = (tau*8 + z) * 4
                    A = GS[half] + 4*tau
                    a(f"v_mfma_f32_16x16x32_bf16 v[{A}:{A+3}], v[{fr}:{fr+3}], a[{b}:{b+3}], {'0' if z==0 else f'v[{A}:{A+3}]'}")
                    if PL <= n_ < PL + 16 and n_ % 2 == 0: a(pld((n_ - PL)//2))
                    if n_ == 41: a(f"buffer_load_dword v13, v12, {WS}, s39 offen sc1")
                    if n_ == 43: a(f"s_sub_u32 s40, s20, {AOR-1}")
                    if n_ == 56: a("ds_write_b32 v7, v9 offset:4")
                    if n_ == 57: tr_stamp(a, opt, 3); side = ["s_waitcnt vmcnt(1)"] + pchk()
                    if n_ == 63: a(f"s_cbranch_vccnz {P}_pr\n{P}_pok:"); tr_stamp(a, opt, 4)
                    if n_ == 66: a(f"s_mov_b64 exec, 1\nbuffer_store_dword v9, off, {WS}, s42{SC1}\ns_mov_b64 exec, -1")
                    if n_ == 92: side = ["s_waitcnt vmcnt(1)", "v_cmp_gt_i32 vcc, s40, v13"]
                    if n_ == 95: a(f"s_cbranch_vccnz {P}_rw\n{P}_rok:")
                    if n_ == 97: side = half_epilogue(GS[0], PK, 'v6', 's23', 's22', 16384, 0, SC1)
                    shadow16(a, side)
                    n_ += 1
        assert not side
        tr_stamp(a, opt, 1)
        for x in half_epilogue(GS[1], PK + 16, 'v6', 's23', 's22', 16384, 1, SC1): a(x)
        a(f"s_mov_b64 exec, 1\nbuffer_store_dword v9, off, {WS}, s41{SC1}\ns_mov_b64 exec, -1")
        tr_stamp(a, opt, 2)
        tr_flush(a, opt, 's20', range(5), 240, wait=True)
        a(f"s_mov_b32 s20, s21\ns_cmp_lt_u32 s20, 64\ns_cbranch_scc1 {P}_top")
        tr_dump(a, opt, 5, 240, 10)
        a(f"s_branch the_end\n{P}_rw:")
        spin_dec(a, 29)
        a(f"""buffer_load_dword v13, v12, {WS}, s39 offen sc1
s_waitcnt vmcnt(0)
v_cmp_gt_i32 vcc, s40, v13
s_cbranch_vccnz {P}_rw
s_branch {P}_rok
{P}_pr:""")
        spin_dec(a, 19)
        for z in range(8): a(pld(z))
        a("s_waitcnt vmcnt(0)")
        for x in pchk(): a(x)
        a(f"s_cbranch_vccnz {P}_pr\ns_branch {P}_pok")
    S1, S2, R, X, O, D = 16, 20, 24, 32, 36, 64
    a("ao_R:")
    a(f"""s_cmp_eq_u32 {S_L}, 0
s_cselect_b32 s12, s{P_X}, s{P_WS}
s_cselect_b32 s13, s{P_X+1}, s{P_WS+1}
s_mov_b32 s14, {hex(WS_SIZE)}
s_cselect_b32 s14, {hex(2*MB)}, s14
s_mov_b32 s15, 0x20000
s_cselect_b32 s36, 0, {XF}
s_lshl_b32 s33, {S_I}, 10
s_add_u32 s36, s36, s33
s_lshl_b32 s34, {S_L}, 21
s_add_u32 s37, s34, s33
s_add_u32 s37, s37, {XA}
s_lshl_b32 s33, {S_I}, 14
s_lshl_b32 s34, {S_L}, 22
s_add_u32 s38, s34, s33
s_add_u32 s38, s38, {AORING}
s_lshl_b32 s33, {S_L}, 7
s_lshl_b32 s34, {S_I}, 2
s_add_u32 s33, s33, s34
s_add_u32 s40, s33, {F_AOD}
s_lshl_b32 s33, s33, 5
s_add_u32 s39, s33, {F_AOR}
s_lshl_b32 s33, {S_L}, 9
s_add_u32 s42, s33, {F_AOM}
v_lshrrev_b32 v6, 4, v1
v_lshlrev_b32 v6, 10, v6
v_and_b32 v7, 15, v1
v_lshl_add_u32 v6, v7, 4, v6
v_lshlrev_b32 v7, 3, v1
v_mov_b32 v8, 0""")
    selectors(a, S1, S2, 10)
    wait_init(22)
    a("s_mov_b32 s41, 1")
    decide_mode(a, 'aor_top')
    a("s_mov_b32 s41, 0\nv_lshlrev_b32 v5, 9, v1") if False else a("s_mov_b32 s41, 0")
    U = 48
    resid = lambda: a(f"buffer_load_dwordx4 v[{X}:{X+3}], v3, s[12:15], s36 offen sc1")
    pub = lambda: a(f"""s_mov_b64 exec, 1
buffer_store_dword v11, v8, {WS}, s39 offen sc1
s_mov_b64 exec, -1""")
    a(f"""aor_top:
v_lshlrev_b32 v5, 2, v1
v_mov_b32 v4, 0
s_mov_b32 s21, 1""")
    lds_spin(a, 'v2', 10, 1, 0, 's21', 23, sleep=4)
    resid()
    a(f"""s_waitcnt vmcnt(0)
aor_loop:
s_add_u32 s21, s20, 1
v_mov_b32 v11, s20
v_cmp_gt_u32 vcc, s21, v4""")
    swap4(a, X)
    unpack8(a, U, X)
    ring_next(a, 's44', 's22', 's23', 's38', 19, AOR)
    a(f"""s_cmp_lt_u32 s20, 63
s_cselect_b32 s33, 32768, 0
s_add_u32 s36, s36, s33
s_cbranch_vccz aor_go
buffer_load_dword v4, v5, {WS}, s42 offen sc1
s_waitcnt vmcnt(0)
v_cmp_gt_u32 vcc, s21, v4""")
    pub()
    tr_stamp(a, opt, 3)
    a("s_cbranch_vccz aor_go")
    a(f"""aor_p:
buffer_load_dword v4, v5, {WS}, s42 offen sc1""")
    spin_dec(a, 24)
    a(f"""s_waitcnt vmcnt(0)
v_cmp_gt_u32 vcc, s21, v4
s_cbranch_vccnz aor_p
aor_go:""")
    tr_stamp(a, opt, 0)
    reduce_loads(a, 4, ['v6']*4, 's23', D)
    resid()
    a(f"s_waitcnt vmcnt(16)")
    pub()
    reduce_sum(a, 4, D, S1, S2, R, 10, 's22', 2, cin=U)
    a("s_cbranch_vccnz aor_p")
    tr_stamp(a, opt, 1)
    done_store(a, 's21', 9, 'v8', 's40', 's41', 1)
    for i in range(4): a(f"v_cvt_pk_bf16_f32 v{O+i}, v{R+2*i}, v{R+2*i+1}")
    swap4(a, O)
    unpack8(a, R, O)
    layernorm8f(a, R, O+4, 12)
    a(f"""s_sub_u32 s33, s37, {XA - XNF}
buffer_load_dword v4, v5, {WS}, s42 offen sc1
buffer_store_dwordx4 v[{O+4}:{O+7}], v3, {WS}, s33 offen sc1
buffer_store_dwordx4 v[{O}:{O+3}], v3, {WS}, s37 offen sc1
s_add_u32 s37, s37, 32768""")
    tr_stamp(a, opt, 2)
    tr_flush(a, opt, 's20', range(4), 240, wait=True)
    a(f"""s_mov_b32 s20, s21
s_waitcnt vmcnt(2)
s_cmp_lt_u32 s20, 64
s_cbranch_scc1 aor_loop
v_mov_b32 v11, s20
s_waitcnt vmcnt(0)""")
    pub()
    tr_dump(a, opt, 4, 240, 10)
    a("s_branch the_end")
    FA, FT, FD, KMA, VMA, OW = 4, 5, 6, 7, 8, 9
    BI, S, SM, PF, PM, KMF, VMF, OA, OP = 16, 32, 48, 52, 60, 64, 96, 112, 176
    a("ao_A:")
    wait_init(18)
    a("s_mov_b32 s46, 1")
    decide_mode(a, 'aoa_m')
    a(f"""s_mov_b32 s46, 0
aoa_m:
s_lshl_b32 s47, {S_L}, 22
s_lshl_b32 s33, {S_I}, 13
s_add_u32 s47, s47, s33
s_add_u32 s47, s47, {AORING + OHO}
s_lshl_b32 s33, {S_L}, 5
s_add_u32 s33, s33, {S_I}
s_lshl_b32 s33, s33, 9
s_add_u32 s40, s33, {F_KM}
s_add_u32 s41, s33, {F_KV}
s_lshl_b32 s33, {S_L}, 4
s_lshr_b32 s34, {S_I}, 1
s_add_u32 s33, s33, s34
s_lshl_b32 s33, s33, 9
s_add_u32 s42, s33, {F_Q}
s_lshl_b32 s33, {S_L}, 7
s_add_u32 s43, s33, {F_AOD - 128}
v_mov_b32 v{FA}, s42
v_mov_b32 v{FD}, -100
v_mov_b32 v10, s42
v_mov_b32 v11, -100
v_cmp_gt_u32 vcc, 32, v1
v_cndmask_b32 v{FA}, v{FA}, v10, vcc
v_cndmask_b32 v{FD}, v{FD}, v11, vcc
v_cmp_gt_u32 vcc, 12, v1
v_cndmask_b32_e64 v{FD}, v{FD}, 2, vcc
v_mov_b32 v10, s41
v_cmp_gt_u32 vcc, 8, v1
v_cndmask_b32 v{FA}, v{FA}, v10, vcc
v_mov_b32 v10, s40
v_cmp_gt_u32 vcc, 4, v1
v_cndmask_b32 v{FA}, v{FA}, v10, vcc
v_cndmask_b32_e64 v{FD}, v{FD}, 1, vcc
v_and_b32 v10, 3, v1
v_lshlrev_b32 v10, 7, v10
v_add_u32 v{FA}, v10, v{FA}
s_lshl_b32 s33, {S_L}, 8
s_xor_b32 s34, {S_I}, 1
s_lshl_b32 s34, s34, 3
s_add_u32 s33, s33, s34
s_add_u32 s33, s33, {F_AOP - 48}
v_lshl_add_u32 v10, v1, 2, s33
v_cmp_lt_u32 vcc, 11, v1
v_cndmask_b32 v{FA}, v{FA}, v10, vcc
v_bfe_u32 v10, v1, 3, 1
v_lshlrev_b32 v10, 2, v10
v_and_b32 v11, 3, v1
v_add_u32 v10, v10, v11
v_lshlrev_b32 v10, 5, v10
v_lshrrev_b32 v11, 5, v1
v_lshl_add_u32 v{KMA}, v11, 4, v10
v_bfe_u32 v10, v1, 2, 1
v_bfe_u32 v11, v1, 4, 1
v_xor_b32 v10, v10, v11
v_lshl_add_u32 v{KMA}, v10, 30, v{KMA}
v_lshrrev_b32 v11, 5, v1
v_lshlrev_b32 v{VMA}, 3, v1
v_mov_b32 v{OW}, v3
v_lshlrev_b32 v11, 2, v11
v_and_b32 v10, 31, v1
v_sub_u32 v10, v10, v11
v_mov_b32 v11, 0xf149f2ca""")
    for r in range(16):
        a(f"v_cmp_gt_i32 vcc, {8*(r>>2) + (r&3)}, v10\nv_cndmask_b32 v{BI+r}, 0, v11, vcc")
    a(f"""s_mul_i32 s33, {S_L}, {48*MB}
s_mul_i32 s34, {S_I}, 24576
s_add_u32 s33, s33, s34
s_add_u32 s36, s33, {QKV}
s_lshl_b32 s33, {S_L}, 23
s_lshl_b32 s34, {S_I}, 12
s_add_u32 s33, s33, s34
s_add_u32 s37, s33, {KM}
s_mov_b32 s38, {SCL}
s_mov_b32 s39, {SCL}""")
    def poll(seg, code):
        L = a.newlabel('ap'); Dn = a.newlabel('apd')
        if seg is not None: a(f"v_add_u32 v{FT}, {seg}, v{FD}\nv_min_i32 v{FT}, 64, v{FT}")
        a(f"""s_mov_b64 exec, 0xfff
{L}:
buffer_load_dword v10, v{FA}, {WS}, 0 offen sc1
s_waitcnt vmcnt(0)
v_cmp_gt_i32 vcc, v{FT}, v10
s_cbranch_vccz {Dn}
s_mov_b64 exec, vcc""")
        spin_dec(a, code)
        a(f"s_sleep 1\ns_branch {L}\n{Dn}:\ns_mov_b64 exec, -1")
    def qkv_list(base):
        L = []
        for f in range(24):
            L.append((f"s_add_u32 s34, s36, {1024*f}\n" if f % 4 == 0 else "") + f"buffer_load_dwordx4 a[{base+4*f}:{base+4*f+3}], v3, {WS}, s34 offen offset:{1024*(f%4)} {opt.get('AFL', 'sc1')}")
        if not opt.get('ABL_HIT'): L[-1] += f"\ns_add_u32 s36, s36, {32*24576}"
        return L
    def qkv_loads(base):
        for x in qkv_list(base): a(x)
    poll(-1, 26)
    qkv_loads(0)
    NAFT = 6
    a(f"v_mov_b32 v15, 0\nv_mov_b32 v{OW}, 0\ns_mov_b32 s52, 0\ns_waitcnt vmcnt(0)\naoa_top:")
    for half in range(2):
        Xb, Yb = 96*half, 96*(1-half)
        q = lambda z: f"a[{Xb+4*z}:{Xb+4*z+3}]"
        k = lambda z: f"a[{Xb+32+4*z}:{Xb+32+4*z+3}]"
        v = lambda z: f"a[{Xb+64+4*z}:{Xb+64+4*z+3}]"
        m, t = 12, 13
        sx = lambda z: a(f"v_mfma_f32_32x32x16_bf16 v[{S}:{S+15}], {k(z)}, {q(z)}, v[{BI if z==0 else S}:{(BI if z==0 else S)+15}]")
        KMF, VMF = (64, 96) if half == 0 else (208, 104)
        KMN, VMN = (64, 96) if half == 1 else (208, 104)
        def kmlist(K_, V_, sb):
            return [f"buffer_load_dwordx4 v[{K_+4*z}:{K_+4*z+3}], v{KMA}, {WS}, {sb} offen offset:{256*z} sc1" for z in range(8)] + \
                   [f"buffer_load_dwordx2 v[{V_+2*T}:{V_+2*T+1}], v{VMA}, {WS}, {sb} offen offset:{2048+512*T} sc1" for T in range(4)]
        def kml():
            for x in kmlist(KMF, VMF, 's37'): a(x)
        FLD = lambda r: f"s_mov_b64 exec, 0x3fff\nbuffer_load_dword v{r}, v{FA}, {WS}, 0 offen sc1\ns_mov_b64 exec, -1"
        NE = 9
        pf = [FLD(OW)] + qkv_list(Yb)
        a(f"""s_cmp_eq_u32 s20, 63
s_cselect_b32 s33, {32*24576}, 0
s_sub_u32 s36, s36, s33
v_add_u32 v{FT}, s20, v{FD}
v_min_i32 v{FT}, 64, v{FT}
s_waitcnt vmcnt({NAFT + 8})
v_cmp_gt_i32 vcc, v{FT}, v15
s_cmp_eq_u32 s52, 1
s_cbranch_scc1 aoa_p{half}
s_cbranch_vccz aoa_k{half}""")
        for z in range(8): sx(z)
        poll(None, 27)
        tr_stamp(a, opt, 0)
        kml()
        for x in pf[:NE]: a(x); a("s_nop 11")
        a(f"s_branch aoa_j{half}\naoa_k{half}:")
        kml()
        a(f"aoa_p{half}:")
        tr_stamp(a, opt, 0)
        a(pf[0])
        for z in range(8): sx(z); a(pf[z+1])
        a(f"""aoa_j{half}:
s_add_u32 s37, s37, {32*4096}
s_add_u32 s33, s20, 1
v_add_u32 v{FT}, s33, v{FD}
v_min_i32 v{FT}, 64, v{FT}""")
        pf = pf[NE:]
        pf.insert(len(pf) - NAFT, FLD(15))
        kn = kmlist(KMN, VMN, 's53')
        a(f"v_max3_f32 v{m}, v{S}, v{S+1}, v{S+2}\nv_max3_f32 v{t}, v{S+3}, v{S+4}, v{S+5}")
        for i in range(6, 16, 4):
            a(f"v_max3_f32 v{m}, v{m}, v{S+i}, v{S+i+1}")
            if i + 2 < 16: a(f"v_max3_f32 v{t}, v{t}, v{S+i+2}, v{S+i+3}")
        for z in range(8):
            a(f"s_waitcnt vmcnt({7 - z + 4 + NE})")
            a(f"v_mfma_f32_16x16x32_bf16 v[{SM}:{SM+3}], v[{KMF+4*z}:{KMF+4*z+3}], {q(z)}, {'0' if z==0 else f'v[{SM}:{SM+3}]'}")
        a(f"s_waitcnt vmcnt({NE})")
        tr_stamp(a, opt, 1)
        a(pf.pop(0)); a(pf.pop(0))
        for T in range(4): a(f"v_permlane16_swap_b32 v{VMF+2*T}, v{VMF+2*T+1}")
        a(f"""v_max3_f32 v{m}, v{m}, v{SM}, v{SM+1}
v_max3_f32 v{t}, v{t}, v{SM+2}, v{SM+3}
v_max_f32 v{m+2}, v{m}, v{t}
v_max_f32 v{m}, v{m}, v{t}""")
        a(pf.pop(0))
        a(f"""v_permlane32_swap_b32 v{m+2}, v{m}
v_max_f32 v{m}, v{m}, v{m+2}
v_mul_f32 v{m}, s38, v{m}""")
        for i in range(0, 20, 2): a(f"v_pk_fma_f32 v[{S+i}:{S+i+1}], v[{S+i}:{S+i+1}], s[38:39], v[{m}:{m+1}] op_sel_hi:[1,0,0] neg_lo:[0,0,1] neg_hi:[0,0,1]")
        for i in range(20):
            a(f"v_exp_f32 v{S+i}, v{S+i}")
            if i % 6 == 0: a(pf.pop(0))
        a(f"s_waitcnt vmcnt({NE - 1 + 7})\nv_cmp_gt_i32 vcc, v{FT}, v{OW}")
        for i in range(10): a(f"v_cvt_pk_bf16_f32 v{PF+i}, v{S+2*i}, v{S+2*i+1}")
        a(f"s_cmp_eq_u64 vcc, 0\ns_cselect_b32 s52, 1, 0\ns_cselect_b32 s53, s37, 0x40000000")
        pf = kn + pf
        fill = []
        for i in range(2, 20): fill.append(f"v_add_f32 v{S+(i&1)}, v{S+(i&1)}, v{S+i}")
        fill += [f"v_add_f32 v{S+2}, v{S}, v{S+1}", f"v_add_f32 v{S}, v{S}, v{S+1}", None, f"v_permlane32_swap_b32 v{S+2}, v{S}",
                 f"v_add_f32 v{S}, v{S}, v{S+2}", f"v_rcp_f32 v{S}, v{S}"]
        def fin(T, pk):
            L = []
            for i in range(8):
                r = OA + 16*T + 2*i
                if pk: L += [f"v_pk_mul_f32 v[{r}:{r+1}], v[{r}:{r+1}], v[{S}:{S+1}] op_sel_hi:[1,0]"]
                else: L += [f"v_mul_f32 v{r}, v{r}, v{S}", f"v_mul_f32 v{r+1}, v{r+1}, v{S}"]
                L += [f"v_cvt_pk_bf16_f32 v{OP+8*T+i}, v{r}, v{r+1}"]
            return L
        fill += fin(0, 0) + fin(1, 0)
        for T in range(4):
            A = OA + 16*T
            ms = [f"v_mfma_f32_32x32x16_bf16 v[{A}:{A+15}], {v(2*T)}, v[{PF}:{PF+3}], 0",
                  f"v_mfma_f32_32x32x16_bf16 v[{A}:{A+15}], {v(2*T+1)}, v[{PF+4}:{PF+7}], v[{A}:{A+15}]",
                  f"v_mfma_f32_32x32x8_bf16 v[{A}:{A+15}], v[{VMF+2*T}:{VMF+2*T+1}], v[{PM}:{PM+1}], v[{A}:{A+15}]"]
            for j, x in enumerate(ms):
                a(x)
                a(pf.pop(0))
                for _ in range(6):
                    if fill:
                        y = fill.pop(0)
                        if y is None: break
                        a(y)
        fill += fin(2, 1) + fin(3, 1)
        for n_, x in enumerate(fill):
            a(x)
            if n_ % 4 == 3 and pf: a(pf.pop(0))
        for x in pf: a(x)
        a("s_sub_u32 s21, s20, 1")
        lds_spin(a, 'v2', 10, 2, 4, 's21', 28)
        a(f"s_mov_b64 exec, 0x3000\nv_cmp_gt_i32 vcc, s21, v{OW}\ns_mov_b64 exec, -1\ns_mov_b32 s51, s21")
        for z in range(8): a(f"ds_write_b128 v3, v[{OP+4*z}:{OP+4*z+3}] offset:{8192*half + 1024*z}")
        a(f"""s_add_u32 s21, s20, 1
v_mov_b32 v10, s21
s_lshr_b32 s48, s20, 1
s_and_b32 s48, s48, 1
s_xor_b32 s48, s48, 1
s_add_u32 s49, s47, {half*MB//4}
s_add_u32 s50, s49, 4096
s_waitcnt lgkmcnt(0)
ds_write_b32 v2, v10""")
        tr_stamp(a, opt, 2)
        for z in range(8): a(f"v_and_or_b32 v{OP+4*z}, v{OP+4*z}, -2, s48")
        a(f"s_cbranch_vccnz aoa_w{half}\naoa_o{half}:\ns_cmp_eq_u32 s46, 0\ns_cbranch_scc0 aoa_s{half}")
        for md in ('', ' sc1'):
            if md: a(f"s_branch aoa_e{half}\naoa_s{half}:")
            for z in range(8): a(f"buffer_store_dwordx4 v[{OP+4*z}:{OP+4*z+3}], v3, {WS}, {'s49' if z < 4 else 's50'} offen offset:{1024*(z&3)}{md}")
        a(f"aoa_e{half}:")
        tr_flush(a, opt, 's20', range(3), 240, wait=True)
        a("s_mov_b32 s20, s21")
    a("s_cmp_lt_u32 s20, 64\ns_cbranch_scc1 aoa_top")
    tr_dump(a, opt, 3, 240, 10)
    a("s_waitcnt lgkmcnt(0)\ns_branch the_end")
    for half in range(2):
        a(f"aoa_w{half}:")
        spin_dec(a, 17)
        a(f"""s_mov_b64 exec, 0x3000
buffer_load_dword v10, v{FA}, {WS}, 0 offen sc1
s_waitcnt vmcnt(0)
v_cmp_gt_i32 vcc, s51, v10
s_mov_b64 exec, -1
s_cbranch_vccnz aoa_w{half}
s_branch aoa_o{half}""")
```

```python
from common import *

MEMB, KB, VB, QX, KX, OX = 0x20000, 0x22000, 0x24000, 0x26000, 0x26A00, 0x20000
QROW = 288
JUNK = 0x27800
ORD, TAGM, IDX, L16, SEL, WK, HI, M0A, ST, PUB, QW, QR, QRM, OW, KG, VG, KMS, VMS, PD, FV = \
    0, 1, 2, 3, 4, 8, 9, 10, 14, 15, 16, 17, 18, 19, 20, 21, 22, 23, 24, 25
T0 = 26
MEMF = 28
RING = 60
NRING = 5
ACC = 100
VAC = 116
XT = 124
SC = 0x3e0293ee
K_LDS = [0, 1, 3, 4, 5]
K_REG = [2, 6, 7]
O_LDS = [(1, 1), (2, 1), (3, 1)]
O_REG = [(0, 0), (1, 0), (2, 0), (3, 0), (0, 1)]
def areg_k(s, t): return 128 + (K_REG.index(s)*2 + t)*8
def areg_o(phi, kp, y): return 128 + 48 + (O_REG.index((phi, kp))*2 + y)*8

def cst(a, opt, k):
    pos = opt.get('cpos', [0, 1, 2, 3, 4, 5, 6])
    if opt.get('trace') and k in pos:
        i = pos.index(k); a(f"{'s_memrealtime' if opt.get('rt') else 's_memtime'} s[{64+2*i}:{65+2*i}]")
def cflush(a, opt):
    if opt.get('trace'):
        a("s_waitcnt lgkmcnt(0)")
        for k in range(7): a(f"v_writelane_b32 v{MEMF+30}, s{64+2*k}, {k}")
        a(f"""v_lshlrev_b32 v{MEMF+31}, 4, v{L16}
s_lshl_b32 s33, s20, 2
s_max_u32 s33, s33, 4
s_add_u32 s33, s33, s101
s_sub_u32 s33, s33, 4
s_mov_b64 exec, 0x7f
buffer_store_dword v{MEMF+30}, v{MEMF+31}, {WS}, s33 offen
s_mov_b64 exec, -1""")

def role_chain(a, opt):
    D1 = None; D2 = opt.get('D2', 260)
    a("role_chain:")
    if 'chain_layers' in opt:
        for l in (0, 1):
            if l not in opt['chain_layers']: a(f"s_cmp_eq_u32 {S_L}, {l}\ns_cbranch_scc1 the_end")
    srd(a, 12, P_WQ, 0x400000); srd(a, 16, P_WV, 0x400000); srd(a, 20, P_WO, 0x400000); srd(a, 28, P_WK, 0x400000)
    a(f"""s_lshl_b32 s36, {S_W}, 15
s_lshl_b32 s37, {S_I}, 8
s_lshl_b32 s33, {S_W}, 20
s_add_u32 s37, s37, s33
s_lshl_b32 s39, {S_I}, 17
s_add_u32 s39, s39, s36
s_lshl_b32 s38, {S_W}, 13
v_lshrrev_b32 v2, 4, v1
v_and_b32 v3, 15, v1
v_lshlrev_b32 v6, 2, v2
v_xor_b32 v6, v6, v3
v_lshlrev_b32 v6, 4, v6
v_lshl_add_u32 v4, v2, 13, v6
v_and_b32 v6, 1, v2
v_lshlrev_b32 v6, 2, v6
v_xor_b32 v6, v6, v3
v_lshlrev_b32 v6, 4, v6
v_lshl_add_u32 v5, v2, 10, v6
v_xor_b32 v6, 0x80, v5
v_lshlrev_b32 v13, 4, v1
v_add_u32 v13, s36, v13""")
    def tr_addr(m, hi):
        if m == 'o':
            a(f"""v_bfe_u32 v7, v1, 4, 1
v_lshlrev_b32 v12, 4, v7
v_bfe_u32 v14, v1, 5, 1
v_lshl_add_u32 v12, v14, 2, v12
v_bfe_u32 v14, v1, 2, 1
v_add_u32 v12, v14, v12
v_lshl_add_u32 v7, v7, 1, v14
v_xor_b32 v7, {S_W}, v7
v_lshlrev_b32 v7, 6, v7
v_lshl_add_u32 v7, v12, 8, v7
v_and_b32 v12, 3, v1
v_lshl_add_u32 v7, v12, 4, v7
v_bfe_u32 v12, v1, 3, 1
v_lshl_add_u32 v7, v12, 3, v7""")
        else:
            a(f"""v_bfe_u32 v12, v1, 2, 2
v_xor_b32 v7, {S_W}, v12
v_lshlrev_b32 v7, 6, v7
v_lshl_add_u32 v7, v12, 8, v7
v_lshl_add_u32 v7, v2, 11, v7""")
            if m == 'v': a("v_and_b32 v12, 3, v1\nv_lshl_add_u32 v7, v12, 3, v7")
            else: a("v_bfe_u32 v12, v1, 1, 1\nv_lshl_add_u32 v7, v12, 5, v7\nv_and_b32 v12, 1, v1\nv_lshl_add_u32 v7, v12, 3, v7")
        for sg in range(4):
            a(f"s_xor_b32 s33, {S_W}, {sg}" if m == 'o' else f"s_add_u32 s33, {S_W}, {sg}\ns_and_b32 s33, s33, 3")
            a(f"s_lshl_b32 s33, s33, 13\nv_add_u32 v{8+sg}, s33, v7")
    pieces = [(m, x) for m in 'qvko' for x in range(4)]
    KLs = [(s_, t) for s_ in K_LDS for t in range(2)]
    def tmp(n): return 16 + 8 * (n if n < 14 else n - 6)
    def dmas(p):
        m, x = pieces[p]
        L = []
        for i in range(8):
            if m == 'o': src, ad, sr = f"s_add_u32 s33, s39, {x*256 + 4*i*1024}", 'v5' if i < 4 else 'v6', 's[20:23]'
            else: src, ad, sr = f"s_add_u32 s33, s37, {(64*(x>>1) + 32*(x&1) + 4*i)*8192}", 'v4', dict(q='s[12:15]', v='s[16:19]', k='s[28:31]')[m]
            L.append(f"s_add_u32 m0, s38, {(p & 3)*32768 + i*1024}\n{src}\nbuffer_load_dwordx4 {ad}, {sr}, s33 offen lds")
        return L
    def reads(p):
        m, x = pieces[p]
        L = []
        for sg in range(4):
            if m == 'o':
                kp, t = sg >> 1, sg & 1
                f, r = ('a', areg_o(x, kp, t)) if (x, kp) in O_REG else ('v', tmp(10 + O_LDS.index((x, kp))*2 + t))
                for u in range(4): L.append((f, r + 2*u, sg, (8*(u>>1) + 2*(u&1))*256))
            else:
                s_ = 2*sg + (x >> 1)
                for t in range(2):
                    if m == 'q': f, r = 'a', (2*s_ + t)*8
                    elif m == 'v': f, r = 'v', 128 + (2*s_ + t)*8
                    elif s_ in K_REG: f, r = 'a', areg_k(s_, t)
                    else: f, r = 'v', tmp(KLs.index((s_, t)))
                    for ul in range(2): L.append((f, r + 4*(x&1) + 2*ul, sg, 1024*ul + (32 if m == 'v' else 16)*t))
        return [f"ds_read_b64_tr_b16 {f}[{r}:{r+1}], v{8+sg} offset:{(p & 1)*32768 + o}" for f, r, sg, o in L]
    def load_all(side):
        for p in range(3):
            for x in dmas(p): a(x)
        for p in range(16):
            if p % 4 == 0: tr_addr(pieces[p][0], 0)
            if p % 4 == 2:
                for sg in range(4): a(f"v_xor_b32 v{8+sg}, 0x10000, v{8+sg}")
            a(f"s_waitcnt vmcnt({side.get(p, 0) + 8*min(2, 15 - p)}) lgkmcnt(0)\ns_barrier")
            if p == 12:
                a(f"v_lshlrev_b32 v15, 4, v1\ns_lshl_b32 s33, {S_W}, 12\ns_add_u32 s33, s33, {MEMB}\nv_add_u32 v15, s33, v15")
                for x in range(4): a(f"ds_write_b128 v15, v[{tmp(8)+4*x}:{tmp(8)+4*x+3}] offset:{1024*x}")
            d = dmas(p + 3) if p + 3 < 16 else []
            for n_, x in enumerate(reads(p)):
                a(x)
                if n_ % 2 and d: a(d.pop(0))
            if f'e{p}' in side: side[f'e{p}']()
        a("s_waitcnt lgkmcnt(0)\ns_barrier")
        for n in list(range(8)) + list(range(10, 16)):
            for h_ in range(2): a(f"ds_write_b128 v13, v[{tmp(n)+4*h_}:{tmp(n)+4*h_+3}] offset:{2048*n + 1024*h_}")
            if n == 1:
                a("s_waitcnt lgkmcnt(0)")
                for x in range(4): a(f"ds_read_b128 v[{16+4*x}:{19+4*x}], v15 offset:{1024*x}")
        a("s_waitcnt lgkmcnt(0)")
        for x in range(4): a(f"ds_write_b128 v13, v[{16+4*x}:{19+4*x}] offset:{2048*8 + 1024*x}")
        a("s_waitcnt lgkmcnt(0)")
    def calib():
        NB = 16
        a(f"""s_cmp_eq_u32 {S_W}, 3
s_cbranch_scc0 ch_nocal
s_sub_u32 s34, s99, 8
ch_cal:
s_memrealtime s[64:65]
s_waitcnt lgkmcnt(0)
s_sub_u32 s33, s34, s64
s_cmp_lt_u32 s33, 600
s_cbranch_scc1 ch_cal
s_memtime s[96:97]""")
        for k in range(NB): a(f"s_memrealtime s[{64+2*k}:{65+2*k}]\ns_nop 1")
        a("s_waitcnt lgkmcnt(0)")
        for k in range(NB): a(f"s_sub_u32 s33, s99, s{64+2*k}\ns_cmp_lt_u32 s33, 600\ns_cselect_b32 s33, 12, 0\ns_add_u32 s96, s96, s33")
        a(f"v_mov_b32 v20, s96\nv_mov_b32 v21, {JUNK}\nds_write_b32 v21, v20\ns_waitcnt lgkmcnt(0)")
        if opt.get('trace'):
            a(f"s_sub_u32 s33, s99, s64\nv_mov_b32 v20, s33\ns_mov_b64 exec, 1\nbuffer_store_dword v20, off, {WS}, s101 offset:2024\ns_mov_b64 exec, -1\ns_waitcnt vmcnt(0)")
        a("ch_nocal:")
    if opt.get('SYNC', 1): calib()
    a(f"""s_lshl_b32 s33, {S_L}, 20
s_add_u32 s54, s33, {CRING}
s_mul_i32 s53, {S_I}, {CSTR}
s_lshl_b32 s52, {S_W}, 11
s_add_u32 s53, s53, s52
s_mul_i32 s33, {S_L}, {48*MB}
s_mul_i32 s34, {S_I}, 24576
s_add_u32 s33, s33, s34
s_add_u32 s40, s33, {QKV + 8192}
s_lshl_b32 s33, {S_L}, 5
s_add_u32 s33, s33, {S_I}
s_lshl_b32 s33, s33, 9
s_lshl_b32 s34, {S_W}, 7
s_add_u32 s33, s33, s34
s_add_u32 s41, s33, {F_KV}
s_add_u32 s42, s33, {F_KM}
s_add_u32 s44, {S_G}, {D_TICK}
s_cmp_eq_u32 {S_G}, 0
s_cselect_b32 s44, {D_TICK0}, s44
s_add_u32 s45, {S_L}, {D_CINIT}
s_mov_b32 s57, 0
v_mov_b32 v0, 0""")
    def e10(): a(f"v_lshlrev_b32 v3, 2, v1\nbuffer_load_dword v3, v3, {DBG}, 0 offen sc1")
    def e13():
        a(f"""v_readlane_b32 s33, v3, s44
v_readlane_b32 s34, v3, s45
v_readlane_b32 s35, v3, {D_INIT}
v_lshlrev_b32 v3, 5, v1
s_min_u32 s33, s33, s34
s_add_u32 s35, s35, {32 - NZERO}
s_min_u32 s33, s33, s35
s_cmp_ge_u32 s33, 32
s_cbranch_scc0 ch_e13
s_mov_b32 s57, 1
s_mov_b64 exec, 1
buffer_load_dword v0, off, {WS}, s41 sc1
s_mov_b64 exec, -1""")
        for x in ("s_add_u32 s33, s40, s52", "s_add_u32 s33, s33, 8192", "s_add_u32 s33, s54, s53", f"s_add_u32 s33, s33, {CSLOT}",
                  f"s_add_u32 s33, s54, s52\ns_add_u32 s33, s33, {CMEM_OFF}", "s_add_u32 s33, s33, 8192", "s_add_u32 s33, s33, 8192", "s_add_u32 s33, s33, 8192"):
            a(f"{x}\nbuffer_load_dword v14, v3, {WS}, s33 offen sc1")
        a("ch_e13:")
    load_all({} if opt.get('noinit') else {11: 1, 12: 1, 'e10': e10, 'e13': e13})
    a("v_readfirstlane_b32 s56, v0")
    def sst(k):
        if opt.get('trace'):
            a(f"s_memrealtime s[64:65]\ns_waitcnt lgkmcnt(0)\nv_mov_b32 v40, s64\ns_mov_b64 exec, 1\nbuffer_store_dword v40, off, {WS}, s101 offset:{2000+4*k}\ns_mov_b64 exec, -1")
    sst(0)
    a(f"s_barrier\nv_mov_b32 v21, {JUNK}\nds_read_b32 v20, v21\ns_waitcnt lgkmcnt(0)\nv_readfirstlane_b32 s98, v20")
    if opt.get('trace'):
        a(f"s_mov_b64 exec, 1\nbuffer_store_dword v20, off, {WS}, s101 offset:2028\ns_mov_b64 exec, -1")
    a("s_mov_b32 s60, 0\ns_cmp_eq_u32 s57, 1\ns_cbranch_scc1 ch_mode")
    if not opt.get('noinit'):
        wait_dbg(a, D_INIT*4, NZERO, 10, vt=4)
        a(f"s_lshl_b32 s33, {S_L}, 2\ns_add_u32 s33, s33, {D_CINIT*4}")
        wait_dbg(a, 's33', 32, 11, vt=4)
    decide_mode(a, 'ch_setslow')
    a("s_branch ch_mode\nch_setslow:\ns_mov_b32 s60, 1\nch_mode:")
    sst(1)
    n, c, t1, t2 = 'v28', 'v29', 'v30', 'v31'
    a(f"""v_and_b32 {n}, 15, v1
v_lshrrev_b32 {c}, 4, v1
v_lshlrev_b32 v{L16}, 4, v1
v_add_u32 v{WK}, s36, v{L16}
v_add_u32 v{HI}, {MEMB}, v{L16}
; idx
v_bfe_u32 {t1}, v1, 1, 1
v_mul_u32_u24 {t1}, 0xaaaa, {t1}
v_add_u32 v{IDX}, 0x4444, {t1}""")
    for q in range(4):
        a(f"""s_add_u32 s33, {S_W}, {q}
s_and_b32 s33, s33, 3
s_lshl_b32 s33, s33, 11
v_add_u32 v{M0A+q}, s33, v{HI}""")
    a(f"""v_and_b32 {t1}, 3, v1
v_lshlrev_b32 {t1}, 1, {t1}
v_bfe_u32 {t2}, v1, 2, 1
v_add_u32 {t1}, {t1}, {t2}
v_bfe_u32 {t2}, v1, 3, 1
v_lshlrev_b32 {t2}, 4, {t2}
v_mov_b32 v32, 0x3f80
v_lshlrev_b32 {t2}, {t2}, v32""")
    for q in range(4):
        a(f"v_cmp_eq_u32 vcc, {q}, {t1}\nv_cndmask_b32 v{SEL+q}, 0, {t2}, vcc")
    a(f"""; partial store offset: (8w+4m+c)*8192 + h*64 + (n&7)*8
v_bfe_u32 {t1}, v1, 3, 1
v_lshl_add_u32 {t1}, {t1}, 2, {c}
s_lshl_b32 s33, {S_W}, 3
v_add_u32 {t1}, s33, {t1}
v_mul_u32_u24 {t1}, {CSTR}, {t1}
v_and_b32 {t2}, 7, v1
v_lshl_add_u32 {t1}, {t2}, 3, {t1}
s_lshl_b32 s33, {S_I}, 6
v_add_u32 v{ST}, s33, {t1}
v_and_b32 {t1}, 1, v1
v_lshlrev_b32 {t1}, 5, {t1}
v_bfe_u32 {t2}, v1, 5, 1
v_lshl_add_u32 {t1}, {t2}, 4, {t1}
v_bfe_u32 {t2}, v1, 1, 1
v_lshl_add_u32 {t1}, {t2}, 3, {t1}
v_bfe_u32 {t2}, v1, 4, 1
v_lshl_add_u32 {t1}, {t2}, 2, {t1}
v_bfe_u32 {t2}, v1, 2, 1
v_lshl_add_u32 {t1}, {t2}, 14, {t1}
s_lshr_b32 s33, {S_I}, 1
s_lshl_b32 s33, s33, 8
s_and_b32 s34, {S_I}, 1
s_lshl_b32 s34, s34, 6
s_add_u32 s33, s33, s34
s_lshr_b32 s34, {S_W}, 1
s_lshl_b32 s34, s34, 12
s_and_b32 s35, {S_W}, 1
s_lshl_b32 s35, s35, 7
s_add_u32 s35, s35, s34
s_add_u32 s33, s33, s35
s_add_u32 s33, s33, 8192
v_add_u32 v{PUB}, s33, {t1}
v_bfe_u32 v{PD}, v1, 2, 1
v_or_b32 v{PD}, -2, v{PD}
v_mul_u32_u24 {t1}, {2*QROW}, {c}
v_lshl_add_u32 {t1}, {n}, 2, {t1}
s_lshl_b32 s33, {S_W}, 6
s_add_u32 s34, s33, {QX}
v_add_u32 v{QW}, s34, {t1}
v_bfe_u32 {t1}, v1, 2, 2
v_lshlrev_b32 {t1}, 1, {t1}
v_and_b32 {t2}, 1, v1
v_add_u32 {t1}, {t1}, {t2}
v_mul_u32_u24 {t1}, {QROW}, {t1}
v_lshl_add_u32 {t1}, {c}, 4, {t1}
v_add_u32 v{QR}, {QX}, {t1}
v_bfe_u32 {t2}, v1, 1, 1
v_lshl_add_u32 v{QRM}, {t2}, 7, v{QR}
v_bfe_u32 {t1}, v1, 2, 3
v_mul_u32_u24 {t1}, {QROW}, {t1}
v_bfe_u32 {t2}, v1, 5, 1
v_lshl_add_u32 {t1}, {t2}, 5, {t1}
v_and_b32 {t2}, 3, v1
v_lshl_add_u32 {t1}, {t2}, 3, {t1}
s_lshl_b32 s33, {S_W}, 6
s_add_u32 s33, s33, {KX}
v_add_u32 v{KMS}, s33, {t1}
v_lshlrev_b32 {t1}, 4, {n}
v_lshl_add_u32 {t1}, {c}, 2, {t1}
v_add_u32 v{VMS}, 2048, {t1}
v_bfe_u32 {t1}, v1, 2, 2
v_lshlrev_b32 {t1}, 1, {t1}
v_and_b32 {t2}, 1, v1
v_add_u32 {t1}, {t1}, {t2}
v_lshlrev_b32 {t1}, 4, {t1}
v_lshl_add_u32 {t1}, {c}, 7, {t1}
s_lshl_b32 s33, {S_W}, 9
s_add_u32 s33, s33, {OX}
v_add_u32 v{ORD}, s33, {t1}
v_bfe_u32 {t2}, v1, 1, 1
v_lshl_add_u32 v{OW}, {t2}, 3, v{ORD}
v_bfe_u32 {t1}, v1, 5, 1
v_lshlrev_b32 {t1}, 10, {t1}
v_bfe_u32 {t2}, v1, 4, 1
v_lshl_add_u32 {t1}, {t2}, 9, {t1}
s_lshl_b32 s33, {S_W}, 11
v_add_u32 {t1}, s33, {t1}
v_lshl_add_u32 v{VG}, {n}, 4, {t1}
v_bfe_u32 {t2}, v1, 3, 1
v_lshl_add_u32 v{KG}, {t2}, 7, v{VG}
v_and_b32 v{TAGM}, 1, v1
v_xor_b32 v{TAGM}, 1, v{TAGM}""")
    a(f"""s_lshl_b32 s33, {S_L}, 20
s_add_u32 s54, s33, {CRING}
s_add_u32 s37, s54, {CMEM_OFF}
s_mul_i32 s53, {S_I}, {CSTR}
s_lshl_b32 s33, {S_W}, 11
s_add_u32 s53, s53, s33
s_add_u32 s55, s37, s35
s_add_u32 s43, s33, {KB}
s_lshl_b32 s33, {S_L}, 23
s_lshl_b32 s34, {S_I}, 12
s_add_u32 s33, s33, s34
s_add_u32 s39, s33, {KM}
s_lshl_b32 s34, {S_W}, 9
s_add_u32 s39, s39, s34
s_mul_i32 s33, {S_L}, {48*MB}
s_mul_i32 s34, {S_I}, 24576
s_add_u32 s33, s33, s34
s_add_u32 s40, s33, {QKV + 8192}
s_lshl_b32 s33, {S_L}, 5
s_add_u32 s33, s33, {S_I}
s_lshl_b32 s33, s33, 9
s_lshl_b32 s34, {S_W}, 7
s_add_u32 s33, s33, s34
s_add_u32 s41, s33, {F_KV}
s_lshl_b32 s84, {S_W}, 11
s_mov_b32 s58, 0x3f803f80
s_mov_b32 s59, 0x3f803f80
s_add_u32 s42, s33, {F_KM}
s_mov_b32 s44, 0x33333333
s_mov_b32 s45, 0x33333333
s_mov_b32 s46, 0xcccccccc
s_mov_b32 s47, 0xcccccccc
s_mov_b32 s48, 0x000f000f
s_mov_b32 s49, 0x000f000f
s_mov_b32 s50, 0x00ff00ff
s_mov_b32 s51, 0x00ff00ff
s_mov_b32 s52, {SC}
s_mov_b32 s20, 0
s_mov_b32 s38, s55""")
    a("s_cmp_lg_u32 s56, 0\ns_cbranch_scc1 ch_kv0ok\ns_cmp_eq_u32 s57, 1\ns_cbranch_scc1 ch_kv0")
    a(f"s_add_u32 s33, s54, s53")
    for sl in range(2):
        for q in range(2): a(f"buffer_load_dwordx4 v[28:31], v{L16}, {WS}, s33 offen offset:{1024*q} sc1")
        a(f"s_add_u32 s33, s33, {CSLOT}")
    for sl in range(1, 4):
        a(f"s_add_u32 s33, s37, s84\ns_add_u32 s33, s33, {8192*sl}")
        for q in range(2): a(f"buffer_load_dwordx4 v[28:31], v{L16}, {WS}, s33 offen offset:{1024*q} sc1")
    a(f"""ch_kv0:
s_mov_b64 exec, 1
buffer_load_dword v{FV}, off, {WS}, s41 sc1
s_waitcnt vmcnt(0)
v_cmp_eq_u32 vcc, 0, v{FV}
s_cbranch_vccz ch_kv0ok""")
    spin_dec(a, 12)
    a("s_sleep 2\ns_branch ch_kv0\nch_kv0ok:\ns_mov_b64 exec, -1")
    sst(2)
    for i in range(2):
        a(f"s_add_u32 m0, s43, {896*i}\nbuffer_load_dwordx4 v{KG}, {WS}, s40 offen offset:{128*i} sc1 lds")
    a(f"s_add_u32 s56, s40, 8192")
    for i in range(2):
        a(f"s_add_u32 m0, s43, {VB - KB + 768*i}\nbuffer_load_dwordx4 v{VG}, {WS}, s56 offen offset:{256*i} sc1 lds")
    a(f"s_add_u32 s40, s40, {32*24576}\ns_add_u32 s85, s40, s84")
    if opt.get('SYNC', 1):
        Q_ = opt.get('Q', 512)
        a(f"""s_sub_u32 s33, 3, {S_W}
s_mul_i32 s61, s33, {opt.get('WS', 32)}
s_add_u32 s82, s61, {76 + (8 if opt.get('cnt') else 0)}
s_mul_i32 s83, s33, {opt.get('WS', 32) - opt.get('WS2', 24)}
s_add_u32 s83, s83, {opt.get('C2', 590)}
s_mov_b32 s63, s98
s_mov_b32 s62, s63""")
    a("s_cmp_eq_u32 s60, 1\ns_cbranch_scc1 chs_entry")
    for mode in ('chf', 'chs'):
        step_loop(a, opt, mode, '' if mode == 'chf' else ' sc1', D1, D2)
    a(f"""ch_fin:
s_waitcnt vmcnt(0)
v_mov_b32 v{T0}, 64
s_mov_b64 exec, 1
buffer_store_dword v{T0}, off, {WS}, s42 sc1
s_mov_b64 exec, -1""")
    if opt.get('trace'):
        a("v_mbcnt_lo_u32_b32 v1, -1, 0\nv_mbcnt_hi_u32_b32 v1, -1, v1")
        tr_dump(a, opt, 0, 40, 10)
    a("s_branch the_end")

def warm(a, cycles, reg):
    for _ in range(max(0, cycles)//4): a(f"v_mov_b32 v{reg}, 0")

def step_loop(a, opt, P, SC1, D1, D2):
    lds = Cnt(a, 'lgkmcnt', 15)
    vm = Cnt(a, 'vmcnt', 63)
    R4 = lambda r: f"v[{r}:{r+3}]"
    slot = [100]
    def tick():
        cst(a, opt, slot[0]); slot[0] += 1
    memf = lambda s: R4(MEMF + 4*s)
    ETA = 's[46:47]'
    KL = [(s, t) for s in K_LDS for t in range(2)]
    def wk(n, h):
        r = RING + 8*(n % NRING) + 4*h
        return lambda: lds.issue(f"ds_read_b128 {R4(r)}, v{WK} offset:{2048*n + 1024*h}", ('wk', n))
    def S(m, s, t):
        if m == 'q': d, b = ACC + 4*t, f"a[{(2*s+t)*8}:{(2*s+t)*8+7}]"
        elif m == 'v': d, b = VAC + 4*t, f"v[{128+(2*s+t)*8}:{128+(2*s+t)*8+7}]"
        else:
            d = ACC + 8 + 4*t
            if s in K_REG: r = areg_k(s, t); b = f"a[{r}:{r+7}]"
            else:
                n = KL.index((s, t)); r = RING + 8*(n % NRING); b = f"v[{r}:{r+7}]"
                if n >= NRING: lds.wait(('wk', n))
        if s >= 2: lds.wait(('m', s))
        a(f"v_smfmac_f32_16x16x64_bf16 {R4(d)}, {memf(s)}, {b}, v{IDX}"); tick()
    def do(*xs):
        for x in xs:
            if x is None: continue
            if callable(x): x()
            else: a(x)
    def zero(r0, r1): return [f"v_mov_b64 v[{r}:{r+1}], 0" for r in range(r0, r1, 2)]
    def prep():
        z = zero(ACC + 16, ACC + 24)
        for n in range(NRING):
            wk(n, 0)(); wk(n, 1)()
        do(*z)
    a(f"{P}_entry:")
    a(f"v_mov_b32 v{FV}, 127\nv_mov_b32 v{XT+1}, 0\nv_and_b32 v{XT+2}, 0x380, v{L16}\nv_add_u32 v{XT+2}, v{XT+2}, v{L16}")
    prep()
    PQ = MEMF + 24
    NR = 4
    a(f"{P}_h2:")
    cst(a, opt, 29)
    a(f"""buffer_load_dwordx4 {memf(0)}, v{XT+2}, {WS}, s38 offen sc1
buffer_load_dwordx4 {memf(1)}, v{XT+2}, {WS}, s38 offen offset:2048 sc1
v_lshlrev_b32 v{XT}, 2, v{L16}
v_and_b32 v{XT+3}, 0x800, v{XT}
v_mad_u32_u24 v{XT}, v{XT+3}, 3, v{XT}""")
    do(*zero(ACC, ACC + 16))
    TRC = 1 if opt.get('trace') else 0
    cflush(a, opt)
    a(f"""s_waitcnt lgkmcnt(0)
s_waitcnt vmcnt({1 + TRC})""")
    lds.q = []; lds.done = 0
    cst(a, opt, 0)
    lds.issue(f"ds_write_b128 v{M0A}, {memf(0)}", 'mw')
    S('q', 0, 0)
    a(f"s_waitcnt vmcnt({TRC})")
    lds.issue(f"ds_write_b128 v{M0A}, {memf(1)} offset:1024", 'mw')
    S('q', 0, 1); a(f"v_max_u32 v{T0}, v{MEMF}, v{MEMF+4}")
    S('k', 0, 0); a(f"v_cmp_eq_u32 vcc, -1, v{T0}")
    SY = opt.get('SYNC', 1)
    S('k', 0, 1)
    S('q', 1, 0); a(f"s_cbranch_vccnz {P}_h2retry")
    def vst(t, tag=None):
        if opt.get('NOKM') and f"v{KMS}," in t: return None
        if opt.get('NOVM') and f"v{VMS}," in t: return None
        if opt.get('NOTOUCH') and 'buffer_load_dword v' in t and t.endswith('lds'): return None
        return lambda: vm.issue(t, tag)
    S('q', 1, 1); do(wk(5, 0))
    S('k', 1, 0); do(wk(5, 1), f"s_add_u32 m0, s43, {VB - KB}")
    lds.wait('mw')
    cst(a, opt, 10)
    a("s_barrier")
    cst(a, opt, 11)
    mr = lambda s: (lambda: lds.issue(f"ds_read_b128 {memf(s)}, v{M0A + (s>>1)} offset:{1024*(s&1)}", ('m', s)))
    kf = lambda T, i: RING + 16*T + 4*i
    kr = lambda T, i: (lambda: lds.issue(f"ds_read_b128 {R4(kf(T, i))}, v{HI} offset:{KB - MEMB + 2048*i + 1024*T}", ('K', T, i)))
    K0, K1, Q0, Q1 = ACC + 8, ACC + 12, ACC, ACC + 4
    RT = 0
    VMV = 'c'
    CV = True
    V1 = vst(f"buffer_load_dwordx4 v{VG}, {WS}, s56 offen sc1 lds", 'V')
    V2 = vst(f"buffer_load_dwordx4 v{VG}, {WS}, s56 offen offset:256 sc1 lds", 'V')
    FS = vst(f"buffer_store_dword v{T0}, off, {WS}, s42 sc1", 'fs')
    TK = vst(f"buffer_load_dword v{FV}, v{XT}, {WS}, s85 offen sc1")
    TV = None
    do(mr(2), "s_memrealtime s[80:81]" if RT else None, mr(3))
    FSX = ["s_mov_b64 exec, 1", vst(f"buffer_store_dword v{XT+1}, off, {WS}, s42 sc1", 'fs'), "s_mov_b64 exec, -1"]
    S('k', 1, 1); do(V1, f"s_add_u32 m0, s43, {VB - KB + 768}")
    S('v', 0, 0); do(V2)
    S('v', 0, 1); do(wk(6, 0))
    S('q', 2, 0); do(wk(6, 1))
    S('q', 2, 1); do(*FSX)
    S('k', 2, 0); do(mr(4))
    S('k', 2, 1); do(TK)
    S('k', 3, 0); do(wk(7, 0))
    S('q', 3, 0); do(wk(7, 1))
    S('q', 3, 1); do(mr(5))
    S('k', 3, 1)
    S('k', 4, 0); do(mr(6))
    S('q', 4, 0); do(wk(8, 0), "s_add_u32 s57, s20, 1")
    S('k', 4, 1); do(wk(8, 1))
    S('q', 4, 1); do(mr(7), "s_lshr_b32 s21, s20, 1")
    S('k', 6, 0); do(wk(9, 0))
    S('k', 6, 1); do(wk(9, 1), "s_not_b32 s21, s21")
    S('k', 5, 0)
    S('k', 7, 0); do(kr(0, 0), "s_min_u32 s57, s57, 62")
    S('k', 7, 1); do(kr(0, 1), "s_and_b32 s21, s21, 1")
    S('k', 5, 1); do(kr(0, 2), f"v_add_f32 v{K0}, v{K0}, v{K0+2}")
    S('q', 5, 0); do(kr(0, 3), f"v_add_f32 v{K0+1}, v{K0+1}, v{K0+3}")
    S('q', 6, 0); do(kr(1, 0), f"v_add_f32 v{K1}, v{K1}, v{K1+2}")
    S('q', 7, 0); do(kr(1, 1), f"v_add_f32 v{K1+1}, v{K1+1}, v{K1+3}")
    S('q', 5, 1); do(kr(1, 2), f"v_cvt_pk_bf16_f32 v{XT}, v{K0}, v{K1}")
    S('q', 6, 1); do(kr(1, 3), f"v_cvt_pk_bf16_f32 v{XT+1}, v{K0+1}, v{K1+1}")
    S('q', 7, 1); do(lambda: lds.issue(f"ds_write_b32 v{QW}, v{XT} offset:{KX - QX}", 'kw'), f"v_add_f32 v{Q0}, v{Q0}, v{Q0+2}")
    cst(a, opt, 1)
    S('v', 1, 0); do(lambda: lds.issue(f"ds_write_b32 v{QW}, v{XT+1} offset:{KX - QX + QROW}", 'kw'), f"v_add_f32 v{Q0+1}, v{Q0+1}, v{Q0+3}")
    S('v', 1, 1); do(lambda: lds.issue(f"ds_read_b64 v[{XT+2}:{XT+3}], v{KMS}", 'kr'))
    a(f"""v_add_f32 v{Q1}, v{Q1}, v{Q1+2}
v_add_f32 v{Q1+1}, v{Q1+1}, v{Q1+3}
v_cvt_pk_bf16_f32 v{Q0+2}, v{Q0}, v{Q1}
v_cvt_pk_bf16_f32 v{Q0+3}, v{Q0+1}, v{Q1+1}""")
    lds.issue(f"ds_write2_b32 v{QW}, v{Q0+2}, v{Q0+3} offset1:{QROW//4}", 'qw')
    S('v', 2, 0); do(f"v_lshrrev_b32 v{XT}, 1, v{L16}")
    S('v', 2, 1); do(lambda: lds.wait('kr'), vst(f"buffer_store_dwordx2 v[{XT+2}:{XT+3}], v{XT}, {WS}, s39 offen sc1"))
    S('v', 3, 0)
    lds.wait('qw')
    a("s_barrier")
    cst(a, opt, 16)
    QF = [92, 96, ACC + 8, ACC + 12]
    QM, KMF = [MEMF, MEMF + 4], [MEMF + 8, MEMF + 12]
    qr = lambda i: (lambda: lds.issue(f"ds_read_b128 {R4(QF[i])}, v{QR} offset:{64*i}", ('q', i)))
    qmr = lambda i: (lambda: lds.issue(f"ds_read_b128 {R4(QM[i])}, v{QRM} offset:{64*i}", ('qm', i)))
    kmr = lambda i: (lambda: lds.issue(f"ds_read_b128 {R4(KMF[i])}, v{QRM} offset:{KX - QX + 64*i}", ('km', i)))
    VF = MEMF + 16
    do(qr(0))
    S('v', 3, 1); do(qr(1))
    S('v', 4, 0); do(qr(2))
    S('v', 4, 1); do(qr(3))
    S('v', 5, 0); do(qmr(0), "s_add_u32 s56, s40, 8192")
    S('v', 5, 1); do(kmr(0))
    S('v', 6, 0); do(qmr(1))
    S('v', 7, 0); do(kmr(1))
    S('v', 6, 1); do(lambda: vm.wait('V'))
    S('v', 7, 1); do("s_mov_b64 exec, 1", vst(f"buffer_load_dword v{XT+1}, off, {WS}, s41 sc1", 'fl'), "s_mov_b64 exec, -1")
    DV1 = DV2 = None
    cst(a, opt, 2)
    X0, X1, SM = ACC, ACC + 4, MEMF + 24
    V0, V1 = VAC, VAC + 4
    def MM(d, x, y, first): a(f"v_mfma_f32_16x16x32_bf16 {R4(d)}, {R4(x)}, {R4(y)}, {'0' if first else R4(d)}"); tick()
    VP = VAC + 2
    ONE = VAC + 4
    m, m2 = T0, T0 + 1
    WA = RING
    OS = [MEMF, MEMF + 8, 92, ACC + 8, MEMF + 24, VAC]
    osr = lambda n, h: (lambda: lds.issue(f"ds_read_b128 {R4(OS[n] + 4*h)}, v{WK} offset:{2048*(10 + n) + 1024*h}", ('os', n)))
    vr = lambda t: (lambda: lds.issue(f"ds_read_b128 {R4(VF + 4*t)}, v{M0A} offset:{VB - MEMB + 1024*t}", ('V', t)))
    QP = "quad_perm:[2,3,0,1] row_mask:0xf bank_mask:0xf"
    EM = XT + 2
    lds.wait(('q', 3))
    MM(X0, kf(0, 0), QF[0], True);  do(f"v_add_f32 v{V0}, v{V0}, v{V0+2}")
    MM(X0, kf(0, 1), QF[1], False); do("s_and_b32 s33, s20, 1", f"v_add_f32 v{V0+1}, v{V0+1}, v{V0+3}", f"v_add_f32 v{V1}, v{V1}, v{V1+2}")
    MM(X0, kf(0, 2), QF[2], False); do(f"s_mul_i32 s33, s33, {CSLOT}", f"v_add_f32 v{V1+1}, v{V1+1}, v{V1+3}", f"v_cvt_pk_bf16_f32 v{VP}, v{V0}, v{V0+1}")
    MM(X0, kf(0, 3), QF[3], False); do(lambda: lds.wait(('km', 1)), f"v_cvt_pk_bf16_f32 v{VP+1}, v{V1}, v{V1+1}", *zero(WA, WA + 2))
    MM(SM, KMF[0], QM[0], True);    do(vst(f"buffer_store_dwordx2 v[{VP}:{VP+1}], v{XT}, {WS}, s39 offen offset:2048 sc1"), f"v_mov_b64 v[{ONE}:{ONE+1}], s[58:59]")
    MM(SM, KMF[1], QM[1], False);   do(vr(0) if CV else None, f"v_max3_f32 v{m}, v{X0}, v{X0+1}, v{X0+2}")
    MM(X1, kf(1, 0), QF[0], True);  do(vr(1) if CV else None, f"v_mov_b64 v[{ONE+2}:{ONE+3}], s[58:59]")
    MM(X1, kf(1, 1), QF[1], False); do("s_add_u32 s22, s54, s33", f"v_cndmask_b32_e64 v{SM}, v{SM}, v{SM+2}, {ETA}", f"v_cndmask_b32_e64 v{SM+1}, v{SM+1}, v{SM+3}, {ETA}")
    MM(X1, kf(1, 2), QF[2], False); do(f"v_add_f32_dpp v{SM}, v{SM}, v{SM} {QP}", f"v_add_f32_dpp v{SM+1}, v{SM+1}, v{SM+1} {QP}")
    MM(X1, kf(1, 3), QF[3], False)
    do(f"v_max3_f32 v{m}, v{m}, v{X0+3}, v{SM}",
       f"v_cndmask_b32_e64 v{EM}, v{SM}, v{SM+1}, {ETA}", f"v_max_f32 v{m}, v{m}, v{SM+1}", *zero(WA + 2, WA + 10))
    cst(a, opt, 19)
    sel = lambda i: f"v_cndmask_b32_e64 v{X0+i}, v{X0+i}, v{X1+i}, {ETA}"
    a(f"""v_max3_f32 v{m}, v{m}, v{X1}, v{X1+1}
v_max3_f32 v{m2}, v{m}, v{X1+2}, v{X1+3}
v_max3_f32 v{m}, v{m}, v{X1+2}, v{X1+3}
{sel(0)}
{sel(1)}
v_permlane16_swap_b32 v{m2}, v{m}
v_max_f32 v{EM+1}, v{m}, v{m2}
v_max_f32 v{m}, v{m}, v{m2}
{sel(2)}
{sel(3)}
v_permlane32_swap_b32 v{EM+1}, v{m}
v_max_f32 v{m}, v{m}, v{EM+1}
v_mul_f32 v{m}, s52, v{m}""")
    cst(a, opt, 20)
    E = [X0, X0+1, X0+2, X0+3]
    if not CV: do(lambda: vm.wait('V'), vr(0), vr(1))
    for e in E: a(f"v_fma_f32 v{e}, v{e}, s52, -v{m}")
    for e in E: a(f"v_exp_f32 v{e}, v{e}")
    B0, B1, BM, O, p0, p1, LS = X1, 76, 80, 84, 82, 83, 88
    a(f"""v_cvt_pk_bf16_f32 v{p0}, v{X0}, v{X0+1}
v_cvt_pk_bf16_f32 v{p1}, v{X0+2}, v{X0+3}
v_cndmask_b32_e64 v{B1+2}, 0, v{p0}, {ETA}
v_cndmask_b32_e64 v{B1+3}, 0, v{p1}, {ETA}
v_cndmask_b32_e64 v{B0}, v{p0}, 0, {ETA}
v_cndmask_b32_e64 v{B0+1}, v{p1}, 0, {ETA}
v_mov_b32_dpp v{B0+2}, v{B1+2} {QP}
v_mov_b32_dpp v{B0+3}, v{B1+3} {QP}
v_fma_f32 v{EM}, v{EM}, s52, -v{m}""")
    lds.wait(('V', 1))
    cst(a, opt, 3)
    MM(LS, ONE, B0, True);  do(DV1, f"v_mov_b32_dpp v{B1}, v{B0} {QP}", f"v_mov_b32_dpp v{B1+1}, v{B0+1} {QP}")
    MM(O, VF, B0, True);    do(osr(0, 0), f"v_exp_f32 v{EM}, v{EM}")
    MM(LS, ONE, B1, False); do(osr(0, 1), f"v_mov_b32_dpp v{EM+1}, v{EM} {QP}")
    MM(O, VF + 4, B1, False)
    do(f"v_cvt_pk_bf16_f32 v{BM}, v{EM}, v{EM+1}", f"v_cndmask_b32_e64 v{BM}, v{BM}, 0, {ETA}", *zero(WA + 10, WA + 14),
       f"v_mov_b32_dpp v{BM+1}, v{BM} {QP}", *zero(WA + 14, WA + 16))
    a(f"v_mfma_f32_16x16x16_bf16 {R4(LS)}, v[{ONE}:{ONE+1}], v[{BM}:{BM+1}], {R4(LS)}")
    do(osr(1, 0))
    a(f"v_mfma_f32_16x16x16_bf16 {R4(O)}, v[{VP}:{VP+1}], v[{BM}:{BM+1}], {R4(O)}")
    do(osr(1, 1), DV2, "s_cmp_lt_u32 s20, 61", f"s_cselect_b32 s33, {32*24576}, 0")
    a(f"v_rcp_f32 v{LS}, v{LS}")
    do("s_add_u32 s87, s40, s33", "s_cmp_eq_u32 s20, 63")
    OP = X0
    for i in range(4): a(f"v_mul_f32 v{O+i}, v{O+i}, v{LS}")
    a(f"v_cvt_pk_bf16_f32 v{OP}, v{O}, v{O+1}\nv_cvt_pk_bf16_f32 v{OP+1}, v{O+2}, v{O+3}")
    cst(a, opt, 22)
    lds.issue(f"ds_write_b64 v{OW}, v[{OP}:{OP+1}]", 'ow')
    OF = [X1, VF, VF + 4, B1]
    for i in range(4):
        a(f"v_mov_b32_dpp v{OF[0]+i}, v{OP+(i&1)} quad_perm:{'[0,1,0,1]' if i < 2 else '[2,3,2,3]'} row_mask:0xf bank_mask:0xf")
    do(*[f"v_xor_b32 v{O+sg}, {512*sg}, v{ORD}" for sg in (1, 2, 3)])
    def so(phi, sg):
        d = WA + 4*phi
        kp, t = sg >> 1, sg & 1
        if (phi, kp) in O_REG: r = areg_o(phi, kp, t); b = f"a[{r}:{r+7}]"
        else:
            n = O_LDS.index((phi, kp))*2 + t; b = f"v[{OS[n]}:{OS[n]+7}]"
            lds.wait(('os', n))
        if sg: lds.wait(('o', sg))
        a(f"v_smfmac_f32_16x16x64_bf16 {R4(d)}, {R4(OF[sg])}, {b}, v{IDX}"); tick()
    so(0, 0); do("s_cbranch_scc1 ch_fin")
    lds.wait('ow')
    cst(a, opt, 24)
    a("s_barrier")
    orr = lambda sg: (lambda: lds.issue(f"ds_read_b128 {R4(OF[sg])}, v{O+sg}", ('o', sg)))
    do(orr(1))
    so(1, 0); do(orr(2), "s_add_u32 s23, s22, 4096")
    so(2, 0); do(orr(3), "s_add_u32 s36, s22, s53")
    so(3, 0); do(osr(2, 0), "s_add_u32 s20, s20, 1")
    cst(a, opt, 4)
    def epi(phi):
        A_ = WA + 4*phi
        return [f"v_cvt_pk_bf16_f32 v{A_}, v{A_}, v{A_+1}", f"v_cvt_pk_bf16_f32 v{A_+1}, v{A_+2}, v{A_+3}", f"v_bfi_b32 v{A_}, v{TAGM}, s21, v{A_}",
                f"buffer_store_dwordx2 v[{A_}:{A_+1}], v{ST}, {WS}, {'s22' if phi < 2 else 's23'} offen offset:{2048*(phi&1)}{SC1}"]
    e0, e1, e2, e3 = [epi(p) for p in range(4)]
    so(0, 1); do(osr(2, 1))
    so(0, 2); do(osr(3, 0))
    so(0, 3); do(osr(3, 1))
    so(1, 1); do(osr(4, 0), (lambda: vm.wait('sig')) if RT else None)
    so(1, 2); do(osr(4, 1), e0[0], e0[1], e0[2])
    so(1, 3); do(e0[3], osr(5, 0))
    so(2, 1); do(osr(5, 1), f"v_subrev_u32 v{FV}, s80, v{FV}" if RT else None)
    so(2, 2); do(f"s_add_u32 s39, s39, {32*4096}", "s_and_b32 s33, s20, 3", e1[0], e1[1], e1[2])
    so(2, 3); do(e1[3])
    so(3, 1); do("s_lshl_b32 s33, s33, 13", "s_add_u32 s38, s55, s33")
    so(3, 2); do("s_add_u32 s85, s87, s84", e2[0])
    so(3, 3); do(e2[1], e2[2], e2[3], *e3)
    cst(a, opt, 5)
    H = MEMF + 8
    R = MEMF + 16
    D1 = opt.get('D1', [220, 260, 300, 340])
    TT, QQ, C2, TOL, LI = opt.get('T', 3140), opt.get('Q', 512), opt.get('C2', 520), opt.get('TOL', 40), opt.get('LI', 32)
    DS_ = opt.get('DS', 150)
    def wait_rem(name):
        a(f"""{P}_{name}1:
s_sub_u32 s33, s33, {LI}
s_cmp_gt_i32 s33, 0
s_cbranch_scc1 {P}_{name}1""")
    assert QQ & (QQ - 1) == 0
    def grid(reg, thr):
        a(f"""s_waitcnt lgkmcnt(0)
s_sub_u32 s33, {reg}, s80
s_sub_u32 s34, {thr + QQ - 1}, s33
s_max_i32 s34, s34, 0
s_andn2_b32 s34, s34, {QQ - 1}
s_add_u32 s33, s33, s34""")
        if opt.get('cnt'): a(f"s_lshl_b32 s35, s34, {24 - QQ.bit_length() + 1}\ns_add_u32 s76, s76, s35")
    OV = 72 + (8 if opt.get('cnt') else 0)
    if SY:
        a(f"""s_memtime s[80:81]
s_add_u32 s63, s63, {TT}""")
        grid('s63', DS_)
        a("s_sub_u32 s33, s33, s82\ns_add_u32 s63, s63, s34\ns_sub_u32 s62, s63, s61")
        wait_rem('ga')
    else:
        a.nops((D1[0] - 24)//4)
        for w in (1, 2, 3):
            if D1[w] > D1[w-1]:
                a(f"s_cmp_lt_u32 {S_W}, {w}\ns_cbranch_scc1 {P}_h1a")
                a.nops((D1[w] - D1[w-1] - 16)//4)
    a(f"{P}_h1a:")
    cst(a, opt, 27)
    a(f"""buffer_load_dwordx4 {R4(H)}, v{L16}, {WS}, s36 offen sc1
buffer_load_dwordx4 {R4(H+4)}, v{L16}, {WS}, s36 offen offset:1024 sc1""")
    a(f"""s_waitcnt vmcnt(7)
v_readfirstlane_b32 s86, v{XT+1}
v_bfe_i32 v{T0+1}, v{PD}, 0, 1
v_and_b32 v{XT+2}, 0x380, v{L16}
v_add_u32 v{XT+2}, v{XT+2}, v{L16}""")
    prep()
    a(f"""s_cmp_ge_u32 s57, s86
s_cbranch_scc1 {P}_kvwait
{P}_kvok:""")
    for i_ in range(2): a(f"s_add_u32 m0, s43, {896*i_}\nbuffer_load_dwordx4 v{KG}, {WS}, s40 offen offset:{128*i_} sc1 lds")
    a(f"""v_mov_b32 v{XT+1}, s20
s_waitcnt vmcnt(3)
{P}_h1b:
v_mfma_f32_16x16x32_bf16 {R4(R)}, {R4(SEL)}, {R4(H)}, 0
v_xor_b32 v{T0}, s21, v{H}
s_waitcnt vmcnt(2)
v_mfma_f32_16x16x32_bf16 {R4(R)}, {R4(SEL)}, {R4(H+4)}, {R4(R)}
v_bitop3_b32 v{T0}, v{T0}, s21, v{H+4} bitop3:0xf6
v_and_b32 v{T0}, 1, v{T0}
v_cmp_ne_u32 vcc, 0, v{T0}
v_add_f32_dpp v{R}, v{R}, v{R} row_ror:4 row_mask:0xf bank_mask:0xf
v_add_f32_dpp v{R+1}, v{R+1}, v{R+1} row_ror:4 row_mask:0xf bank_mask:0xf
s_cbranch_vccnz {P}_h1retry
v_add_f32_dpp v{R}, v{R}, v{R} row_ror:8 row_mask:0xf bank_mask:0xf
v_add_f32_dpp v{R+1}, v{R+1}, v{R+1} row_ror:8 row_mask:0xf bank_mask:0xf
s_mov_b64 exec, s[50:51]
v_cvt_pk_bf16_f32 v{R}, v{R}, v{R+1}
v_med3_u32 v{R}, v{R}, v{PD}, v{T0+1}
buffer_store_dword v{R}, v{PUB}, {WS}, s37 offen{SC1}
s_memtime s[80:81]
s_mov_b64 exec, -1
v_add_u32 v{PUB}, 0x2000, v{PUB}
v_and_b32 v{PUB}, 0x7fff, v{PUB}
s_add_u32 s62, s62, s83
s_mov_b32 s40, s87""")
    cst(a, opt, 6)
    if SY:
        a(f"{P}_gb0:")
        grid('s62', OV + 20 - TOL)
        a(f"s_add_u32 s62, s62, s34\ns_sub_u32 s33, s33, {OV + 20}")
        wait_rem('gb')
    else: a.nops((D2 - 36)//4)
    a(f"s_branch {P}_h2")
    a(f"{P}_h2retry:"); spin_dec(a, 13)
    if opt.get('cnt'): a("s_add_u32 s76, s76, 0x10000")
    a(f"s_memtime s[80:81]\ns_branch {P}_gb0" if SY else f"s_branch {P}_h2")
    a(f"{P}_h1retry:"); spin_dec(a, 14)
    if opt.get('cnt'): a("s_add_u32 s76, s76, 1")
    if SY:
        a("s_memtime s[80:81]")
        grid('s62', OV + 20 - TOL)
        a(f"s_add_u32 s62, s62, s34\ns_sub_u32 s33, s33, {OV + opt.get('RA', 24)}")
        wait_rem('gr')
    cst(a, opt, 27)
    a(f"""buffer_load_dwordx4 {R4(H)}, v{L16}, {WS}, s36 offen sc1
buffer_load_dwordx4 {R4(H+4)}, v{L16}, {WS}, s36 offen offset:1024 sc1""")
    prep()
    a(f"s_branch {P}_kvok")
    a(f"{P}_kvwait:"); spin_dec(a, 15)
    a(f"""s_sleep 1
buffer_load_dword v{XT+1}, off, {WS}, s41 sc1
s_waitcnt vmcnt(0)
v_cmp_ge_u32 vcc, s57, v{XT+1}
s_cbranch_vccnz {P}_kvwait
s_branch {P}_kvok""")
```

```python
from common import *
from r_qkv import xtile_setup, xtile_dma, XROW, xld, xwr
from r_ao import load_w_perm8, w_addr, half_epilogue, shadow16, swap4, ring_next, part_addr, selectors, reduce_loads, reduce_sum, unpack8, done_store
HB = 0x20000
TS = 16384

def role_ffn(a, opt):
    a(f"""role_ffn:
s_lshr_b32 {S_L}, {S_I}, 4
s_and_b32 s35, {S_I}, 15""")
    if 'ffn_layers' in opt:
        for l in (0, 1):
            if l not in opt['ffn_layers']: a(f"s_cmp_eq_u32 {S_L}, {l}\ns_cbranch_scc1 the_end")
    a(f"""s_cmp_ge_u32 s35, 11
s_cbranch_scc1 ffn_R""")
    def wait_init(code):
        if not opt.get('noinit'):
            wait_dbg(a, D_INIT*4, NZERO, code, vt=10)
            a(f"s_lshl_b32 s33, {S_L}, 2\ns_add_u32 s33, s33, {D_GINIT*4}")
            wait_dbg(a, 's33', 32, code + 1, vt=10)
    if opt.get('WARM', 0) and not opt.get('noinit'): warm_weights(a, 2)
    srd(a, 12, P_W1, 512*2752); srd(a, 16, P_W2, 1376*1024)
    a(f"""s_lshl_b32 s33, s35, 2
s_add_u32 s33, s33, {S_W}
s_lshl_b32 s50, s33, 6
s_cmp_eq_u32 s33, 43
s_cselect_b32 s50, 0x200000, s50
v_lshrrev_b32 v2, 2, v1
v_mul_u32_u24 v2, 2752, v2
v_and_b32 v3, 3, v1
v_lshl_add_u32 v2, v3, 4, v2
s_mul_i32 s52, {S_W}, 40960
v_lshrrev_b32 v3, 5, v1
v_lshlrev_b32 v3, 9, v3
v_bfe_u32 v4, v1, 2, 2
v_lshl_add_u32 v3, v4, 6, v3
v_bfe_u32 v4, v1, 4, 1
v_lshl_add_u32 v3, v4, 5, v3
v_and_b32 v4, 3, v1
v_lshl_add_u32 v3, v4, 3, v3
v_add_u32 v3, s52, v3""")
    def dma(i, q):
        a(f"buffer_load_dwordx4 v2, s[12:15], s50 offen lds\ns_add_u32 s50, s50, {16*2752}")
    def consume(i, off):
        r = 4 * i
        a(f"ds_read_b64_tr_b16 a[{r}:{r+1}], v3 offset:{off}")
        a(f"ds_read_b64_tr_b16 a[{r+2}:{r+3}], v3 offset:{off+256}")
        return 2
    stage_tr(a, 32, 32, 1024, 's52', dma, consume)
    a(f"""s_lshl_b32 s37, s35, 17
s_lshl_b32 s33, {S_W}, 8
s_add_u32 s37, s37, s33
""")
    for z in range(4): a(f"s_xor_b32 s33, {S_W}, {z}\ns_lshl_b32 s33, s33, 15\ns_add_u32 s{40+z}, s37, s33")
    w_addr(a, 'v4', 'v5')
    load_w_perm8(a, 's[16:19]', 'v4', lambda z: (f's{40+z}', 0), 4, lambda tau, z: 128 + (tau*4 + z) * 4, 16)
    wait_init(30)
    xtile_setup(a, 'v4', 'v5', 's36')
    part_addr(a, 'v8', 'v9', TS)
    a(f"""s_lshl_b32 s37, {S_L}, 21
s_add_u32 s37, s37, {XNF}
s_lshl_b32 s33, {S_W}, 13
s_add_u32 s37, s37, s33
s_lshl_b32 s38, {S_L}, 21
s_add_u32 s38, s38, {FFRING}
s_lshl_b32 s33, s35, 10
s_add_u32 s38, s38, s33
s_lshl_b32 s33, {S_W}, 8
s_add_u32 s38, s38, s33
s_lshl_b32 s33, {S_L}, 7
s_lshl_b32 s34, {S_W}, 5
s_add_u32 s34, s34, s33
s_lshl_b32 s34, s34, 5
s_add_u32 s34, s34, {F_AOR}
s_add_u32 s33, s33, {F_FFD - 128}
v_and_b32 v6, 7, v1
v_lshl_add_u32 v6, v6, 7, s34
v_min_u32 v9, 51, v1
v_lshl_add_u32 v9, v9, 2, s33
v_mov_b32 v12, {1 - FFR}
v_cmp_gt_u32 vcc, 32, v1
v_cndmask_b32 v6, v9, v6, vcc
v_cndmask_b32_e64 v12, v12, 2, vcc
; h exchange
v_add_u32 v14, {HB}, v4
s_lshl_b32 s33, {S_W}, 11
v_add_u32 v13, s33, v14
v_xor_b32 v14, 0x800, v13
v_xor_b32 v15, 0x1000, v13
v_xor_b32 v3, 0x1800, v13
s_mov_b32 s44, {FFR-1}
s_mov_b32 s22, 0
s_mov_b32 s20, -1
s_barrier""")
    a(f"s_lshl_b32 s33, s35, 2\ns_add_u32 s33, s33, {S_W}\ns_lshl_b32 s33, s33, 2\ns_lshl_b32 s34, {S_L}, 8\ns_add_u32 s33, s33, s34\ns_add_u32 s47, s33, {F_FFM}")
    a(f"s_add_u32 s46, s37, {XA - XNF - 32768}\ns_cmp_eq_u32 s35, 0\ns_cselect_b64 s[56:57], -1, 0")
    a(f"s_mul_i32 s33, s35, 6\ns_lshl_b64 s[60:61], 63, s33" if opt.get('FT', 1) == 1 else "s_mov_b64 s[60:61], -1")
    decide_mode(a, 'ffs_pre', vt=10)
    FR, H, HO, HF, PK, GS = 16, 48, 64, 72, 96, (128, 160)
    def flag_load(): a(f"buffer_load_dword v7, v6, {WS}, 0 offen sc1")
    for P, SC1 in (('fff', ''), ('ffs', ' sc1')):
        a(f"""{P}_pre:
v_lshlrev_b32 v11, 7, v1
{P}_wait:
s_waitcnt lgkmcnt(0)
v_add_u32 v9, s20, v12
s_mov_b64 exec, 0xff
{P}_poll:""")
        flag_load()
        spin_dec(a, 32)
        a(f"""s_waitcnt vmcnt(0)
v_cmp_gt_i32 vcc, v9, v7
s_cbranch_vccnz {P}_poll
s_mov_b64 exec, -1""")
        xtile_dma(a, 'v4', 's36', 's37', 's33')
        a(f"""s_add_u32 s37, s37, 32768
s_xor_b32 s36, s36, 0x10000
s_waitcnt vmcnt(0)
""")
        FCK = opt.get('FCK', 22)
        MARK = f"s_mov_b64 exec, 1\nbuffer_store_dword v2, off, {WS}, s47{SC1}\ns_mov_b64 exec, -1"
        epiB = lambda: half_epilogue(GS[1], PK + 16, 'v8', 's23', 's22', TS, 1, SC1) + [MARK]
        NH = 8
        for pend in (0, 1):
            if pend: a(f"{P}_topp:")
            a("s_barrier\ns_add_u32 s20, s20, 1")
            tr_stamp(a, opt, 0)
            for k in range(6): a(f"ds_read_b128 v[{FR+4*k}:{FR+4*k+3}], v5 offset:{32*k}")
            flag_load()
            a(f"s_cmp_eq_u32 s20, 63\ns_cselect_b32 s39, 1, 0\nv_add_u32 v9, s20, v12")
            side = epiB() if pend else []
            def s1(k):
                f = FR + 4 * (k % 8)
                a(f"s_waitcnt lgkmcnt({min(31, k + 5) - k})")
                a(f"v_mfma_f32_32x32x16_bf16 v[{H}:{H+15}], a[{4*k}:{4*k+3}], v[{f}:{f+3}], {f'v[{H}:{H+15}]' if k else '0'}")
                if k + 6 < 32:
                    n = FR + 4 * ((k + 6) % 8)
                    a(f"ds_read_b128 v[{n}:{n+3}], v5 offset:{32*(k+6)}")
            for _ in range(7):
                if side: a(side.pop(0))
            for k in range(NH):
                s1(k)
                for _ in range(3):
                    if side: a(side.pop(0))
            assert not side
            if not pend: a(f"s_branch {P}_mid")
        a(f"{P}_mid:")
        for k in range(NH, 32):
            s1(k)
            if k == NH: a(f"s_add_u32 s46, s46, 32768\ns_mov_b64 exec, s[56:57]\nbuffer_load_dword v10, v11, {WS}, s46 offen sc1\ns_mov_b64 exec, -1")
            if k == FCK: a("s_waitcnt vmcnt(1)\nv_cmp_gt_i32 vcc, v9, v7")
            if k == FCK + 1: a("s_cmp_eq_u32 vcc_lo, 0\ns_cselect_b32 s41, 1, 0\ns_andn2_b32 s41, s41, s39\ns_cselect_b32 s54, s37, 0x40000000")
            if k == FCK + 2: a((f"s_mov_b64 exec, s[60:61]\nbuffer_load_dword v10, v11, {WS}, s54 offen sc1\ns_mov_b64 exec, -1\n" if opt.get('FT', 1) else "") + f"s_or_b32 s39, s39, s41\ns_mov_b32 s40, vcc_hi")
            if k == 27: ring_next(a, 's44', 's22', 's23', 's38', 19, FFR)
            if k == 29: a("v_xor_b32 v5, 0x10000, v5\nv_mov_b32 v2, v9")
        tr_stamp(a, opt, 4)
        for i in range(4):
            a(f"v_cvt_pk_bf16_f32 v{HO+i}, v{H+2*i}, v{H+2*i+1}\nv_cvt_pk_bf16_f32 v{HO+4+i}, v{H+8+2*i}, v{H+8+2*i+1}")
        for i in range(4): a(f"v_permlane16_swap_b32 v{HO+i}, v{HO+4+i}")
        for i in range(8): a(f"v_pk_max_i16 v{HO+i}, v{HO+i}, 0")
        tr_stamp(a, opt, 1)
        side = []
        n_ = 0
        adr = {1: 'v14', 2: 'v15', 3: 'v3'}
        order = [(0, 0), (1, 0)] + [(h_, z) for h_ in range(2) for z in (1, 2, 3)]
        lds = Cnt(a, 'lgkmcnt', 15)
        BP = opt.get('FBP', 10)
        XW = opt.get('FXW', 1)
        for bi, (half, z) in enumerate(order):
            fr = HO + 4*half if z == 0 else HF + 4*(bi - 2)
            if z: lds.wait(bi)
            for tau in range(8):
                b = 128 + (tau*4 + z) * 4
                A = GS[half] + 4*tau
                a(f"v_mfma_f32_16x16x32_bf16 v[{A}:{A+3}], v[{fr}:{fr+3}], a[{b}:{b+3}], {'0' if z==0 else f'v[{A}:{A+3}]'}")
                if n_ == 0: a(f"ds_write_b128 v13, v[{HO}:{HO+3}]")
                if n_ == 3: a(f"ds_write_b128 v13, v[{HO+4}:{HO+7}] offset:1024")
                if n_ == BP: a("s_waitcnt lgkmcnt(0)\ns_barrier")
                if BP <= n_ < BP + 6:
                    h2, z2 = order[n_ - BP + 2]
                    lds.issue(f"ds_read_b128 v[{HF+4*(n_-BP)}:{HF+4*(n_-BP)+3}], {adr[z2]} offset:{1024*h2}", n_ - BP + 2)
                XS_ = opt.get('FXS', 5)
                if XW <= n_ < XW + 8*XS_ and (n_ - XW) % XS_ == 0:
                    r = (n_ - XW)//XS_
                    a(f"s_add_u32 m0, s36, {r*XROW}\ns_add_u32 s34, s54, {r*1024}")
                if XW + 1 <= n_ < XW + 8*XS_ + 1 and (n_ - XW - 1) % XS_ == 0: a(f"buffer_load_dwordx4 v4, {WS}, s34 offen sc1 lds")
                if n_ == 40: a(f"s_cmp_eq_u32 s40, 0\ns_cbranch_scc0 {P}_ringwait\n{P}_ringok:")
                if n_ == 41: side = half_epilogue(GS[0], PK, 'v8', 's23', 's22', TS, 0, SC1)
                shadow16(a, side)
                if n_ == 62: a("s_lshl_b32 s34, s41, 15\ns_add_u32 s37, s37, s34\ns_lshl_b32 s34, s41, 16")
                n_ += 1
        assert not side
        tr_stamp(a, opt, 2)
        if opt.get('trace'):
            tr_stamp(a, opt, 3)
            tr_flush(a, opt, 's20', range(5), 240, wait=True)
        a(f"""s_xor_b32 s36, s36, s34
s_cmp_eq_u32 s41, 1
s_waitcnt vmcnt(4)
s_cbranch_scc1 {P}_topp""")
        for x in epiB(): a(x)
        if opt.get('trace'):
            tr_stamp(a, opt, 3)
            tr_flush(a, opt, 's20', [3], 240, wait=True)
        a(f"""s_cmp_eq_u32 s20, 63
s_cbranch_scc0 {P}_wait
s_branch ffn_fin
{P}_ringwait:""")
        spin_dec(a, 33)
        flag_load()
        a(f"""s_waitcnt vmcnt(0)
v_cmp_gt_i32 vcc, v9, v7
s_cmp_eq_u32 vcc_hi, 0
s_cbranch_scc1 {P}_ringok
s_sleep 1
s_branch {P}_ringwait""")
    a("ffn_fin:")
    tr_dump(a, opt, 5, 240, 10)
    a("s_branch the_end")
    S1, S2, R, X, U, D = 16, 20, 24, 32, 40, 64
    a("ffn_R:\ns_sub_u32 s35, s35, 11")
    if not opt.get('noinit'):
        a(f"""s_mul_i32 s33, {S_L}, 5
s_add_u32 s33, s33, s35
s_mul_i32 s33, s33, {FLG_SIZE//NZERO}
v_lshlrev_b32 v2, 4, v0
v_mov_b32 v4, 0
v_mov_b32 v5, 0
v_mov_b32 v6, 0
v_mov_b32 v7, 0""")
        for i in range(FLG_SIZE // NZERO // 4096):
            a(f"buffer_store_dwordx4 v[4:7], v2, {WS}, s33 offen sc1\ns_add_u32 s33, s33, 4096")
        a(f"""s_waitcnt vmcnt(0)
s_barrier
s_cmp_eq_u32 {S_W}, 0
s_cbranch_scc0 ffr_nz
s_mov_b64 exec, 1
v_mov_b32 v4, 1
buffer_atomic_add v4, off, {DBG}, 0 offset:{D_INIT*4} sc1
s_mov_b64 exec, -1
ffr_nz:""")
        if opt.get('WARM', 0): warm_weights(a, 2)
    a(f"""s_mul_i32 s46, {S_W}, 5
s_add_u32 s46, s46, s35
s_add_u32 s46, s46, 20
s_lshl_b32 s35, s35, 2
s_add_u32 s35, s35, {S_W}
s_sub_u32 s47, s46, s35
s_lshl_b32 s48, s47, 14
s_lshl_b32 s49, s47, 10
s_cmp_eq_u32 {S_L}, 0
s_cselect_b32 s12, s{P_WS}, s{P_OUT}
s_cselect_b32 s13, s{P_WS+1}, s{P_OUT+1}
s_mov_b32 s14, {hex(2*MB)}
s_cselect_b32 s14, {hex(WS_SIZE)}, s14
s_mov_b32 s15, 0x20000
s_cselect_b32 s37, {XF}, 0
s_lshl_b32 s33, s35, 10
s_add_u32 s37, s37, s33
s_lshl_b32 s34, {S_L}, 21
s_add_u32 s36, s34, s33
s_add_u32 s36, s36, {XA}
s_lshl_b32 s33, s35, 14
s_lshl_b32 s34, {S_L}, 21
s_add_u32 s38, s33, s34
s_add_u32 s38, s38, {FFRING}
s_lshl_b32 s33, {S_L}, 7
s_lshl_b32 s34, s35, 2
s_add_u32 s33, s33, s34
s_add_u32 s40, s33, {F_FFD}
s_lshl_b32 s34, s35, 7
s_add_u32 s39, s34, {F_FFR}
s_lshl_b32 s33, {S_L}, 8
s_add_u32 s41, s33, {F_FFM}
v_lshrrev_b32 v6, 4, v1
v_lshlrev_b32 v6, 10, v6
v_and_b32 v7, 15, v1
v_lshl_add_u32 v6, v7, 4, v6
v_lshlrev_b32 v7, 4, v1
s_mov_b32 s43, {FFR-1}
s_mov_b32 s22, 0
s_lshl_b32 s33, s47, 7
v_mul_lo_u32 v2, s33, v1
v_mov_b32 v8, 0
v_cmp_gt_u32 vcc, 48, v1
v_cndmask_b32_e64 v5, 0, -1, vcc
v_mov_b32 v4, 0x40000000
v_cndmask_b32 v4, v4, v6, vcc
v_min_u32 v3, 43, v1
v_lshlrev_b32 v3, 2, v3
s_mov_b32 s20, 0""")
    selectors(a, S1, S2, 10)
    wait_init(34)
    a("s_mov_b32 s42, 1")
    decide_mode(a, 'ffr_sel', vt=10)
    a(f"""s_mov_b32 s42, 0
ffr_sel:
v_mov_b32 v56, 0
s_cmp_lt_u32 s46, 32
s_cselect_b32 s33, 2, 0
s_add_u32 s33, s33, {S_L}""")
    for v_ in (1, 2, 3): a(f"s_cmp_eq_u32 s33, {v_}\ns_cbranch_scc1 ffr{v_}_loop")
    for v_ in range(4):
        L0, NT, P = (v_ & 1) == 0, 1 + (v_ >> 1), f"ffr{v_}"
        def pub():
            if L0: a(f"s_mov_b64 exec, {(1 << NT) - 1}\nbuffer_store_dword v9, v2, {WS}, s39 offen sc1\ns_mov_b64 exec, -1")
        NPB = 1 if L0 else 0
        a(f"""{P}_loop:
s_add_u32 s21, s20, 1
s_add_u32 s45, s20, 2
v_mov_b32 v9, s20
v_cmp_gt_u32 vcc, s45, v56""")
        ring_next(a, 's43', 's22', 's23', 's38', 19, FFR)
        a(f"""s_add_u32 s50, s23, s48
s_add_u32 s51, s36, s49
s_cbranch_vccz {P}_go""")
        if L0:
            a(f"buffer_load_dword v56, v3, {WS}, s41 offen sc1\ns_waitcnt vmcnt(0)\nv_cmp_gt_u32 vcc, s45, v56")
            pub()
            a(f"s_cbranch_vccz {P}_go")
        a(f"""{P}_p:
buffer_load_dword v56, v3, {WS}, s41 offen sc1""")
        spin_dec(a, 37)
        a(f"""s_waitcnt vmcnt(0)
v_cmp_gt_u32 vcc, s45, v56
s_cbranch_vccnz {P}_p
{P}_go:""")
        tr_stamp(a, opt, 0)
        for t in range(NT):
            a(f"buffer_load_dwordx4 v[{X+4*t}:{X+4*t+3}], v7, {WS}, {'s51' if t else 's36'} offen sc1")
            reduce_loads(a, 3, ['v6', 'v6', 'v4'], 's50' if t else 's23', D + 48*t)
        a(f"s_sub_u32 s44, s37, {XF - (XN + 2*MB)}\ns_add_u32 s52, s44, s49\ns_add_u32 s53, s37, s49")
        def st(t):
            o = D + 48*t
            if L0: a(f"buffer_store_dwordx4 v[{o+4}:{o+7}], v7, {WS}, {'s52' if t else 's44'} offen sc1")
            a(f"buffer_store_dwordx4 v[{o}:{o+3}], v7, s[12:15], {'s53' if t else 's37'} offen{' sc1' if L0 else ''}")
        RR = (R, 48)
        for t in range(NT):
            later = 13*(NT-1-t)
            a(f"s_waitcnt vmcnt({12 + later + (NPB if t else 0)})")
            if t == 0: pub()
            swap4(a, X + 4*t)
            unpack8(a, U, X + 4*t)
            reduce_sum(a, 3, D + 48*t, S1, S2, RR[t], 10, 's22', later + NPB, lastmask='v5', cin=U)
            a(f"s_cbranch_vccnz {P}_p")
        tr_stamp(a, opt, 1)
        done_store(a, 's21', 13, 'v8', 's40', 's42', 1)
        def fin(t):
            def f(b):
                o = D + 48*t
                for i in range(4): b(f"v_cvt_pk_bf16_f32 v{o+i}, v{RR[t]+2*i}, v{RR[t]+2*i+1}")
                swap4(b, o)
                if L0:
                    unpack8(b, RR[t], o)
                    layernorm8f(b, RR[t], o + 4, o + 8)
            return f
        interleave(a, [fin(t) for t in range(NT)])
        a(f"buffer_load_dword v56, v3, {WS}, s41 offen sc1")
        for t in range(NT): st(t)
        tr_stamp(a, opt, 2)
        tr_flush(a, opt, 's20', range(3), 240, wait=True)
        a(f"""s_add_u32 s36, s36, 32768
s_add_u32 s37, s37, 32768
s_mov_b32 s20, s21
s_waitcnt vmcnt({NT*(2 if L0 else 1)})
s_cmp_lt_u32 s20, 64
s_cbranch_scc1 {P}_loop
v_mov_b32 v9, s20
s_waitcnt vmcnt(0)""")
        pub()
        tr_dump(a, opt, 3, 240, 10)
        diag(a, opt, 6, 10)
        a("s_branch the_end")
```

```python
from common import *

def ln1_and_init(a, opt):
    srd(a, 12, P_X, hex(2*MB))
    a(f"""s_lshl_b32 s31, {S_L}, 5
s_add_u32 s31, s31, {S_I}
s_lshl_b32 s31, s31, 2
s_add_u32 s36, s31, {S_W}
s_lshl_b32 s37, s36, 10
v_lshlrev_b32 v2, 4, v1""")
    for p in range(8):
        a(f"s_add_u32 s31, s37, {p*256*1024}\nbuffer_load_dwordx4 v[{16+4*p}:{19+4*p}], v2, s[12:15], s31 offen")
    NW = 0
    if NW: warm_weights(a, 2)
    for p in range(8):
        a(f"s_waitcnt vmcnt({7 + NW})")
        for i in range(4):
            a(f"v_lshlrev_b32 v{4+2*i}, 16, v{16+4*p+i}\nv_and_b32 v{5+2*i}, 0xffff0000, v{16+4*p+i}")
        layernorm8(a, 4, 16+4*p, 12)
        a(f"s_add_u32 s31, s37, {XN + p*256*1024}\nbuffer_store_dwordx4 v[{16+4*p}:{19+4*p}], v2, {WS}, s31 offen sc1")
    if not opt.get('noinit'): wait_dbg(a, D_INIT*4, NZERO, 5, vt=4)
    a(f"""s_waitcnt vmcnt(0)
s_lshl_b32 s31, s36, 7
s_add_u32 s31, s31, {F_LN1}
v_mov_b32 v4, 8
v_mov_b32 v5, 0
s_mov_b64 exec, 1
buffer_store_dword v4, v5, {WS}, s31 offen sc1
s_mov_b64 exec, -1""")
    if opt.get('noinit'): return
    a(f"""v_lshlrev_b32 v2, 4, v0
v_mov_b32 v4, 0
v_mov_b32 v5, 0
v_mov_b32 v6, 0
v_mov_b32 v7, 0""")
    def fill(lst):
        for base, stride, size in lst:
            per = size // 32
            a(f"""s_mul_i32 s31, {S_L}, {stride}
s_mul_i32 s32, {S_I}, {per}
s_add_u32 s31, s31, s32
s_add_u32 s31, s31, {base}""")
            for i in range(per // 4096):
                a(f"buffer_store_dwordx4 v[4:7], v3, {WS}, s31 offen sc1\ns_add_u32 s31, s31, 4096")
    def signal(idx, name):
        a(f"""s_waitcnt vmcnt(0)
s_barrier
s_cmp_eq_u32 {S_W}, 0
s_cbranch_scc0 {name}
s_lshl_b32 s31, {S_L}, 2
s_mov_b64 exec, 1
v_mov_b32 v8, 1
buffer_atomic_add v8, off, {DBG}, s31 offset:{idx*4} sc1
s_mov_b64 exec, -1
{name}:""")
    a("v_mov_b32 v3, v2")
    fill([(CRING, MB, CMEM_OFF)])
    srd(a, 12, P_MEM0, 8192)
    a(f"""s_cmp_lt_u32 {S_I}, 8
s_cbranch_scc0 init_nomem
v_mov_b32 v8, -1
v_mov_b32 v9, -1
v_mov_b32 v10, -1
v_mov_b32 v11, -1
s_cmp_lt_u32 {S_I}, 2
s_cbranch_scc0 init_poison
v_bfe_u32 v12, v0, 2, 2
v_lshlrev_b32 v12, 11, v12
v_and_b32 v13, 1, v0
v_lshl_add_u32 v12, v13, 10, v12
v_lshrrev_b32 v13, 4, v0
v_lshl_add_u32 v12, v13, 5, v12
v_bfe_u32 v13, v0, 1, 1
v_lshl_add_u32 v12, v13, 2, v12
s_lshl_b32 s31, {S_I}, 9
buffer_load_dword v8, v12, s[12:15], s31 offen
buffer_load_dword v9, v12, s[12:15], s31 offen offset:8
buffer_load_dword v10, v12, s[12:15], s31 offen offset:16
buffer_load_dword v11, v12, s[12:15], s31 offen offset:24
s_waitcnt vmcnt(0)
v_min_u32 v8, -2, v8
v_min_u32 v9, -2, v9
v_min_u32 v10, -2, v10
v_min_u32 v11, -2, v11
v_bfe_u32 v2, v0, 3, 4
v_lshlrev_b32 v2, 8, v2
v_lshrrev_b32 v12, 7, v0
v_lshl_add_u32 v2, v12, 7, v2
v_and_b32 v12, 7, v0
v_lshl_add_u32 v2, v12, 4, v2
init_poison:
s_lshl_b32 s31, {S_L}, 20
s_lshl_b32 s32, {S_I}, 12
s_add_u32 s31, s31, s32
s_add_u32 s31, s31, {CRING + CMEM_OFF}
buffer_store_dwordx4 v[8:11], v2, {WS}, s31 offen sc1
init_nomem:""")
    signal(D_CINIT, 'init_d1')
    fill([(AORING, 4*MB, (AOR+1)*MB//2), (FFRING, 2*MB, FFR*MB//2)])
    signal(D_GINIT, 'init_d2')
```

```python
from common import *

XROW = 1040
def xtile_setup(a, vga, vrd, s_m0):
    a(f"""v_lshlrev_b32 {vga}, 4, v1
v_and_b32 {vrd}, 31, v1
v_mul_u32_u24 {vrd}, {XROW}, {vrd}
v_lshrrev_b32 v2, 5, v1
v_lshl_add_u32 {vrd}, v2, 4, {vrd}
s_mul_i32 {s_m0}, {S_W}, {8*XROW}""")

def xtile_dma(a, vga, s_m0, s_src, st):
    for r in range(8):
        a(f"s_add_u32 m0, {s_m0}, {r*XROW}")
        if r: a(f"s_add_u32 {st}, {s_src}, {r*1024}")
        a(f"buffer_load_dwordx4 {vga}, {WS}, {st if r else s_src} offen sc1 lds")

def xld(XS, r, vga, s0, s1):
    return f"buffer_load_dwordx4 v[{XS+4*r}:{XS+4*r+3}], {vga}, {WS}, {s0 if r < 4 else s1} offen offset:{1024*(r&3)} sc1"
def xwr(XS, r, vw):
    return f"ds_write_b128 {vw}, v[{XS+4*r}:{XS+4*r+3}] offset:{r*XROW}"
def xblock(a, XS, vga, vw, s0, s1):
    a(f"s_add_u32 {s1}, {s0}, 4096")
    for r in range(8): a(xld(XS, r, vga, s0, s1))
    for r in range(8): a(f"s_waitcnt vmcnt({7-r})\n" + xwr(XS, r, vw))

def role_qkv(a, opt, g0):
    a(f"""role_qkv:
s_sub_u32 s20, {S_G}, {g0}
s_lshl_b32 s20, s20, 4
s_and_b32 s31, {S_I}, 15
s_add_u32 s20, s20, s31
s_lshr_b32 {S_L}, {S_I}, 4""")
    if 'qkv_layers' in opt:
        for l in (0, 1):
            if l not in opt['qkv_layers']: a(f"s_cmp_eq_u32 {S_L}, {l}\ns_cbranch_scc1 the_end")
    a(f"""s_cmp_lt_u32 s20, 32
s_cselect_b32 s12, s{P_WK}, s{P_WQ}
s_cselect_b32 s13, s{P_WK+1}, s{P_WQ+1}
s_cselect_b32 s16, s{P_WV}, s{P_WQ}
s_cselect_b32 s17, s{P_WV+1}, s{P_WQ+1}
s_mov_b32 s14, 0x400000
s_mov_b32 s15, 0x20000
s_mov_b32 s18, 0x400000
s_mov_b32 s19, 0x20000
s_sub_u32 s31, s20, 32
s_lshl_b32 s31, s31, 1
s_add_u32 s32, s31, 1
s_cmp_lt_u32 s20, 32
s_cselect_b32 s46, s20, s31
s_cselect_b32 s47, s20, s32
s_cselect_b32 s48, 8192, 0
s_cselect_b32 s49, 16384, 0
s_lshl_b32 s31, {S_W}, 6
s_lshl_b32 s50, s46, 8
s_add_u32 s50, s50, s31
s_lshl_b32 s51, s47, 8
s_add_u32 s51, s51, s31
v_lshrrev_b32 v2, 2, v1
v_lshlrev_b32 v2, 13, v2
v_and_b32 v3, 3, v1
v_lshl_add_u32 v2, v3, 4, v2
s_mul_i32 s52, {S_W}, 40960
v_lshrrev_b32 v3, 5, v1
v_lshlrev_b32 v3, 9, v3
v_bfe_u32 v4, v1, 2, 2
v_lshl_add_u32 v3, v4, 6, v3
v_bfe_u32 v4, v1, 4, 1
v_lshl_add_u32 v3, v4, 5, v3
v_and_b32 v4, 3, v1
v_lshl_add_u32 v3, v4, 3, v3
v_add_u32 v3, s52, v3""")
    def dma(i, q):
        z, k = i // 32, i % 32
        sr = 's50' if z == 0 else 's51'
        a(f"buffer_load_dwordx4 v2, {'s[12:15]' if z==0 else 's[16:19]'}, {sr} offen lds")
        a(f"s_add_u32 {sr}, {sr}, {16*8192}")
    def consume(i, off):
        r = 4 * i
        a(f"ds_read_b64_tr_b16 a[{r}:{r+1}], v3 offset:{off}")
        a(f"ds_read_b64_tr_b16 a[{r+2}:{r+3}], v3 offset:{off+256}")
        return 2
    stage_tr(a, 64, 40, 1024, 's52', dma, consume)
    xtile_setup(a, 'v4', 'v5', 's36')
    a(f"""s_lshl_b32 s37, {S_L}, 21
s_add_u32 s37, s37, {XN}
s_lshl_b32 s31, {S_W}, 13
s_add_u32 s37, s37, s31
s_mul_i32 s31, {S_L}, {48*MB}
s_add_u32 s31, s31, {QKV}
s_lshl_b32 s32, {S_W}, 11
s_add_u32 s31, s31, s32
s_mul_i32 s38, s46, 24576
s_add_u32 s38, s38, s31
s_add_u32 s38, s38, s48
s_mul_i32 s39, s47, 24576
s_add_u32 s39, s39, s31
s_add_u32 s39, s39, s49
s_mov_b32 s40, {F_FFR}
s_cmp_eq_u32 {S_L}, 0
s_cselect_b32 s40, {F_LN1}, s40
s_cselect_b32 s41, 7, 0
s_cselect_b32 s42, 3, 0
s_cselect_b32 s56, -100, 1
s_lshl_b32 s31, {S_L}, 5
s_add_u32 s31, s31, s20
s_lshl_b32 s31, s31, 9
s_add_u32 s31, s31, {F_KV}
s_lshl_b32 s32, {S_L}, 4
s_add_u32 s32, s32, s20
s_sub_u32 s32, s32, 32
s_lshl_b32 s32, s32, 9
s_add_u32 s32, s32, {F_Q}
s_cmp_lt_u32 s20, 32
s_cselect_b32 s43, s31, s32
s_lshl_b32 s31, {S_W}, 7
s_add_u32 s43, s43, s31
v_and_b32 v6, 7, v1
v_lshlrev_b32 v6, 7, v6
s_lshl_b32 s31, {S_W}, 10
v_add_u32 v6, s31, v6
v_mov_b32 v8, 0
v_add_u32 v12, s36, v4
s_mov_b32 s21, -1
s_barrier""")
    diag(a, opt, 7, 10)
    if not opt.get('noinit'): wait_dbg(a, D_INIT*4, NZERO, 3, vt=10)
    def flag_params(d=1):
        a(f"""s_add_u32 s44, s21, {d}
s_and_b32 s45, s44, s41
s_lshl_b32 s45, s45, 12
s_add_u32 s45, s45, s40
s_lshr_b32 s44, s44, s42""")
    def flag_load(): a(f"buffer_load_dword v7, v6, {WS}, s45 offen sc1")
    def publish(delta):
        a(f"""s_add_u32 s31, s21, {delta}
v_mov_b32 v9, s31
s_mov_b64 exec, 1
buffer_store_dword v9, v8, {WS}, s43 offen sc1
s_mov_b64 exec, -1""")
    def issue_dma():
        xtile_dma(a, 'v4', 's36', 's37', 's31')
        a(f"s_xor_b32 s36, s36, 0x10000\ns_add_u32 s37, s37, 32768\ns_mov_b32 s22, 1")
    a(f"s_cmp_lt_u32 s20, 32\ns_cbranch_scc0 qq_wait")
    FR, A0, A1, PK = 16, 48, 64, 80
    for var in ('kv', 'qq'):
        a(f"{var}_wait:")
        flag_params()
        a(f"s_mov_b64 exec, 0xff\n{var}_poll:")
        flag_load()
        a(f"""s_waitcnt vmcnt(0)
v_cmp_ge_u32 vcc, s44, v7
s_cbranch_vccz {var}_rdy""")
        spin_dec(a, 4)
        a(f"s_branch {var}_poll\n{var}_rdy:\ns_mov_b64 exec, -1")
        XS = 96
        a("v_readfirstlane_b32 s36, v12\ns_waitcnt lgkmcnt(0)")
        xtile_dma(a, 'v4', 's36', 's37', 's31')
        flag_params(2)
        flag_load()
        a("s_add_u32 s37, s37, 32768\nv_xor_b32 v12, 0x10000, v12\ns_waitcnt vmcnt(0)")
        a(f"""{var}_top:
s_barrier
s_add_u32 s21, s21, 1""")
        tr_stamp(a, opt, 0)
        lds = Cnt(a, 'lgkmcnt', 15)
        for k in range(6): lds.issue(f"ds_read_b128 v[{FR+4*k}:{FR+4*k+3}], v5 offset:{32*k}", k)
        a(f"s_cmp_eq_u32 s21, 63\ns_cselect_b32 s22, 1, 0\nv_mov_b32 v9, s21\nv_cmp_ge_u32 vcc, s44, v7")
        def epi(z):
            A = (A0, A1)[z]
            nat = (var == 'kv' and z == 1)
            L = []
            for u in range(2):
                for i in range(4):
                    r0, r1 = (A + 8*u + 2*i, A + 8*u + 2*i + 1) if nat else (A + 8*u + i, A + 8*u + 4 + i)
                    L.append(f"v_cvt_pk_bf16_f32 v{PK+8*z+4*u+i}, v{r0}, v{r1}")
                p = PK + 8*z + 4*u
                L.append(f"buffer_store_dwordx4 v[{p}:{p+3}], v4, {WS}, {'s38' if z==0 else 's39'} offen offset:{1024*u} sc1")
            return L
        def m0(k): a(f"v_mfma_f32_32x32x16_bf16 v[{A0}:{A0+15}], a[{4*k}:{4*k+3}], v[{FR+4*(k%8)}:{FR+4*(k%8)+3}], {f'v[{A0}:{A0+15}]' if k else '0'}")
        def m1(k):
            f = f"v[{FR+4*(k%8)}:{FR+4*(k%8)+3}]"; w_ = f"a[{128+4*k}:{128+4*k+3}]"
            x, y = (f, w_) if var == 'kv' else (w_, f)
            a(f"v_mfma_f32_32x32x16_bf16 v[{A1}:{A1+15}], {x}, {y}, {f'v[{A1}:{A1+15}]' if k else '0'}")
        XW = opt.get('QXW', 17)
        for k in range(28):
            lds.wait(k)
            m0(k)
            if k + 6 < 32:
                n = FR + 4 * ((k + 6) % 8)
                lds.issue(f"ds_read_b128 v[{n}:{n+3}], v5 offset:{32*(k+6)}", k + 6)
            if k == 0:
                a(f"""s_cmp_eq_u64 vcc, 0
s_cselect_b32 s33, 1, 0
s_andn2_b32 s33, s33, s22
s_cselect_b32 s54, s37, 0x40000000""")
            if k == XW + 1:
                a(f"""s_mov_b64 exec, 1
buffer_store_dword v9, v8, {WS}, s43 offen sc1
s_mov_b64 exec, -1""")
            m1(k)
            if k == 0: a("s_add_u32 s55, s54, 4096")
            if k < 8: a(xld(XS, k, 'v4', 's54', 's55'))
            if k == XW - 2: flag_params(2)
            if k == XW - 1: flag_load()
            if k == 26: a("s_sub_u32 s31, s44, s56\nv_readfirstlane_b32 s36, v12")
            if k == 27: a("s_waitcnt vmcnt(1)\nv_cmp_ge_u32 vcc, s31, v7")
            if XW <= k < XW + 8:
                r = k - XW
                if r == 0: tr_stamp(a, opt, 1)
                a(f"s_waitcnt vmcnt({7 - r + 1 + (1 if r else 0)})")
                if r == 0: tr_stamp(a, opt, 2)
                lds.issue(xwr(XS, r, 'v12'), 'w')
        a(f"""s_or_b32 s22, s22, s33
s_lshl_b32 s31, s33, 15
s_add_u32 s37, s37, s31
s_cmp_eq_u64 vcc, 0
s_cselect_b32 s33, 1, 0
s_andn2_b32 s33, s33, s22
s_waitcnt lgkmcnt(0)
s_cbranch_scc1 {var}_t1""")
        for second in (0, 1):
            dm = [f"s_add_u32 m0, s36, {r*XROW}\ns_add_u32 s31, s37, {r*1024}\nbuffer_load_dwordx4 v4, {WS}, s31 offen sc1 lds" for r in range(8)] if second else []
            def nd(n):
                for _ in range(n):
                    if dm: a(dm.pop(0))
            if second: a(f"{var}_t1:")
            for k in range(28, 32): m0(k); nd(1)
            e0 = epi(0)
            m1(28); nd(2); m1(29); nd(2)
            if second: a("s_add_u32 s37, s37, 32768\ns_mov_b32 s22, 1")
            for x in e0[:5]: a(x)
            m1(30)
            for x in e0[5:]: a(x)
            m1(31)
            if not second: a(f"s_branch {var}_t2")
        a(f"{var}_t2:\nv_xor_b32 v5, 0x10000, v5")
        tr_stamp(a, opt, 3)
        for x in epi(1): a(x)
        tr_stamp(a, opt, 4)
        tr_flush(a, opt, 's21', range(5), 240, wait=True)
        a(f"""s_add_u32 s38, s38, {32*24576}
s_add_u32 s39, s39, {32*24576}
s_cmp_eq_u32 s21, 63
s_cbranch_scc1 qkv_fin
s_cmp_eq_u32 s22, 1
s_cbranch_scc0 {var}_late
v_xor_b32 v12, 0x10000, v12
s_waitcnt vmcnt(4)
s_branch {var}_top
{var}_late:
s_waitcnt vmcnt(0)""")
        publish(1)
        a(f"s_branch {var}_wait")
    a("qkv_fin:\ns_waitcnt vmcnt(0)")
    publish(1)
    tr_dump(a, opt, 5, 240, 10)
    a("s_branch the_end")
```

```python
from asmlib import *
from layout import *

KNAME = "interleave_layers__memory_aug_recurrent_mem_tr__dense_activation_relu__prompt_kernel"
S_BUD = 's3'
S_W   = 's4'
S_G   = 's5'
S_I   = 's6'
S_L   = 's7'
WS    = 's[8:11]'
DBG   = 's[24:27]'
P_X, P_MEM0, P_WQ, P_WK, P_WV, P_WO, P_W1, P_W2, P_OUT, P_DBG, P_WS = 64, 66, 68, 70, 72, 74, 80, 82, 84, 86, 88
BUDGET = 400000

def srd(a, d, p, size):
    a(f"""s_mov_b32 s{d}, s{p}
s_mov_b32 s{d+1}, s{p+1}
s_mov_b32 s{d+2}, {size}
s_mov_b32 s{d+3}, 0x20000""")

def spin_dec(a, code):
    a(f"""s_sub_u32 {S_BUD}, {S_BUD}, 1
s_cbranch_scc1 bail_{code}""")
    a.bails.add(code)

def emit_bails(a):
    for c in sorted(a.bails):
        a(f"""bail_{c}:
s_movk_i32 s28, {c}
s_branch bail_common""")
    a(f"""bail_common:
s_mov_b64 exec, 1
s_lshl_b32 s29, {S_G}, 16
s_or_b32 s28, s28, s29
s_lshl_b32 s29, {S_I}, 8
s_or_b32 s28, s28, s29
s_lshl_b32 s29, {S_W}, 24
s_or_b32 s28, s28, s29
s_or_b32 s28, s28, 0x80000000
s_and_b32 s29, {S_G}, 7
s_lshl_b32 s29, s29, 2
s_add_u32 s29, s29, {D_ERR*4}
v_mov_b32 v2, s28
v_mov_b32 v3, s29
buffer_store_dword v2, v3, {DBG}, 0 offen sc1
s_waitcnt vmcnt(0)
s_endpgm""")

def allreduce(a, v, t, op='add'):
    for r in (8, 4, 2, 1):
        a(f"v_{op}_f32_dpp {v}, {v}, {v} row_ror:{r} row_mask:0xf bank_mask:0xf")
    a(f"""v_mov_b32 {t}, {v}
v_permlane16_swap_b32 {t}, {v}
v_{op}_f32 {v}, {v}, {t}
v_mov_b32 {t}, {v}
v_permlane32_swap_b32 {t}, {v}
v_{op}_f32 {v}, {v}, {t}""")

def layernorm8(a, x, o, t):
    s, u = f'v{t}', f'v{t+1}'
    a(f"""v_add_f32 {s}, v{x}, v{x+1}
v_add_f32 {u}, v{x+2}, v{x+3}
v_add_f32 {s}, {s}, v{x+4}
v_add_f32 {u}, {u}, v{x+5}
v_add_f32 {s}, {s}, v{x+6}
v_add_f32 {u}, {u}, v{x+7}
v_add_f32 {s}, {s}, {u}""")
    allreduce(a, s, u)
    a(f"v_mul_f32 {s}, 0x3b000000, {s}")
    for i in range(8): a(f"v_sub_f32 v{x+i}, v{x+i}, {s}")
    a(f"v_mul_f32 {s}, v{x}, v{x}\nv_mul_f32 {u}, v{x+1}, v{x+1}")
    for i in range(2, 8): a(f"v_fmac_f32 {s if i%2==0 else u}, v{x+i}, v{x+i}")
    a(f"v_add_f32 {s}, {s}, {u}")
    allreduce(a, s, u)
    a(f"""v_mov_b32 {u}, 0x3727c5ac
v_fmac_f32 {u}, 0x3b000000, {s}
v_rsq_f32 {u}, {u}""")
    for i in range(8): a(f"v_mul_f32 v{x+i}, v{x+i}, {u}")
    for i in range(4): a(f"v_cvt_pk_bf16_f32 v{o+i}, v{x+2*i}, v{x+2*i+1}")

def load_counters(a, v):
    a(f"""v_and_b32 v{v+1}, 15, v1
v_lshlrev_b32 v{v+1}, 2, v{v+1}
v_add_u32 v{v+1}, {D_TICK*4}, v{v+1}
v_cmp_eq_u32 vcc, {D_TICK*4}, v{v+1}
v_cndmask_b32 v{v+1}, v{v+1}, 0, vcc
buffer_load_dword v{v}, v{v+1}, {DBG}, 0 offen sc1
s_waitcnt vmcnt(0)""".replace("v_cndmask_b32 v%d, v%d, 0, vcc" % (v+1, v+1), "v_cndmask_b32_e64 v%d, v%d, 0, vcc" % (v+1, v+1)))

def total_counters(a, v, sd, st):
    a(f"v_readlane_b32 s{sd}, v{v}, 0")
    for x in range(1, 16):
        a(f"v_readlane_b32 s{st}, v{v}, {x}\ns_nop 0\ns_add_u32 s{sd}, s{sd}, s{st}")

def prologue(a, opt):
    a(f"""s_cmp_ge_u32 s2, 256
s_cbranch_scc1 the_end
s_load_dwordx16 s[64:79], s[0:1], 0
s_load_dwordx8 s[80:87], s[0:1], 64
s_load_dwordx2 s[88:89], s[0:1], 96
s_memrealtime s[90:91]
s_getreg_b32 s30, hwreg(HW_REG_XCC_ID)
s_and_b32 s30, s30, 15
s_mov_b32 {S_BUD}, {BUDGET}
s_mov_b32 {S_G}, 0
s_mov_b32 {S_I}, 0
s_mov_b32 {S_L}, 0
v_lshrrev_b32 v1, 6, v0
v_readfirstlane_b32 {S_W}, v1
v_and_b32 v1, 63, v0""")
    if opt.get('fake_xcc') == 'all9': a("s_mov_b32 s30, 9")
    if opt.get('fake_xcc') == 'some':
        a("""s_and_b32 s31, s2, 0x19
s_cmp_eq_u32 s31, 0x19
s_cselect_b32 s30, 9, s30""")
    mp = opt.get('MAP', [0, 1, 2, 3, 4, 5, 6, 7])
    assert sorted(mp) == list(range(8))
    a(f"""s_lshl_b32 s31, s30, 2
s_lshr_b32 s31, {hex(sum(g << (4*x) for x, g in enumerate(mp)))}, s31
s_and_b32 s31, s31, 7
s_cmp_lt_u32 s30, 8
s_cselect_b32 s30, s31, s30""")
    a("s_waitcnt lgkmcnt(0)")
    srd(a, 8, P_WS, hex(WS_SIZE))
    srd(a, 24, P_DBG, 256)
    a(f"""s_cmp_eq_u32 {S_W}, 0
s_cbranch_scc0 pro_nt
s_lshl_b32 s31, s30, 2
s_add_u32 s31, s31, {D_TICK*4}
s_cmp_eq_u32 s30, 0
s_cselect_b32 s31, {D_TICK0*4}, s31
s_mov_b64 exec, 1
v_mov_b32 v2, s31
v_mov_b32 v3, 1
buffer_atomic_add v3, v2, {DBG}, 0 offen sc0 sc1
s_add_u32 s90, s90, {opt.get('CALD', 300)}
s_or_b32 s90, s90, 3
v_mov_b32 v8, s90
v_mov_b32 v9, 0
s_cmp_lt_u32 s30, 2
s_cbranch_scc0 pro_nc
s_lshl_b32 s31, s30, 2
buffer_atomic_cmpswap v[8:9], off, {DBG}, s31 offset:{D_CAL*4} sc0 sc1
pro_nc:
v_mov_b32 v2, 0
s_waitcnt vmcnt(0)
v_mov_b32 v9, s90
v_cmp_eq_u32 vcc, 0, v8
v_cndmask_b32 v8, v8, v9, vcc
ds_write2_b32 v2, v3, v8 offset1:1
s_mov_b64 exec, -1
pro_nt:
s_waitcnt vmcnt(0) lgkmcnt(0)
s_barrier
v_mov_b32 v2, 0
ds_read2_b32 v[8:9], v2 offset1:1""")
    a(f"""s_waitcnt lgkmcnt(0)
v_readfirstlane_b32 {S_I}, v8
v_readfirstlane_b32 s99, v9
s_barrier
s_mov_b32 {S_G}, s30
s_cmp_lt_u32 s30, 8
s_cselect_b32 s31, 32, 0
s_cmp_lt_u32 {S_I}, s31
s_cbranch_scc1 pro_done
s_sub_u32 s32, {S_I}, s31
pro_ov:""")
    spin_dec(a, 1)
    a("s_sleep 8")
    load_counters(a, 4)
    total_counters(a, 4, 33, 34)
    a("""s_cmp_lt_u32 s33, 256
s_cbranch_scc1 pro_ov""")
    for x in range(15):
        cap = 32 if x < 8 else 0
        a(f"""v_readlane_b32 s34, v4, {x}
s_nop 0
s_max_u32 s34, s34, {cap}
s_sub_u32 s34, s34, {cap}
s_cmp_gt_u32 s30, {x}
s_cselect_b32 s34, s34, 0
s_add_u32 s32, s32, s34""")
    for g in range(8):
        a(f"""v_readlane_b32 s34, v4, {g}
s_nop 0
s_min_u32 s34, s34, 32
s_mov_b32 {S_G}, {g}
s_add_u32 {S_I}, s34, s32
s_cmp_lt_u32 {S_I}, 32
s_cbranch_scc1 pro_done
s_sub_u32 s32, {S_I}, 32""")
    a("s_branch the_end\npro_done:")
    a(f"s_and_b32 {S_I}, {S_I}, 31\ns_and_b32 {S_G}, {S_G}, 7")

def decide_mode(a, slow_label, vt=4):
    L = a.newlabel('dm'); F = a.newlabel('dmf')
    a(f"{L}:")
    load_counters(a, vt)
    a(f"""v_readlane_b32 s34, v{vt}, {S_G}
s_nop 0
s_cmp_ge_u32 s34, 32
s_cbranch_scc1 {F}""")
    total_counters(a, vt, 33, 34)
    a(f"""s_cmp_ge_u32 s33, 256
s_cbranch_scc1 {slow_label}""")
    spin_dec(a, 2)
    a(f"s_sleep 8\ns_branch {L}\n{F}:")

def wait_dbg(a, idx_expr_sgpr_or_const, thr, code, vt=4, sleep=8):
    L = a.newlabel('wd'); D = a.newlabel('wdd')
    a(f"""v_mov_b32 v{vt+1}, {idx_expr_sgpr_or_const}
s_mov_b64 exec, 1
{L}:
buffer_load_dword v{vt}, v{vt+1}, {DBG}, 0 offen sc1
s_waitcnt vmcnt(0)
v_cmp_gt_u32 vcc, {thr}, v{vt}
s_cbranch_vccz {D}""")
    spin_dec(a, code)
    a(f"s_sleep {sleep}\ns_branch {L}\n{D}:\ns_mov_b64 exec, -1")

def stage_tr(a, n, slots, slot_bytes, s_m0base, dma, consume, per=1, hook=None):
    def issue(i):
        for q in range(per):
            a(f"s_add_u32 m0, {s_m0base}, {(i % slots) * slot_bytes + q * 1024}")
            dma(i, q)
    for i in range(min(slots, n)):
        issue(i)
        if hook and i == 1: hook()
    for i in range(n):
        out = min(n, i + slots) - (i + 1) if i == 0 else min(n, i - 1 + slots) - (i + 1)
        a(f"s_waitcnt vmcnt({max(out,0)*per})")
        nrd = consume(i, (i % slots) * slot_bytes)
        if i >= 1 and i - 1 + slots < n:
            a(f"s_waitcnt lgkmcnt({nrd})")
            issue(i - 1 + slots)
    a("s_waitcnt lgkmcnt(0)")

def tr_stamp(a, opt, k):
    if opt.get('trace'): a(f"{'s_memrealtime' if opt.get('rt') else 's_memtime'} s[{90+2*k}:{91+2*k}]")
def tr_flush(a, opt, lane, ks, vb, wait=False):
    if opt.get('trace'):
        if wait: a("s_waitcnt lgkmcnt(0)")
        a(f"s_mov_b32 s100, m0\ns_mov_b32 m0, {lane}")
        for k in ks: a(f"v_writelane_b32 v{vb+k}, s{90+2*k}, m0")
        a("s_mov_b32 m0, s100")
def tr_begin(a, opt):
    if opt.get('trace'):
        a(f"""s_memrealtime s[90:91]
s_memtime s[92:93]
s_lshl_b32 s94, {S_G}, 5
s_add_u32 s94, s94, {S_I}
s_lshl_b32 s94, s94, 2
s_add_u32 s94, s94, {S_W}
s_lshl_b32 s94, s94, 11
s_add_u32 s101, s94, {TRACE}
s_waitcnt lgkmcnt(0)
v_mov_b32 v2, s90
v_mov_b32 v3, s92
v_mov_b32 v4, 0
s_mov_b64 exec, 1
buffer_store_dwordx2 v[2:3], v4, {WS}, s101 offen offset:2040
s_mov_b64 exec, -1
s_waitcnt vmcnt(0)""")
def tr_dump(a, opt, n, vb, vt):
    if opt.get('trace'):
        a(f"v_lshlrev_b32 v{vt}, 2, v1")
        for k in range(n): a(f"buffer_store_dword v{vb+k}, v{vt}, {WS}, s101 offen offset:{256*k}")
        a(f"""s_memrealtime s[90:91]
s_memtime s[92:93]
s_waitcnt lgkmcnt(0) vmcnt(0)
v_mov_b32 v{vb}, s90
v_mov_b32 v{vb+1}, s92
s_mov_b64 exec, 1
buffer_store_dwordx2 v[{vb}:{vb+1}], v{vt}, {WS}, s101 offen offset:2032
s_mov_b64 exec, -1""")


class Cnt:
    def __init__(self, a, name, mx):
        self.a, self.name, self.mx, self.q, self.done = a, name, mx, [], 0
    def issue(self, text, tag=None):
        self.a(text); self.q.append(tag)
    def wait(self, *tags):
        idx = max(max(i for i, t in enumerate(self.q) if t == tag) for tag in tags)
        if idx < self.done: return
        n = len(self.q) - 1 - idx
        self.a(f"s_waitcnt {self.name}({min(n, self.mx)})")
        self.done = idx + 1 if n <= self.mx else len(self.q) - self.mx
    def all(self):
        self.a(f"s_waitcnt {self.name}(0)"); self.done = len(self.q)

def tr_direct(a, opt, seg, n, v1, v2):
    if opt.get('trace'):
        a("s_waitcnt lgkmcnt(0)")
        for k in range(n): a(f"v_writelane_b32 v{v1}, s{90+2*k}, {k}")
        a(f"""v_lshlrev_b32 v{v2}, 8, v1
s_lshl_b32 s100, {seg}, 2
s_add_u32 s100, s100, s101
s_mov_b64 exec, {(1<<n)-1}
buffer_store_dword v{v1}, v{v2}, {WS}, s100 offen
s_mov_b64 exec, -1""")

def layernorm8f(a, x, o, t):
    P2 = lambda r: f"v[{r}:{r+1}]"
    a(f"""v_pk_add_f32 {P2(t)}, {P2(x)}, {P2(x+2)}
v_pk_mul_f32 {P2(t+2)}, {P2(x)}, {P2(x)}
v_pk_add_f32 {P2(t)}, {P2(t)}, {P2(x+4)}
v_pk_fma_f32 {P2(t+2)}, {P2(x+2)}, {P2(x+2)}, {P2(t+2)}
v_pk_add_f32 {P2(t)}, {P2(t)}, {P2(x+6)}
v_pk_fma_f32 {P2(t+2)}, {P2(x+4)}, {P2(x+4)}, {P2(t+2)}
v_add_f32 v{t}, v{t}, v{t+1}
v_pk_fma_f32 {P2(t+2)}, {P2(x+6)}, {P2(x+6)}, {P2(t+2)}
v_add_f32 v{t+2}, v{t+2}, v{t+3}""")
    a(f"""v_permlane32_swap_b32 v{t}, v{t+2}
v_add_f32 v{t}, v{t}, v{t+2}""")
    for r in (8, 4, 2, 1):
        a(f"v_add_f32_dpp v{t}, v{t}, v{t} row_ror:{r} row_mask:0xf bank_mask:0xf")
    a(f"""v_mov_b32 v{t+1}, v{t}
v_permlane16_swap_b32 v{t+1}, v{t}
v_add_f32 v{t+2}, v{t}, v{t+1}
v_add_f32 v{t}, v{t}, v{t+1}
v_mov_b32 v{t+3}, 0x3727c5ac
v_permlane32_swap_b32 v{t}, v{t+2}
v_mul_f32 v{t}, 0x3b000000, v{t}
v_mul_f32 v{t+2}, 0x3b000000, v{t+2}
v_fma_f32 v{t+2}, -v{t}, v{t}, v{t+2}
v_max_f32 v{t+2}, 0, v{t+2}
v_add_f32 v{t+2}, v{t+2}, v{t+3}
v_rsq_f32 v{t+2}, v{t+2}""")
    for i in range(0, 8, 2): a(f"v_pk_add_f32 {P2(x+i)}, {P2(x+i)}, {P2(t)} op_sel_hi:[1,0] neg_lo:[0,1] neg_hi:[0,1]")
    for i in range(0, 8, 2): a(f"v_pk_mul_f32 {P2(x+i)}, {P2(x+i)}, {P2(t+2)} op_sel_hi:[1,0]")
    for i in range(4): a(f"v_cvt_pk_bf16_f32 v{o+i}, v{x+2*i}, v{x+2*i+1}")

def interleave(a, fns):
    L = []
    for f in fns:
        b = Asm(); f(b); L.append(list(b.items))
    while any(L):
        for x in L:
            if x: a.items.append(x.pop(0))

def warm_weights(a, g0):
    srd(a, 40, P_WO, 0x400000)
    a(f"""s_lshl_b32 s33, {S_I}, 2
s_add_u32 s33, s33, {S_W}
s_lshl_b32 s33, s33, 15
v_lshlrev_b32 v60, 7, v1""")
    for k in range(4):
        a(f"buffer_load_dword v61, v60, s[40:43], s33 offen\ns_add_u32 s33, s33, 8192")

def diag(a, opt, word, vt):
    if opt.get('diag'):
        a(f"""s_memrealtime s[92:93]
s_waitcnt lgkmcnt(0)
v_mov_b32 v{vt}, s92
s_mov_b64 exec, 1
buffer_atomic_umax v{vt}, off, {DBG}, 0 offset:{word*4} sc1
s_mov_b64 exec, -1""")
```

```python
from common import *

MEMB, KB, VB, QX, KX, OX = 0x20000, 0x22000, 0x24000, 0x26000, 0x26A00, 0x20000
QROW = 288
JUNK = 0x27800
ORD, TAGM, IDX, L16, SEL, WK, HI, M0A, ST, PUB, QW, QR, QRM, OW, KG, VG, KMS, VMS, PD, FV = \
    0, 1, 2, 3, 4, 8, 9, 10, 14, 15, 16, 17, 18, 19, 20, 21, 22, 23, 24, 25
T0 = 26
MEMF = 28
RING = 60
NRING = 5
ACC = 100
VAC = 116
XT = 124
SC = 0x3e0293ee
K_LDS = [0, 1, 3, 4, 5]
K_REG = [2, 6, 7]
O_LDS = [(1, 1), (2, 1), (3, 1)]
O_REG = [(0, 0), (1, 0), (2, 0), (3, 0), (0, 1)]
def areg_k(s, t): return 128 + (K_REG.index(s)*2 + t)*8
def areg_o(phi, kp, y): return 128 + 48 + (O_REG.index((phi, kp))*2 + y)*8

def cst(a, opt, k):
    pos = opt.get('cpos', [0, 1, 2, 3, 4, 5, 6])
    if opt.get('trace') and k in pos:
        i = pos.index(k); a(f"{'s_memrealtime' if opt.get('rt') else 's_memtime'} s[{64+2*i}:{65+2*i}]")
def cflush(a, opt):
    if opt.get('trace'):
        a("s_waitcnt lgkmcnt(0)")
        for k in range(7): a(f"v_writelane_b32 v{MEMF+30}, s{64+2*k}, {k}")
        a(f"""v_lshlrev_b32 v{MEMF+31}, 4, v{L16}
s_lshl_b32 s33, s20, 2
s_max_u32 s33, s33, 4
s_add_u32 s33, s33, s101
s_sub_u32 s33, s33, 4
s_mov_b64 exec, 0x7f
buffer_store_dword v{MEMF+30}, v{MEMF+31}, {WS}, s33 offen
s_mov_b64 exec, -1""")

def role_chain(a, opt):
    D1 = None; D2 = opt.get('D2', 260)
    a("role_chain:")
    if 'chain_layers' in opt:
        for l in (0, 1):
            if l not in opt['chain_layers']: a(f"s_cmp_eq_u32 {S_L}, {l}\ns_cbranch_scc1 the_end")
    srd(a, 12, P_WQ, 0x400000); srd(a, 16, P_WV, 0x400000); srd(a, 20, P_WO, 0x400000); srd(a, 28, P_WK, 0x400000)
    a(f"""s_lshl_b32 s36, {S_W}, 15
s_lshl_b32 s37, {S_I}, 8
s_lshl_b32 s33, {S_W}, 20
s_add_u32 s37, s37, s33
s_lshl_b32 s39, {S_I}, 17
s_add_u32 s39, s39, s36
s_lshl_b32 s38, {S_W}, 13
v_lshrrev_b32 v2, 4, v1
v_and_b32 v3, 15, v1
v_lshlrev_b32 v6, 2, v2
v_xor_b32 v6, v6, v3
v_lshlrev_b32 v6, 4, v6
v_lshl_add_u32 v4, v2, 13, v6
v_and_b32 v6, 1, v2
v_lshlrev_b32 v6, 2, v6
v_xor_b32 v6, v6, v3
v_lshlrev_b32 v6, 4, v6
v_lshl_add_u32 v5, v2, 10, v6
v_xor_b32 v6, 0x80, v5
v_lshlrev_b32 v13, 4, v1
v_add_u32 v13, s36, v13""")
    def tr_addr(m, hi):
        if m == 'o':
            a(f"""v_bfe_u32 v7, v1, 4, 1
v_lshlrev_b32 v12, 4, v7
v_bfe_u32 v14, v1, 5, 1
v_lshl_add_u32 v12, v14, 2, v12
v_bfe_u32 v14, v1, 2, 1
v_add_u32 v12, v14, v12
v_lshl_add_u32 v7, v7, 1, v14
v_xor_b32 v7, {S_W}, v7
v_lshlrev_b32 v7, 6, v7
v_lshl_add_u32 v7, v12, 8, v7
v_and_b32 v12, 3, v1
v_lshl_add_u32 v7, v12, 4, v7
v_bfe_u32 v12, v1, 3, 1
v_lshl_add_u32 v7, v12, 3, v7""")
        else:
            a(f"""v_bfe_u32 v12, v1, 2, 2
v_xor_b32 v7, {S_W}, v12
v_lshlrev_b32 v7, 6, v7
v_lshl_add_u32 v7, v12, 8, v7
v_lshl_add_u32 v7, v2, 11, v7""")
            if m == 'v': a("v_and_b32 v12, 3, v1\nv_lshl_add_u32 v7, v12, 3, v7")
            else: a("v_bfe_u32 v12, v1, 1, 1\nv_lshl_add_u32 v7, v12, 5, v7\nv_and_b32 v12, 1, v1\nv_lshl_add_u32 v7, v12, 3, v7")
        for sg in range(4):
            a(f"s_xor_b32 s33, {S_W}, {sg}" if m == 'o' else f"s_add_u32 s33, {S_W}, {sg}\ns_and_b32 s33, s33, 3")
            a(f"s_lshl_b32 s33, s33, 13\nv_add_u32 v{8+sg}, s33, v7")
    pieces = [(m, x) for m in 'qvko' for x in range(4)]
    KLs = [(s_, t) for s_ in K_LDS for t in range(2)]
    def tmp(n): return 16 + 8 * (n if n < 14 else n - 6)
    def dmas(p):
        m, x = pieces[p]
        L = []
        for i in range(8):
            if m == 'o': src, ad, sr = f"s_add_u32 s33, s39, {x*256 + 4*i*1024}", 'v5' if i < 4 else 'v6', 's[20:23]'
            else: src, ad, sr = f"s_add_u32 s33, s37, {(64*(x>>1) + 32*(x&1) + 4*i)*8192}", 'v4', dict(q='s[12:15]', v='s[16:19]', k='s[28:31]')[m]
            L.append(f"s_add_u32 m0, s38, {(p & 3)*32768 + i*1024}\n{src}\nbuffer_load_dwordx4 {ad}, {sr}, s33 offen lds")
        return L
    def reads(p):
        m, x = pieces[p]
        L = []
        for sg in range(4):
            if m == 'o':
                kp, t = sg >> 1, sg & 1
                f, r = ('a', areg_o(x, kp, t)) if (x, kp) in O_REG else ('v', tmp(10 + O_LDS.index((x, kp))*2 + t))
                for u in range(4): L.append((f, r + 2*u, sg, (8*(u>>1) + 2*(u&1))*256))
            else:
                s_ = 2*sg + (x >> 1)
                for t in range(2):
                    if m == 'q': f, r = 'a', (2*s_ + t)*8
                    elif m == 'v': f, r = 'v', 128 + (2*s_ + t)*8
                    elif s_ in K_REG: f, r = 'a', areg_k(s_, t)
                    else: f, r = 'v', tmp(KLs.index((s_, t)))
                    for ul in range(2): L.append((f, r + 4*(x&1) + 2*ul, sg, 1024*ul + (32 if m == 'v' else 16)*t))
        return [f"ds_read_b64_tr_b16 {f}[{r}:{r+1}], v{8+sg} offset:{(p & 1)*32768 + o}" for f, r, sg, o in L]
    def load_all(side):
        for p in range(3):
            for x in dmas(p): a(x)
        for p in range(16):
            if p % 4 == 0: tr_addr(pieces[p][0], 0)
            if p % 4 == 2:
                for sg in range(4): a(f"v_xor_b32 v{8+sg}, 0x10000, v{8+sg}")
            a(f"s_waitcnt vmcnt({side.get(p, 0) + 8*min(2, 15 - p)}) lgkmcnt(0)\ns_barrier")
            if p == 12:
                a(f"v_lshlrev_b32 v15, 4, v1\ns_lshl_b32 s33, {S_W}, 12\ns_add_u32 s33, s33, {MEMB}\nv_add_u32 v15, s33, v15")
                for x in range(4): a(f"ds_write_b128 v15, v[{tmp(8)+4*x}:{tmp(8)+4*x+3}] offset:{1024*x}")
            d = dmas(p + 3) if p + 3 < 16 else []
            for n_, x in enumerate(reads(p)):
                a(x)
                if n_ % 2 and d: a(d.pop(0))
            if f'e{p}' in side: side[f'e{p}']()
        a("s_waitcnt lgkmcnt(0)\ns_barrier")
        for n in list(range(8)) + list(range(10, 16)):
            for h_ in range(2): a(f"ds_write_b128 v13, v[{tmp(n)+4*h_}:{tmp(n)+4*h_+3}] offset:{2048*n + 1024*h_}")
            if n == 1:
                a("s_waitcnt lgkmcnt(0)")
                for x in range(4): a(f"ds_read_b128 v[{16+4*x}:{19+4*x}], v15 offset:{1024*x}")
        a("s_waitcnt lgkmcnt(0)")
        for x in range(4): a(f"ds_write_b128 v13, v[{16+4*x}:{19+4*x}] offset:{2048*8 + 1024*x}")
        a("s_waitcnt lgkmcnt(0)")
    def calib():
        NB = 16
        a(f"""s_cmp_eq_u32 {S_W}, 3
s_cbranch_scc0 ch_nocal
s_sub_u32 s34, s99, 8
ch_cal:
s_memrealtime s[64:65]
s_waitcnt lgkmcnt(0)
s_sub_u32 s33, s34, s64
s_cmp_lt_u32 s33, 1000
s_cbranch_scc1 ch_cal
s_memtime s[96:97]""")
        for k in range(NB): a(f"s_memrealtime s[{64+2*k}:{65+2*k}]\ns_nop 1")
        a("s_waitcnt lgkmcnt(0)")
        for k in range(NB): a(f"s_sub_u32 s33, s99, s{64+2*k}\ns_cmp_lt_u32 s33, 1000\ns_cselect_b32 s33, 12, 0\ns_add_u32 s96, s96, s33")
        a(f"v_mov_b32 v20, s96\nv_mov_b32 v21, {JUNK}\nds_write_b32 v21, v20\ns_waitcnt lgkmcnt(0)")
        if opt.get('trace'):
            a(f"s_sub_u32 s33, s99, s64\nv_mov_b32 v20, s33\ns_mov_b64 exec, 1\nbuffer_store_dword v20, off, {WS}, s101 offset:2024\ns_mov_b64 exec, -1\ns_waitcnt vmcnt(0)")
        if opt.get('diag'):
            a(f"s_sub_u32 s33, s99, s64\nv_mov_b32 v20, s33\nv_mov_b32 v21, s99\ns_mov_b64 exec, 1\nbuffer_atomic_umax v20, off, {DBG}, 0 offset:4 sc1\nbuffer_atomic_umax v21, off, {DBG}, 0 offset:8 sc1\ns_mov_b64 exec, -1\ns_waitcnt vmcnt(0)")
        a("ch_nocal:")
    if opt.get('SYNC', 1): calib()
    a(f"""s_lshl_b32 s33, {S_L}, 20
s_add_u32 s54, s33, {CRING}
s_mul_i32 s53, {S_I}, {CSTR}
s_lshl_b32 s52, {S_W}, 11
s_add_u32 s53, s53, s52
s_mul_i32 s33, {S_L}, {48*MB}
s_mul_i32 s34, {S_I}, 24576
s_add_u32 s33, s33, s34
s_add_u32 s40, s33, {QKV + 8192}
s_lshl_b32 s33, {S_L}, 5
s_add_u32 s33, s33, {S_I}
s_lshl_b32 s33, s33, 9
s_lshl_b32 s34, {S_W}, 7
s_add_u32 s33, s33, s34
s_add_u32 s41, s33, {F_KV}
s_add_u32 s42, s33, {F_KM}
s_add_u32 s44, {S_G}, {D_TICK}
s_cmp_eq_u32 {S_G}, 0
s_cselect_b32 s44, {D_TICK0}, s44
s_add_u32 s45, {S_L}, {D_CINIT}
s_mov_b32 s57, 0
v_mov_b32 v0, 0""")
    def e10(): a(f"v_lshlrev_b32 v3, 2, v1\nbuffer_load_dword v3, v3, {DBG}, 0 offen sc1")
    def e13():
        a(f"""v_readlane_b32 s33, v3, s44
v_readlane_b32 s34, v3, s45
v_readlane_b32 s35, v3, {D_INIT}
v_lshlrev_b32 v3, 5, v1
s_min_u32 s33, s33, s34
s_add_u32 s35, s35, {32 - NZERO}
s_min_u32 s33, s33, s35
s_cmp_ge_u32 s33, 32
s_cbranch_scc0 ch_e13
s_mov_b32 s57, 1
s_mov_b64 exec, 1
buffer_load_dword v0, off, {WS}, s41 sc1
s_mov_b64 exec, -1""")
        for x in ("s_add_u32 s33, s40, s52", "s_add_u32 s33, s33, 8192", "s_add_u32 s33, s54, s53", f"s_add_u32 s33, s33, {CSLOT}",
                  f"s_add_u32 s33, s54, s52\ns_add_u32 s33, s33, {CMEM_OFF}", "s_add_u32 s33, s33, 8192", "s_add_u32 s33, s33, 8192", "s_add_u32 s33, s33, 8192"):
            a(f"{x}\nbuffer_load_dword v14, v3, {WS}, s33 offen sc1")
        a("ch_e13:")
    load_all({} if opt.get('noinit') else {11: 1, 12: 1, 'e10': e10, 'e13': e13})
    a("v_readfirstlane_b32 s56, v0")
    def sst(k):
        if opt.get('trace'):
            a(f"s_memrealtime s[64:65]\ns_waitcnt lgkmcnt(0)\nv_mov_b32 v40, s64\ns_mov_b64 exec, 1\nbuffer_store_dword v40, off, {WS}, s101 offset:{2000+4*k}\ns_mov_b64 exec, -1")
    sst(0)
    a(f"s_barrier\nv_mov_b32 v21, {JUNK}\nds_read_b32 v20, v21\ns_waitcnt lgkmcnt(0)\nv_readfirstlane_b32 s98, v20")
    if opt.get('trace'):
        a(f"s_mov_b64 exec, 1\nbuffer_store_dword v20, off, {WS}, s101 offset:2028\ns_mov_b64 exec, -1")
    a("s_mov_b32 s60, 0\ns_cmp_eq_u32 s57, 1\ns_cbranch_scc1 ch_mode")
    if not opt.get('noinit'):
        wait_dbg(a, D_INIT*4, NZERO, 10, vt=4)
        a(f"s_lshl_b32 s33, {S_L}, 2\ns_add_u32 s33, s33, {D_CINIT*4}")
        wait_dbg(a, 's33', 32, 11, vt=4)
    decide_mode(a, 'ch_setslow')
    a("s_branch ch_mode\nch_setslow:\ns_mov_b32 s60, 1\nch_mode:")
    sst(1)
    diag(a, opt, 3, 40)
    n, c, t1, t2 = 'v28', 'v29', 'v30', 'v31'
    a(f"""v_and_b32 {n}, 15, v1
v_lshrrev_b32 {c}, 4, v1
v_lshlrev_b32 v{L16}, 4, v1
v_add_u32 v{WK}, s36, v{L16}
v_add_u32 v{HI}, {MEMB}, v{L16}
; idx
v_bfe_u32 {t1}, v1, 1, 1
v_mul_u32_u24 {t1}, 0xaaaa, {t1}
v_add_u32 v{IDX}, 0x4444, {t1}""")
    for q in range(4):
        a(f"""s_add_u32 s33, {S_W}, {q}
s_and_b32 s33, s33, 3
s_lshl_b32 s33, s33, 11
v_add_u32 v{M0A+q}, s33, v{HI}""")
    a(f"""v_and_b32 {t1}, 3, v1
v_lshlrev_b32 {t1}, 1, {t1}
v_bfe_u32 {t2}, v1, 2, 1
v_add_u32 {t1}, {t1}, {t2}
v_bfe_u32 {t2}, v1, 3, 1
v_lshlrev_b32 {t2}, 4, {t2}
v_mov_b32 v32, 0x3f80
v_lshlrev_b32 {t2}, {t2}, v32""")
    for q in range(4):
        a(f"v_cmp_eq_u32 vcc, {q}, {t1}\nv_cndmask_b32 v{SEL+q}, 0, {t2}, vcc")
    a(f"""; partial store offset: (8w+4m+c)*8192 + h*64 + (n&7)*8
v_bfe_u32 {t1}, v1, 3, 1
v_lshl_add_u32 {t1}, {t1}, 2, {c}
s_lshl_b32 s33, {S_W}, 3
v_add_u32 {t1}, s33, {t1}
v_mul_u32_u24 {t1}, {CSTR}, {t1}
v_and_b32 {t2}, 7, v1
v_lshl_add_u32 {t1}, {t2}, 3, {t1}
s_lshl_b32 s33, {S_I}, 6
v_add_u32 v{ST}, s33, {t1}
v_and_b32 {t1}, 1, v1
v_lshlrev_b32 {t1}, 5, {t1}
v_bfe_u32 {t2}, v1, 5, 1
v_lshl_add_u32 {t1}, {t2}, 4, {t1}
v_bfe_u32 {t2}, v1, 1, 1
v_lshl_add_u32 {t1}, {t2}, 3, {t1}
v_bfe_u32 {t2}, v1, 4, 1
v_lshl_add_u32 {t1}, {t2}, 2, {t1}
v_bfe_u32 {t2}, v1, 2, 1
v_lshl_add_u32 {t1}, {t2}, 14, {t1}
s_lshr_b32 s33, {S_I}, 1
s_lshl_b32 s33, s33, 8
s_and_b32 s34, {S_I}, 1
s_lshl_b32 s34, s34, 6
s_add_u32 s33, s33, s34
s_lshr_b32 s34, {S_W}, 1
s_lshl_b32 s34, s34, 12
s_and_b32 s35, {S_W}, 1
s_lshl_b32 s35, s35, 7
s_add_u32 s35, s35, s34
s_add_u32 s33, s33, s35
s_add_u32 s33, s33, 8192
v_add_u32 v{PUB}, s33, {t1}
v_bfe_u32 v{PD}, v1, 2, 1
v_or_b32 v{PD}, -2, v{PD}
v_mul_u32_u24 {t1}, {2*QROW}, {c}
v_lshl_add_u32 {t1}, {n}, 2, {t1}
s_lshl_b32 s33, {S_W}, 6
s_add_u32 s34, s33, {QX}
v_add_u32 v{QW}, s34, {t1}
v_bfe_u32 {t1}, v1, 2, 2
v_lshlrev_b32 {t1}, 1, {t1}
v_and_b32 {t2}, 1, v1
v_add_u32 {t1}, {t1}, {t2}
v_mul_u32_u24 {t1}, {QROW}, {t1}
v_lshl_add_u32 {t1}, {c}, 4, {t1}
v_add_u32 v{QR}, {QX}, {t1}
v_bfe_u32 {t2}, v1, 1, 1
v_lshl_add_u32 v{QRM}, {t2}, 7, v{QR}
v_bfe_u32 {t1}, v1, 2, 3
v_mul_u32_u24 {t1}, {QROW}, {t1}
v_bfe_u32 {t2}, v1, 5, 1
v_lshl_add_u32 {t1}, {t2}, 5, {t1}
v_and_b32 {t2}, 3, v1
v_lshl_add_u32 {t1}, {t2}, 3, {t1}
s_lshl_b32 s33, {S_W}, 6
s_add_u32 s33, s33, {KX}
v_add_u32 v{KMS}, s33, {t1}
v_lshlrev_b32 {t1}, 4, {n}
v_lshl_add_u32 {t1}, {c}, 2, {t1}
v_add_u32 v{VMS}, 2048, {t1}
v_bfe_u32 {t1}, v1, 2, 2
v_lshlrev_b32 {t1}, 1, {t1}
v_and_b32 {t2}, 1, v1
v_add_u32 {t1}, {t1}, {t2}
v_lshlrev_b32 {t1}, 4, {t1}
v_lshl_add_u32 {t1}, {c}, 7, {t1}
s_lshl_b32 s33, {S_W}, 9
s_add_u32 s33, s33, {OX}
v_add_u32 v{ORD}, s33, {t1}
v_bfe_u32 {t2}, v1, 1, 1
v_lshl_add_u32 v{OW}, {t2}, 3, v{ORD}
v_bfe_u32 {t1}, v1, 5, 1
v_lshlrev_b32 {t1}, 10, {t1}
v_bfe_u32 {t2}, v1, 4, 1
v_lshl_add_u32 {t1}, {t2}, 9, {t1}
s_lshl_b32 s33, {S_W}, 11
v_add_u32 {t1}, s33, {t1}
v_lshl_add_u32 v{VG}, {n}, 4, {t1}
v_bfe_u32 {t2}, v1, 3, 1
v_lshl_add_u32 v{KG}, {t2}, 7, v{VG}
v_and_b32 v{TAGM}, 1, v1
v_xor_b32 v{TAGM}, 1, v{TAGM}""")
    a(f"""s_lshl_b32 s33, {S_L}, 20
s_add_u32 s54, s33, {CRING}
s_add_u32 s37, s54, {CMEM_OFF}
s_mul_i32 s53, {S_I}, {CSTR}
s_lshl_b32 s33, {S_W}, 11
s_add_u32 s53, s53, s33
s_add_u32 s55, s37, s35
s_add_u32 s43, s33, {KB}
s_lshl_b32 s33, {S_L}, 23
s_lshl_b32 s34, {S_I}, 12
s_add_u32 s33, s33, s34
s_add_u32 s39, s33, {KM}
s_lshl_b32 s34, {S_W}, 9
s_add_u32 s39, s39, s34
s_mul_i32 s33, {S_L}, {48*MB}
s_mul_i32 s34, {S_I}, 24576
s_add_u32 s33, s33, s34
s_add_u32 s40, s33, {QKV + 8192}
s_lshl_b32 s33, {S_L}, 5
s_add_u32 s33, s33, {S_I}
s_lshl_b32 s33, s33, 9
s_lshl_b32 s34, {S_W}, 7
s_add_u32 s33, s33, s34
s_add_u32 s41, s33, {F_KV}
s_lshl_b32 s84, {S_W}, 11
s_mov_b32 s58, 0x3f803f80
s_mov_b32 s59, 0x3f803f80
s_add_u32 s42, s33, {F_KM}
s_mov_b32 s44, 0x33333333
s_mov_b32 s45, 0x33333333
s_mov_b32 s46, 0xcccccccc
s_mov_b32 s47, 0xcccccccc
s_mov_b32 s48, 0x000f000f
s_mov_b32 s49, 0x000f000f
s_mov_b32 s50, 0x00ff00ff
s_mov_b32 s51, 0x00ff00ff
s_mov_b32 s52, {SC}
s_mov_b32 s20, 0
s_mov_b32 s38, s55""")
    a("s_cmp_lg_u32 s56, 0\ns_cbranch_scc1 ch_kv0ok\ns_cmp_eq_u32 s57, 1\ns_cbranch_scc1 ch_kv0")
    a(f"s_add_u32 s33, s54, s53")
    for sl in range(2):
        for q in range(2): a(f"buffer_load_dwordx4 v[28:31], v{L16}, {WS}, s33 offen offset:{1024*q} sc1")
        a(f"s_add_u32 s33, s33, {CSLOT}")
    for sl in range(1, 4):
        a(f"s_add_u32 s33, s37, s84\ns_add_u32 s33, s33, {8192*sl}")
        for q in range(2): a(f"buffer_load_dwordx4 v[28:31], v{L16}, {WS}, s33 offen offset:{1024*q} sc1")
    a(f"""ch_kv0:
s_mov_b64 exec, 1
buffer_load_dword v{FV}, off, {WS}, s41 sc1
s_waitcnt vmcnt(0)
v_cmp_eq_u32 vcc, 0, v{FV}
s_cbranch_vccz ch_kv0ok""")
    spin_dec(a, 12)
    a("s_sleep 2\ns_branch ch_kv0\nch_kv0ok:\ns_mov_b64 exec, -1")
    sst(2)
    for i in range(2):
        a(f"s_add_u32 m0, s43, {896*i}\nbuffer_load_dwordx4 v{KG}, {WS}, s40 offen offset:{128*i} sc1 lds")
    a(f"s_add_u32 s56, s40, 8192")
    for i in range(2):
        a(f"s_add_u32 m0, s43, {VB - KB + 768*i}\nbuffer_load_dwordx4 v{VG}, {WS}, s56 offen offset:{256*i} sc1 lds")
    a(f"s_add_u32 s40, s40, {32*24576}\ns_add_u32 s85, s40, s84")
    if opt.get('SYNC', 1):
        Q_ = opt.get('Q', 512)
        a(f"""s_sub_u32 s33, 3, {S_W}
s_mul_i32 s61, s33, {opt.get('WS', 32)}
s_add_u32 s82, s61, {76 + (8 if opt.get('cnt') else 0)}
s_mul_i32 s83, s33, {opt.get('WS', 32) - opt.get('WS2', 24)}
s_add_u32 s83, s83, {opt.get('C2', 590)}
s_mov_b32 s63, s98
s_mov_b32 s62, s63""")
    a("s_cmp_eq_u32 s60, 1\ns_cbranch_scc1 chs_entry")
    for mode in ('chf', 'chs'):
        step_loop(a, opt, mode, '' if mode == 'chf' else ' sc1', D1, D2)
    a(f"""ch_fin:
s_waitcnt vmcnt(0)
v_mov_b32 v{T0}, 64
s_mov_b64 exec, 1
buffer_store_dword v{T0}, off, {WS}, s42 sc1
s_mov_b64 exec, -1""")
    if opt.get('diag'):
        a(f"s_cmp_eq_u32 {S_L}, 0\ns_cbranch_scc0 ch_dg1")
        diag(a, opt, 4, 40)
        a("ch_dg1:")
        diag(a, opt, 5, 40)
    if opt.get('trace'):
        a("v_mbcnt_lo_u32_b32 v1, -1, 0\nv_mbcnt_hi_u32_b32 v1, -1, v1")
        tr_dump(a, opt, 0, 40, 10)
    a("s_branch the_end")

def warm(a, cycles, reg):
    for _ in range(max(0, cycles)//4): a(f"v_mov_b32 v{reg}, 0")

def step_loop(a, opt, P, SC1, D1, D2):
    lds = Cnt(a, 'lgkmcnt', 15)
    vm = Cnt(a, 'vmcnt', 63)
    R4 = lambda r: f"v[{r}:{r+3}]"
    slot = [100]
    def tick():
        cst(a, opt, slot[0]); slot[0] += 1
    memf = lambda s: R4(MEMF + 4*s)
    ETA = 's[46:47]'
    KL = [(s, t) for s in K_LDS for t in range(2)]
    def wk(n, h):
        r = RING + 8*(n % NRING) + 4*h
        return lambda: lds.issue(f"ds_read_b128 {R4(r)}, v{WK} offset:{2048*n + 1024*h}", ('wk', n))
    def S(m, s, t):
        if m == 'q': d, b = ACC + 4*t, f"a[{(2*s+t)*8}:{(2*s+t)*8+7}]"
        elif m == 'v': d, b = VAC + 4*t, f"v[{128+(2*s+t)*8}:{128+(2*s+t)*8+7}]"
        else:
            d = ACC + 8 + 4*t
            if s in K_REG: r = areg_k(s, t); b = f"a[{r}:{r+7}]"
            else:
                n = KL.index((s, t)); r = RING + 8*(n % NRING); b = f"v[{r}:{r+7}]"
                if n >= NRING: lds.wait(('wk', n))
        if s >= 2: lds.wait(('m', s))
        a(f"v_smfmac_f32_16x16x64_bf16 {R4(d)}, {memf(s)}, {b}, v{IDX}"); tick()
    def do(*xs):
        for x in xs:
            if x is None: continue
            if callable(x): x()
            else: a(x)
    def zero(r0, r1): return [f"v_mov_b64 v[{r}:{r+1}], 0" for r in range(r0, r1, 2)]
    def prep():
        z = zero(ACC + 16, ACC + 24)
        for n in range(NRING):
            wk(n, 0)(); wk(n, 1)()
        do(*z)
    a(f"{P}_entry:")
    a(f"v_mov_b32 v{FV}, 127\nv_mov_b32 v{XT+1}, 0\nv_and_b32 v{XT+2}, 0x380, v{L16}\nv_add_u32 v{XT+2}, v{XT+2}, v{L16}")
    prep()
    PQ = MEMF + 24
    NR = 4
    a(f"{P}_h2:")
    cst(a, opt, 29)
    a(f"""buffer_load_dwordx4 {memf(0)}, v{XT+2}, {WS}, s38 offen sc1
buffer_load_dwordx4 {memf(1)}, v{XT+2}, {WS}, s38 offen offset:2048 sc1
v_lshlrev_b32 v{XT}, 2, v{L16}
v_and_b32 v{XT+3}, 0x800, v{XT}
v_mad_u32_u24 v{XT}, v{XT+3}, 3, v{XT}""")
    do(*zero(ACC, ACC + 16))
    TRC = 1 if opt.get('trace') else 0
    cflush(a, opt)
    a(f"""s_waitcnt lgkmcnt(0)
s_waitcnt vmcnt({1 + TRC})""")
    lds.q = []; lds.done = 0
    cst(a, opt, 0)
    lds.issue(f"ds_write_b128 v{M0A}, {memf(0)}", 'mw')
    S('q', 0, 0)
    a(f"s_waitcnt vmcnt({TRC})")
    lds.issue(f"ds_write_b128 v{M0A}, {memf(1)} offset:1024", 'mw')
    S('q', 0, 1); a(f"v_max_u32 v{T0}, v{MEMF}, v{MEMF+4}")
    S('k', 0, 0); a(f"v_cmp_eq_u32 vcc, -1, v{T0}")
    SY = opt.get('SYNC', 1)
    S('k', 0, 1)
    S('q', 1, 0); a(f"s_cbranch_vccnz {P}_h2retry")
    def vst(t, tag=None):
        if opt.get('NOKM') and f"v{KMS}," in t: return None
        if opt.get('NOVM') and f"v{VMS}," in t: return None
        if opt.get('NOTOUCH') and 'buffer_load_dword v' in t and t.endswith('lds'): return None
        return lambda: vm.issue(t, tag)
    S('q', 1, 1); do(wk(5, 0))
    S('k', 1, 0); do(wk(5, 1), f"s_add_u32 m0, s43, {VB - KB}")
    lds.wait('mw')
    cst(a, opt, 10)
    a("s_barrier")
    cst(a, opt, 11)
    mr = lambda s: (lambda: lds.issue(f"ds_read_b128 {memf(s)}, v{M0A + (s>>1)} offset:{1024*(s&1)}", ('m', s)))
    kf = lambda T, i: RING + 16*T + 4*i
    kr = lambda T, i: (lambda: lds.issue(f"ds_read_b128 {R4(kf(T, i))}, v{HI} offset:{KB - MEMB + 2048*i + 1024*T}", ('K', T, i)))
    K0, K1, Q0, Q1 = ACC + 8, ACC + 12, ACC, ACC + 4
    RT = 0
    VMV = 'c'
    CV = True
    V1 = vst(f"buffer_load_dwordx4 v{VG}, {WS}, s56 offen sc1 lds", 'V')
    V2 = vst(f"buffer_load_dwordx4 v{VG}, {WS}, s56 offen offset:256 sc1 lds", 'V')
    FS = vst(f"buffer_store_dword v{T0}, off, {WS}, s42 sc1", 'fs')
    TK = vst(f"buffer_load_dword v{FV}, v{XT}, {WS}, s85 offen sc1")
    TV = None
    do(mr(2), "s_memrealtime s[80:81]" if RT else None, mr(3))
    FSX = ["s_mov_b64 exec, 1", vst(f"buffer_store_dword v{XT+1}, off, {WS}, s42 sc1", 'fs'), "s_mov_b64 exec, -1"]
    S('k', 1, 1); do(V1, f"s_add_u32 m0, s43, {VB - KB + 768}")
    S('v', 0, 0); do(V2)
    S('v', 0, 1); do(wk(6, 0))
    S('q', 2, 0); do(wk(6, 1))
    S('q', 2, 1); do(*FSX)
    S('k', 2, 0); do(mr(4))
    S('k', 2, 1); do(TK)
    S('k', 3, 0); do(wk(7, 0))
    S('q', 3, 0); do(wk(7, 1))
    S('q', 3, 1); do(mr(5))
    S('k', 3, 1)
    S('k', 4, 0); do(mr(6))
    S('q', 4, 0); do(wk(8, 0), "s_add_u32 s57, s20, 1")
    S('k', 4, 1); do(wk(8, 1))
    S('q', 4, 1); do(mr(7), "s_lshr_b32 s21, s20, 1")
    S('k', 6, 0); do(wk(9, 0))
    S('k', 6, 1); do(wk(9, 1), "s_not_b32 s21, s21")
    S('k', 5, 0)
    S('k', 7, 0); do(kr(0, 0), "s_min_u32 s57, s57, 62")
    S('k', 7, 1); do(kr(0, 1), "s_and_b32 s21, s21, 1")
    S('k', 5, 1); do(kr(0, 2), f"v_add_f32 v{K0}, v{K0}, v{K0+2}")
    S('q', 5, 0); do(kr(0, 3), f"v_add_f32 v{K0+1}, v{K0+1}, v{K0+3}")
    S('q', 6, 0); do(kr(1, 0), f"v_add_f32 v{K1}, v{K1}, v{K1+2}")
    S('q', 7, 0); do(kr(1, 1), f"v_add_f32 v{K1+1}, v{K1+1}, v{K1+3}")
    S('q', 5, 1); do(kr(1, 2), f"v_cvt_pk_bf16_f32 v{XT}, v{K0}, v{K1}")
    S('q', 6, 1); do(kr(1, 3), f"v_cvt_pk_bf16_f32 v{XT+1}, v{K0+1}, v{K1+1}")
    S('q', 7, 1); do(lambda: lds.issue(f"ds_write_b32 v{QW}, v{XT} offset:{KX - QX}", 'kw'), f"v_add_f32 v{Q0}, v{Q0}, v{Q0+2}")
    cst(a, opt, 1)
    S('v', 1, 0); do(lambda: lds.issue(f"ds_write_b32 v{QW}, v{XT+1} offset:{KX - QX + QROW}", 'kw'), f"v_add_f32 v{Q0+1}, v{Q0+1}, v{Q0+3}")
    S('v', 1, 1); do(lambda: lds.issue(f"ds_read_b64 v[{XT+2}:{XT+3}], v{KMS}", 'kr'))
    a(f"""v_add_f32 v{Q1}, v{Q1}, v{Q1+2}
v_add_f32 v{Q1+1}, v{Q1+1}, v{Q1+3}
v_cvt_pk_bf16_f32 v{Q0+2}, v{Q0}, v{Q1}
v_cvt_pk_bf16_f32 v{Q0+3}, v{Q0+1}, v{Q1+1}""")
    lds.issue(f"ds_write2_b32 v{QW}, v{Q0+2}, v{Q0+3} offset1:{QROW//4}", 'qw')
    S('v', 2, 0); do(f"v_lshrrev_b32 v{XT}, 1, v{L16}")
    S('v', 2, 1); do(lambda: lds.wait('kr'), vst(f"buffer_store_dwordx2 v[{XT+2}:{XT+3}], v{XT}, {WS}, s39 offen sc1"))
    S('v', 3, 0)
    lds.wait('qw')
    a("s_barrier")
    cst(a, opt, 16)
    QF = [92, 96, ACC + 8, ACC + 12]
    QM, KMF = [MEMF, MEMF + 4], [MEMF + 8, MEMF + 12]
    qr = lambda i: (lambda: lds.issue(f"ds_read_b128 {R4(QF[i])}, v{QR} offset:{64*i}", ('q', i)))
    qmr = lambda i: (lambda: lds.issue(f"ds_read_b128 {R4(QM[i])}, v{QRM} offset:{64*i}", ('qm', i)))
    kmr = lambda i: (lambda: lds.issue(f"ds_read_b128 {R4(KMF[i])}, v{QRM} offset:{KX - QX + 64*i}", ('km', i)))
    VF = MEMF + 16
    do(qr(0))
    S('v', 3, 1); do(qr(1))
    S('v', 4, 0); do(qr(2))
    S('v', 4, 1); do(qr(3))
    S('v', 5, 0); do(qmr(0), "s_add_u32 s56, s40, 8192")
    S('v', 5, 1); do(kmr(0))
    S('v', 6, 0); do(qmr(1))
    S('v', 7, 0); do(kmr(1))
    S('v', 6, 1); do(lambda: vm.wait('V'))
    S('v', 7, 1); do("s_mov_b64 exec, 1", vst(f"buffer_load_dword v{XT+1}, off, {WS}, s41 sc1", 'fl'), "s_mov_b64 exec, -1")
    DV1 = DV2 = None
    cst(a, opt, 2)
    X0, X1, SM = ACC, ACC + 4, MEMF + 24
    V0, V1 = VAC, VAC + 4
    def MM(d, x, y, first): a(f"v_mfma_f32_16x16x32_bf16 {R4(d)}, {R4(x)}, {R4(y)}, {'0' if first else R4(d)}"); tick()
    VP = VAC + 2
    ONE = VAC + 4
    m, m2 = T0, T0 + 1
    WA = RING
    OS = [MEMF, MEMF + 8, 92, ACC + 8, MEMF + 24, VAC]
    osr = lambda n, h: (lambda: lds.issue(f"ds_read_b128 {R4(OS[n] + 4*h)}, v{WK} offset:{2048*(10 + n) + 1024*h}", ('os', n)))
    vr = lambda t: (lambda: lds.issue(f"ds_read_b128 {R4(VF + 4*t)}, v{M0A} offset:{VB - MEMB + 1024*t}", ('V', t)))
    QP = "quad_perm:[2,3,0,1] row_mask:0xf bank_mask:0xf"
    EM = XT + 2
    lds.wait(('q', 3))
    MM(X0, kf(0, 0), QF[0], True);  do(f"v_add_f32 v{V0}, v{V0}, v{V0+2}")
    MM(X0, kf(0, 1), QF[1], False); do("s_and_b32 s33, s20, 1", f"v_add_f32 v{V0+1}, v{V0+1}, v{V0+3}", f"v_add_f32 v{V1}, v{V1}, v{V1+2}")
    MM(X0, kf(0, 2), QF[2], False); do(f"s_mul_i32 s33, s33, {CSLOT}", f"v_add_f32 v{V1+1}, v{V1+1}, v{V1+3}", f"v_cvt_pk_bf16_f32 v{VP}, v{V0}, v{V0+1}")
    MM(X0, kf(0, 3), QF[3], False); do(lambda: lds.wait(('km', 1)), f"v_cvt_pk_bf16_f32 v{VP+1}, v{V1}, v{V1+1}", *zero(WA, WA + 2))
    MM(SM, KMF[0], QM[0], True);    do(vst(f"buffer_store_dwordx2 v[{VP}:{VP+1}], v{XT}, {WS}, s39 offen offset:2048 sc1"), f"v_mov_b64 v[{ONE}:{ONE+1}], s[58:59]")
    MM(SM, KMF[1], QM[1], False);   do(vr(0) if CV else None, f"v_max3_f32 v{m}, v{X0}, v{X0+1}, v{X0+2}")
    MM(X1, kf(1, 0), QF[0], True);  do(vr(1) if CV else None, f"v_mov_b64 v[{ONE+2}:{ONE+3}], s[58:59]")
    MM(X1, kf(1, 1), QF[1], False); do("s_add_u32 s22, s54, s33", f"v_cndmask_b32_e64 v{SM}, v{SM}, v{SM+2}, {ETA}", f"v_cndmask_b32_e64 v{SM+1}, v{SM+1}, v{SM+3}, {ETA}")
    MM(X1, kf(1, 2), QF[2], False); do(f"v_add_f32_dpp v{SM}, v{SM}, v{SM} {QP}", f"v_add_f32_dpp v{SM+1}, v{SM+1}, v{SM+1} {QP}")
    MM(X1, kf(1, 3), QF[3], False)
    do(f"v_max3_f32 v{m}, v{m}, v{X0+3}, v{SM}",
       f"v_cndmask_b32_e64 v{EM}, v{SM}, v{SM+1}, {ETA}", f"v_max_f32 v{m}, v{m}, v{SM+1}", *zero(WA + 2, WA + 10))
    cst(a, opt, 19)
    sel = lambda i: f"v_cndmask_b32_e64 v{X0+i}, v{X0+i}, v{X1+i}, {ETA}"
    a(f"""v_max3_f32 v{m}, v{m}, v{X1}, v{X1+1}
v_max3_f32 v{m2}, v{m}, v{X1+2}, v{X1+3}
v_max3_f32 v{m}, v{m}, v{X1+2}, v{X1+3}
{sel(0)}
{sel(1)}
v_permlane16_swap_b32 v{m2}, v{m}
v_max_f32 v{EM+1}, v{m}, v{m2}
v_max_f32 v{m}, v{m}, v{m2}
{sel(2)}
{sel(3)}
v_permlane32_swap_b32 v{EM+1}, v{m}
v_max_f32 v{m}, v{m}, v{EM+1}
v_mul_f32 v{m}, s52, v{m}""")
    cst(a, opt, 20)
    E = [X0, X0+1, X0+2, X0+3]
    if not CV: do(lambda: vm.wait('V'), vr(0), vr(1))
    for e in E: a(f"v_fma_f32 v{e}, v{e}, s52, -v{m}")
    for e in E: a(f"v_exp_f32 v{e}, v{e}")
    B0, B1, BM, O, p0, p1, LS = X1, 76, 80, 84, 82, 83, 88
    a(f"""v_cvt_pk_bf16_f32 v{p0}, v{X0}, v{X0+1}
v_cvt_pk_bf16_f32 v{p1}, v{X0+2}, v{X0+3}
v_cndmask_b32_e64 v{B1+2}, 0, v{p0}, {ETA}
v_cndmask_b32_e64 v{B1+3}, 0, v{p1}, {ETA}
v_cndmask_b32_e64 v{B0}, v{p0}, 0, {ETA}
v_cndmask_b32_e64 v{B0+1}, v{p1}, 0, {ETA}
v_mov_b32_dpp v{B0+2}, v{B1+2} {QP}
v_mov_b32_dpp v{B0+3}, v{B1+3} {QP}
v_fma_f32 v{EM}, v{EM}, s52, -v{m}""")
    lds.wait(('V', 1))
    cst(a, opt, 3)
    MM(LS, ONE, B0, True);  do(DV1, f"v_mov_b32_dpp v{B1}, v{B0} {QP}", f"v_mov_b32_dpp v{B1+1}, v{B0+1} {QP}")
    MM(O, VF, B0, True);    do(osr(0, 0), f"v_exp_f32 v{EM}, v{EM}")
    MM(LS, ONE, B1, False); do(osr(0, 1), f"v_mov_b32_dpp v{EM+1}, v{EM} {QP}")
    MM(O, VF + 4, B1, False)
    do(f"v_cvt_pk_bf16_f32 v{BM}, v{EM}, v{EM+1}", f"v_cndmask_b32_e64 v{BM}, v{BM}, 0, {ETA}", *zero(WA + 10, WA + 14),
       f"v_mov_b32_dpp v{BM+1}, v{BM} {QP}", *zero(WA + 14, WA + 16))
    a(f"v_mfma_f32_16x16x16_bf16 {R4(LS)}, v[{ONE}:{ONE+1}], v[{BM}:{BM+1}], {R4(LS)}")
    do(osr(1, 0))
    a(f"v_mfma_f32_16x16x16_bf16 {R4(O)}, v[{VP}:{VP+1}], v[{BM}:{BM+1}], {R4(O)}")
    do(osr(1, 1), DV2, "s_cmp_lt_u32 s20, 61", f"s_cselect_b32 s33, {32*24576}, 0")
    a(f"v_rcp_f32 v{LS}, v{LS}")
    do("s_add_u32 s87, s40, s33", "s_cmp_eq_u32 s20, 63")
    OP = X0
    for i in range(4): a(f"v_mul_f32 v{O+i}, v{O+i}, v{LS}")
    a(f"v_cvt_pk_bf16_f32 v{OP}, v{O}, v{O+1}\nv_cvt_pk_bf16_f32 v{OP+1}, v{O+2}, v{O+3}")
    cst(a, opt, 22)
    lds.issue(f"ds_write_b64 v{OW}, v[{OP}:{OP+1}]", 'ow')
    OF = [X1, VF, VF + 4, B1]
    for i in range(4):
        a(f"v_mov_b32_dpp v{OF[0]+i}, v{OP+(i&1)} quad_perm:{'[0,1,0,1]' if i < 2 else '[2,3,2,3]'} row_mask:0xf bank_mask:0xf")
    do(*[f"v_xor_b32 v{O+sg}, {512*sg}, v{ORD}" for sg in (1, 2, 3)])
    def so(phi, sg):
        d = WA + 4*phi
        kp, t = sg >> 1, sg & 1
        if (phi, kp) in O_REG: r = areg_o(phi, kp, t); b = f"a[{r}:{r+7}]"
        else:
            n = O_LDS.index((phi, kp))*2 + t; b = f"v[{OS[n]}:{OS[n]+7}]"
            lds.wait(('os', n))
        if sg: lds.wait(('o', sg))
        a(f"v_smfmac_f32_16x16x64_bf16 {R4(d)}, {R4(OF[sg])}, {b}, v{IDX}"); tick()
    so(0, 0); do("s_cbranch_scc1 ch_fin")
    lds.wait('ow')
    cst(a, opt, 24)
    a("s_barrier")
    orr = lambda sg: (lambda: lds.issue(f"ds_read_b128 {R4(OF[sg])}, v{O+sg}", ('o', sg)))
    do(orr(1))
    so(1, 0); do(orr(2), "s_add_u32 s23, s22, 4096")
    so(2, 0); do(orr(3), "s_add_u32 s36, s22, s53")
    so(3, 0); do(osr(2, 0), "s_add_u32 s20, s20, 1")
    cst(a, opt, 4)
    def epi(phi):
        A_ = WA + 4*phi
        return [f"v_cvt_pk_bf16_f32 v{A_}, v{A_}, v{A_+1}", f"v_cvt_pk_bf16_f32 v{A_+1}, v{A_+2}, v{A_+3}", f"v_bfi_b32 v{A_}, v{TAGM}, s21, v{A_}",
                f"buffer_store_dwordx2 v[{A_}:{A_+1}], v{ST}, {WS}, {'s22' if phi < 2 else 's23'} offen offset:{2048*(phi&1)}{SC1}"]
    e0, e1, e2, e3 = [epi(p) for p in range(4)]
    so(0, 1); do(osr(2, 1))
    so(0, 2); do(osr(3, 0))
    so(0, 3); do(osr(3, 1))
    so(1, 1); do(osr(4, 0), (lambda: vm.wait('sig')) if RT else None)
    so(1, 2); do(osr(4, 1), e0[0], e0[1], e0[2])
    so(1, 3); do(e0[3], osr(5, 0))
    so(2, 1); do(osr(5, 1), f"v_subrev_u32 v{FV}, s80, v{FV}" if RT else None)
    so(2, 2); do(f"s_add_u32 s39, s39, {32*4096}", "s_and_b32 s33, s20, 3", e1[0], e1[1], e1[2])
    so(2, 3); do(e1[3])
    so(3, 1); do("s_lshl_b32 s33, s33, 13", "s_add_u32 s38, s55, s33")
    so(3, 2); do("s_add_u32 s85, s87, s84", e2[0])
    so(3, 3); do(e2[1], e2[2], e2[3], *e3)
    cst(a, opt, 5)
    H = MEMF + 8
    R = MEMF + 16
    D1 = opt.get('D1', [220, 260, 300, 340])
    TT, QQ, C2, TOL, LI = opt.get('T', 3140), opt.get('Q', 512), opt.get('C2', 520), opt.get('TOL', 40), opt.get('LI', 32)
    DS_ = opt.get('DS', 150)
    def wait_rem(name):
        a(f"""{P}_{name}1:
s_sub_u32 s33, s33, {LI}
s_cmp_gt_i32 s33, 0
s_cbranch_scc1 {P}_{name}1""")
    assert QQ & (QQ - 1) == 0
    def grid(reg, thr):
        a(f"""s_waitcnt lgkmcnt(0)
s_sub_u32 s33, {reg}, s80
s_sub_u32 s34, {thr + QQ - 1}, s33
s_max_i32 s34, s34, 0
s_andn2_b32 s34, s34, {QQ - 1}
s_add_u32 s33, s33, s34""")
        if opt.get('cnt'): a(f"s_lshl_b32 s35, s34, {24 - QQ.bit_length() + 1}\ns_add_u32 s76, s76, s35")
    OV = 72 + (8 if opt.get('cnt') else 0)
    if SY:
        a(f"""s_memtime s[80:81]
s_add_u32 s63, s63, {TT}""")
        grid('s63', DS_)
        a("s_sub_u32 s33, s33, s82\ns_add_u32 s63, s63, s34\ns_sub_u32 s62, s63, s61")
        wait_rem('ga')
    else:
        a.nops((D1[0] - 24)//4)
        for w in (1, 2, 3):
            if D1[w] > D1[w-1]:
                a(f"s_cmp_lt_u32 {S_W}, {w}\ns_cbranch_scc1 {P}_h1a")
                a.nops((D1[w] - D1[w-1] - 16)//4)
    a(f"{P}_h1a:")
    cst(a, opt, 27)
    a(f"""buffer_load_dwordx4 {R4(H)}, v{L16}, {WS}, s36 offen sc1
buffer_load_dwordx4 {R4(H+4)}, v{L16}, {WS}, s36 offen offset:1024 sc1""")
    a(f"""s_waitcnt vmcnt(7)
v_readfirstlane_b32 s86, v{XT+1}
v_bfe_i32 v{T0+1}, v{PD}, 0, 1
v_and_b32 v{XT+2}, 0x380, v{L16}
v_add_u32 v{XT+2}, v{XT+2}, v{L16}""")
    prep()
    a(f"""s_cmp_ge_u32 s57, s86
s_cbranch_scc1 {P}_kvwait
{P}_kvok:""")
    for i_ in range(2): a(f"s_add_u32 m0, s43, {896*i_}\nbuffer_load_dwordx4 v{KG}, {WS}, s40 offen offset:{128*i_} sc1 lds")
    a(f"""v_mov_b32 v{XT+1}, s20
s_waitcnt vmcnt(3)
{P}_h1b:
v_mfma_f32_16x16x32_bf16 {R4(R)}, {R4(SEL)}, {R4(H)}, 0
v_xor_b32 v{T0}, s21, v{H}
s_waitcnt vmcnt(2)
v_mfma_f32_16x16x32_bf16 {R4(R)}, {R4(SEL)}, {R4(H+4)}, {R4(R)}
v_bitop3_b32 v{T0}, v{T0}, s21, v{H+4} bitop3:0xf6
v_and_b32 v{T0}, 1, v{T0}
v_cmp_ne_u32 vcc, 0, v{T0}
v_add_f32_dpp v{R}, v{R}, v{R} row_ror:4 row_mask:0xf bank_mask:0xf
v_add_f32_dpp v{R+1}, v{R+1}, v{R+1} row_ror:4 row_mask:0xf bank_mask:0xf
s_cbranch_vccnz {P}_h1retry
v_add_f32_dpp v{R}, v{R}, v{R} row_ror:8 row_mask:0xf bank_mask:0xf
v_add_f32_dpp v{R+1}, v{R+1}, v{R+1} row_ror:8 row_mask:0xf bank_mask:0xf
s_mov_b64 exec, s[50:51]
v_cvt_pk_bf16_f32 v{R}, v{R}, v{R+1}
v_med3_u32 v{R}, v{R}, v{PD}, v{T0+1}
buffer_store_dword v{R}, v{PUB}, {WS}, s37 offen{SC1}
s_memtime s[80:81]
s_mov_b64 exec, -1
v_add_u32 v{PUB}, 0x2000, v{PUB}
v_and_b32 v{PUB}, 0x7fff, v{PUB}
s_add_u32 s62, s62, s83
s_mov_b32 s40, s87""")
    cst(a, opt, 6)
    if SY:
        a(f"{P}_gb0:")
        grid('s62', OV + 20 - TOL)
        a(f"s_add_u32 s62, s62, s34\ns_sub_u32 s33, s33, {OV + 20}")
        wait_rem('gb')
    else: a.nops((D2 - 36)//4)
    a(f"s_branch {P}_h2")
    a(f"{P}_h2retry:"); spin_dec(a, 13)
    if opt.get('cnt'): a("s_add_u32 s76, s76, 0x10000")
    a(f"s_memtime s[80:81]\ns_branch {P}_gb0" if SY else f"s_branch {P}_h2")
    a(f"{P}_h1retry:"); spin_dec(a, 14)
    if opt.get('cnt'): a("s_add_u32 s76, s76, 1")
    if SY:
        a("s_memtime s[80:81]")
        grid('s62', OV + 20 - TOL)
        a(f"s_add_u32 s62, s62, s34\ns_sub_u32 s33, s33, {OV + opt.get('RA', 24)}")
        wait_rem('gr')
    cst(a, opt, 27)
    a(f"""buffer_load_dwordx4 {R4(H)}, v{L16}, {WS}, s36 offen sc1
buffer_load_dwordx4 {R4(H+4)}, v{L16}, {WS}, s36 offen offset:1024 sc1""")
    prep()
    a(f"s_branch {P}_kvok")
    a(f"{P}_kvwait:"); spin_dec(a, 15)
    a(f"""s_sleep 1
buffer_load_dword v{XT+1}, off, {WS}, s41 sc1
s_waitcnt vmcnt(0)
v_cmp_ge_u32 vcc, s57, v{XT+1}
s_cbranch_vccnz {P}_kvwait
s_branch {P}_kvok""")
```

```python
from asmlib import *
from layout import *

KNAME = "interleave_layers__memory_aug_recurrent_mem_tr__dense_activation_relu__prompt_kernel"
S_BUD = 's3'
S_W   = 's4'
S_G   = 's5'
S_I   = 's6'
S_L   = 's7'
WS    = 's[8:11]'
DBG   = 's[24:27]'
P_X, P_MEM0, P_WQ, P_WK, P_WV, P_WO, P_W1, P_W2, P_OUT, P_DBG, P_WS = 64, 66, 68, 70, 72, 74, 80, 82, 84, 86, 88
BUDGET = 400000

def srd(a, d, p, size):
    a(f"""s_mov_b32 s{d}, s{p}
s_mov_b32 s{d+1}, s{p+1}
s_mov_b32 s{d+2}, {size}
s_mov_b32 s{d+3}, 0x20000""")

def spin_dec(a, code):
    a(f"""s_sub_u32 {S_BUD}, {S_BUD}, 1
s_cbranch_scc1 bail_{code}""")
    a.bails.add(code)

def emit_bails(a):
    for c in sorted(a.bails):
        a(f"""bail_{c}:
s_movk_i32 s28, {c}
s_branch bail_common""")
    a(f"""bail_common:
s_mov_b64 exec, 1
s_lshl_b32 s29, {S_G}, 16
s_or_b32 s28, s28, s29
s_lshl_b32 s29, {S_I}, 8
s_or_b32 s28, s28, s29
s_lshl_b32 s29, {S_W}, 24
s_or_b32 s28, s28, s29
s_or_b32 s28, s28, 0x80000000
s_and_b32 s29, {S_G}, 7
s_lshl_b32 s29, s29, 2
s_add_u32 s29, s29, {D_ERR*4}
v_mov_b32 v2, s28
v_mov_b32 v3, s29
buffer_store_dword v2, v3, {DBG}, 0 offen sc1
s_waitcnt vmcnt(0)
s_endpgm""")

def allreduce(a, v, t, op='add'):
    for r in (8, 4, 2, 1):
        a(f"v_{op}_f32_dpp {v}, {v}, {v} row_ror:{r} row_mask:0xf bank_mask:0xf")
    a(f"""v_mov_b32 {t}, {v}
v_permlane16_swap_b32 {t}, {v}
v_{op}_f32 {v}, {v}, {t}
v_mov_b32 {t}, {v}
v_permlane32_swap_b32 {t}, {v}
v_{op}_f32 {v}, {v}, {t}""")

def layernorm8(a, x, o, t):
    s, u = f'v{t}', f'v{t+1}'
    a(f"""v_add_f32 {s}, v{x}, v{x+1}
v_add_f32 {u}, v{x+2}, v{x+3}
v_add_f32 {s}, {s}, v{x+4}
v_add_f32 {u}, {u}, v{x+5}
v_add_f32 {s}, {s}, v{x+6}
v_add_f32 {u}, {u}, v{x+7}
v_add_f32 {s}, {s}, {u}""")
    allreduce(a, s, u)
    a(f"v_mul_f32 {s}, 0x3b000000, {s}")
    for i in range(8): a(f"v_sub_f32 v{x+i}, v{x+i}, {s}")
    a(f"v_mul_f32 {s}, v{x}, v{x}\nv_mul_f32 {u}, v{x+1}, v{x+1}")
    for i in range(2, 8): a(f"v_fmac_f32 {s if i%2==0 else u}, v{x+i}, v{x+i}")
    a(f"v_add_f32 {s}, {s}, {u}")
    allreduce(a, s, u)
    a(f"""v_mov_b32 {u}, 0x3727c5ac
v_fmac_f32 {u}, 0x3b000000, {s}
v_rsq_f32 {u}, {u}""")
    for i in range(8): a(f"v_mul_f32 v{x+i}, v{x+i}, {u}")
    for i in range(4): a(f"v_cvt_pk_bf16_f32 v{o+i}, v{x+2*i}, v{x+2*i+1}")

def load_counters(a, v):
    a(f"""v_and_b32 v{v+1}, 15, v1
v_lshlrev_b32 v{v+1}, 2, v{v+1}
v_add_u32 v{v+1}, {D_TICK*4}, v{v+1}
v_cmp_eq_u32 vcc, {D_TICK*4}, v{v+1}
v_cndmask_b32 v{v+1}, v{v+1}, 0, vcc
buffer_load_dword v{v}, v{v+1}, {DBG}, 0 offen sc1
s_waitcnt vmcnt(0)""".replace("v_cndmask_b32 v%d, v%d, 0, vcc" % (v+1, v+1), "v_cndmask_b32_e64 v%d, v%d, 0, vcc" % (v+1, v+1)))

def total_counters(a, v, sd, st):
    a(f"v_readlane_b32 s{sd}, v{v}, 0")
    for x in range(1, 16):
        a(f"v_readlane_b32 s{st}, v{v}, {x}\ns_nop 0\ns_add_u32 s{sd}, s{sd}, s{st}")

def prologue(a, opt):
    a(f"""s_cmp_ge_u32 s2, 256
s_cbranch_scc1 the_end
s_load_dwordx16 s[64:79], s[0:1], 0
s_load_dwordx8 s[80:87], s[0:1], 64
s_load_dwordx2 s[88:89], s[0:1], 96
s_memrealtime s[90:91]
s_getreg_b32 s30, hwreg(HW_REG_XCC_ID)
s_and_b32 s30, s30, 15
s_mov_b32 {S_BUD}, {BUDGET}
s_mov_b32 {S_G}, 0
s_mov_b32 {S_I}, 0
s_mov_b32 {S_L}, 0
v_lshrrev_b32 v1, 6, v0
v_readfirstlane_b32 {S_W}, v1
v_and_b32 v1, 63, v0""")
    if opt.get('fake_xcc') == 'all9': a("s_mov_b32 s30, 9")
    if opt.get('fake_xcc') == 'some':
        a("""s_and_b32 s31, s2, 0x19
s_cmp_eq_u32 s31, 0x19
s_cselect_b32 s30, 9, s30""")
    mp = opt.get('MAP', [0, 3, 5, 6, 1, 2, 4, 7])
    assert sorted(mp) == list(range(8))
    a(f"""s_lshl_b32 s31, s30, 2
s_lshr_b32 s31, {hex(sum(g << (4*x) for x, g in enumerate(mp)))}, s31
s_and_b32 s31, s31, 7
s_cmp_lt_u32 s30, 8
s_cselect_b32 s30, s31, s30""")
    a("s_waitcnt lgkmcnt(0)")
    srd(a, 8, P_WS, hex(WS_SIZE))
    srd(a, 24, P_DBG, 256)
    a(f"""s_cmp_eq_u32 {S_W}, 0
s_cbranch_scc0 pro_nt
s_lshl_b32 s31, s30, 2
s_add_u32 s31, s31, {D_TICK*4}
s_cmp_eq_u32 s30, 0
s_cselect_b32 s31, {D_TICK0*4}, s31
s_mov_b64 exec, 1
v_mov_b32 v2, s31
v_mov_b32 v3, 1
buffer_atomic_add v3, v2, {DBG}, 0 offen sc0 sc1
s_mul_i32 s31, s30, 300
s_add_u32 s90, s90, s31
s_add_u32 s90, s90, {opt.get('CALD', 340)}
s_or_b32 s90, s90, 3
v_mov_b32 v8, s90
v_mov_b32 v9, 0
s_cmp_lt_u32 s30, 2
s_cbranch_scc0 pro_nc
s_lshl_b32 s31, s30, 2
buffer_atomic_cmpswap v[8:9], off, {DBG}, s31 offset:{D_CAL*4} sc0 sc1
pro_nc:
v_mov_b32 v2, 0
s_waitcnt vmcnt(0)
v_mov_b32 v9, s90
v_cmp_eq_u32 vcc, 0, v8
v_cndmask_b32 v8, v8, v9, vcc
ds_write2_b32 v2, v3, v8 offset1:1
s_mov_b64 exec, -1
pro_nt:
s_waitcnt vmcnt(0) lgkmcnt(0)
s_barrier
v_mov_b32 v2, 0
ds_read2_b32 v[8:9], v2 offset1:1""")
    a(f"""s_waitcnt lgkmcnt(0)
v_readfirstlane_b32 {S_I}, v8
v_readfirstlane_b32 s99, v9
s_barrier
s_mov_b32 {S_G}, s30
s_cmp_lt_u32 s30, 8
s_cselect_b32 s31, 32, 0
s_cmp_lt_u32 {S_I}, s31
s_cbranch_scc1 pro_done
s_sub_u32 s32, {S_I}, s31
pro_ov:""")
    spin_dec(a, 1)
    a("s_sleep 8")
    load_counters(a, 4)
    total_counters(a, 4, 33, 34)
    a("""s_cmp_lt_u32 s33, 256
s_cbranch_scc1 pro_ov""")
    for x in range(15):
        cap = 32 if x < 8 else 0
        a(f"""v_readlane_b32 s34, v4, {x}
s_nop 0
s_max_u32 s34, s34, {cap}
s_sub_u32 s34, s34, {cap}
s_cmp_gt_u32 s30, {x}
s_cselect_b32 s34, s34, 0
s_add_u32 s32, s32, s34""")
    for g in range(8):
        a(f"""v_readlane_b32 s34, v4, {g}
s_nop 0
s_min_u32 s34, s34, 32
s_mov_b32 {S_G}, {g}
s_add_u32 {S_I}, s34, s32
s_cmp_lt_u32 {S_I}, 32
s_cbranch_scc1 pro_done
s_sub_u32 s32, {S_I}, 32""")
    a("s_branch the_end\npro_done:")
    a(f"s_and_b32 {S_I}, {S_I}, 31\ns_and_b32 {S_G}, {S_G}, 7")

def decide_mode(a, slow_label, vt=4):
    L = a.newlabel('dm'); F = a.newlabel('dmf')
    a(f"{L}:")
    load_counters(a, vt)
    a(f"""v_readlane_b32 s34, v{vt}, {S_G}
s_nop 0
s_cmp_ge_u32 s34, 32
s_cbranch_scc1 {F}""")
    total_counters(a, vt, 33, 34)
    a(f"""s_cmp_ge_u32 s33, 256
s_cbranch_scc1 {slow_label}""")
    spin_dec(a, 2)
    a(f"s_sleep 8\ns_branch {L}\n{F}:")

def wait_dbg(a, idx_expr_sgpr_or_const, thr, code, vt=4, sleep=8):
    L = a.newlabel('wd'); D = a.newlabel('wdd')
    a(f"""v_mov_b32 v{vt+1}, {idx_expr_sgpr_or_const}
s_mov_b64 exec, 1
{L}:
buffer_load_dword v{vt}, v{vt+1}, {DBG}, 0 offen sc1
s_waitcnt vmcnt(0)
v_cmp_gt_u32 vcc, {thr}, v{vt}
s_cbranch_vccz {D}""")
    spin_dec(a, code)
    a(f"s_sleep {sleep}\ns_branch {L}\n{D}:\ns_mov_b64 exec, -1")

def stage_tr(a, n, slots, slot_bytes, s_m0base, dma, consume, per=1, hook=None):
    def issue(i):
        for q in range(per):
            a(f"s_add_u32 m0, {s_m0base}, {(i % slots) * slot_bytes + q * 1024}")
            dma(i, q)
    for i in range(min(slots, n)):
        issue(i)
        if hook and i == 1: hook()
    for i in range(n):
        out = min(n, i + slots) - (i + 1) if i == 0 else min(n, i - 1 + slots) - (i + 1)
        a(f"s_waitcnt vmcnt({max(out,0)*per})")
        nrd = consume(i, (i % slots) * slot_bytes)
        if i >= 1 and i - 1 + slots < n:
            a(f"s_waitcnt lgkmcnt({nrd})")
            issue(i - 1 + slots)
    a("s_waitcnt lgkmcnt(0)")

def tr_stamp(a, opt, k):
    if opt.get('trace'): a(f"{'s_memrealtime' if opt.get('rt') else 's_memtime'} s[{90+2*k}:{91+2*k}]")
def tr_flush(a, opt, lane, ks, vb, wait=False):
    if opt.get('trace'):
        if wait: a("s_waitcnt lgkmcnt(0)")
        a(f"s_mov_b32 s100, m0\ns_mov_b32 m0, {lane}")
        for k in ks: a(f"v_writelane_b32 v{vb+k}, s{90+2*k}, m0")
        a("s_mov_b32 m0, s100")
def tr_begin(a, opt):
    if opt.get('trace'):
        a(f"""s_memrealtime s[90:91]
s_memtime s[92:93]
s_lshl_b32 s94, {S_G}, 5
s_add_u32 s94, s94, {S_I}
s_lshl_b32 s94, s94, 2
s_add_u32 s94, s94, {S_W}
s_lshl_b32 s94, s94, 11
s_add_u32 s101, s94, {TRACE}
s_waitcnt lgkmcnt(0)
v_mov_b32 v2, s90
v_mov_b32 v3, s92
v_mov_b32 v4, 0
s_mov_b64 exec, 1
buffer_store_dwordx2 v[2:3], v4, {WS}, s101 offen offset:2040
s_mov_b64 exec, -1
s_waitcnt vmcnt(0)""")
def tr_dump(a, opt, n, vb, vt):
    if opt.get('trace'):
        a(f"v_lshlrev_b32 v{vt}, 2, v1")
        for k in range(n): a(f"buffer_store_dword v{vb+k}, v{vt}, {WS}, s101 offen offset:{256*k}")
        a(f"""s_memrealtime s[90:91]
s_memtime s[92:93]
s_waitcnt lgkmcnt(0) vmcnt(0)
v_mov_b32 v{vb}, s90
v_mov_b32 v{vb+1}, s92
s_mov_b64 exec, 1
buffer_store_dwordx2 v[{vb}:{vb+1}], v{vt}, {WS}, s101 offen offset:2032
s_mov_b64 exec, -1""")


class Cnt:
    def __init__(self, a, name, mx):
        self.a, self.name, self.mx, self.q, self.done = a, name, mx, [], 0
    def issue(self, text, tag=None):
        self.a(text); self.q.append(tag)
    def wait(self, *tags):
        idx = max(max(i for i, t in enumerate(self.q) if t == tag) for tag in tags)
        if idx < self.done: return
        n = len(self.q) - 1 - idx
        self.a(f"s_waitcnt {self.name}({min(n, self.mx)})")
        self.done = idx + 1 if n <= self.mx else len(self.q) - self.mx
    def all(self):
        self.a(f"s_waitcnt {self.name}(0)"); self.done = len(self.q)

def tr_direct(a, opt, seg, n, v1, v2):
    if opt.get('trace'):
        a("s_waitcnt lgkmcnt(0)")
        for k in range(n): a(f"v_writelane_b32 v{v1}, s{90+2*k}, {k}")
        a(f"""v_lshlrev_b32 v{v2}, 8, v1
s_lshl_b32 s100, {seg}, 2
s_add_u32 s100, s100, s101
s_mov_b64 exec, {(1<<n)-1}
buffer_store_dword v{v1}, v{v2}, {WS}, s100 offen
s_mov_b64 exec, -1""")

def layernorm8f(a, x, o, t):
    P2 = lambda r: f"v[{r}:{r+1}]"
    a(f"""v_pk_add_f32 {P2(t)}, {P2(x)}, {P2(x+2)}
v_pk_mul_f32 {P2(t+2)}, {P2(x)}, {P2(x)}
v_pk_add_f32 {P2(t)}, {P2(t)}, {P2(x+4)}
v_pk_fma_f32 {P2(t+2)}, {P2(x+2)}, {P2(x+2)}, {P2(t+2)}
v_pk_add_f32 {P2(t)}, {P2(t)}, {P2(x+6)}
v_pk_fma_f32 {P2(t+2)}, {P2(x+4)}, {P2(x+4)}, {P2(t+2)}
v_add_f32 v{t}, v{t}, v{t+1}
v_pk_fma_f32 {P2(t+2)}, {P2(x+6)}, {P2(x+6)}, {P2(t+2)}
v_add_f32 v{t+2}, v{t+2}, v{t+3}""")
    a(f"""v_permlane32_swap_b32 v{t}, v{t+2}
v_add_f32 v{t}, v{t}, v{t+2}""")
    for r in (8, 4, 2, 1):
        a(f"v_add_f32_dpp v{t}, v{t}, v{t} row_ror:{r} row_mask:0xf bank_mask:0xf")
    a(f"""v_mov_b32 v{t+1}, v{t}
v_permlane16_swap_b32 v{t+1}, v{t}
v_add_f32 v{t+2}, v{t}, v{t+1}
v_add_f32 v{t}, v{t}, v{t+1}
v_mov_b32 v{t+3}, 0x3727c5ac
v_permlane32_swap_b32 v{t}, v{t+2}
v_mul_f32 v{t}, 0x3b000000, v{t}
v_mul_f32 v{t+2}, 0x3b000000, v{t+2}
v_fma_f32 v{t+2}, -v{t}, v{t}, v{t+2}
v_max_f32 v{t+2}, 0, v{t+2}
v_add_f32 v{t+2}, v{t+2}, v{t+3}
v_rsq_f32 v{t+2}, v{t+2}""")
    for i in range(0, 8, 2): a(f"v_pk_add_f32 {P2(x+i)}, {P2(x+i)}, {P2(t)} op_sel_hi:[1,0] neg_lo:[0,1] neg_hi:[0,1]")
    for i in range(0, 8, 2): a(f"v_pk_mul_f32 {P2(x+i)}, {P2(x+i)}, {P2(t+2)} op_sel_hi:[1,0]")
    for i in range(4): a(f"v_cvt_pk_bf16_f32 v{o+i}, v{x+2*i}, v{x+2*i+1}")

def interleave(a, fns):
    L = []
    for f in fns:
        b = Asm(); f(b); L.append(list(b.items))
    while any(L):
        for x in L:
            if x: a.items.append(x.pop(0))

def warm_weights(a, g0):
    srd(a, 40, P_WO, 0x400000)
    a(f"""s_lshl_b32 s33, {S_I}, 2
s_add_u32 s33, s33, {S_W}
s_lshl_b32 s33, s33, 15
v_lshlrev_b32 v60, 7, v1""")
    for k in range(4):
        a(f"buffer_load_dword v61, v60, s[40:43], s33 offen\ns_add_u32 s33, s33, 8192")

def diag(a, opt, word, vt):
    if opt.get('diag'):
        a(f"""s_memrealtime s[92:93]
s_waitcnt lgkmcnt(0)
v_mov_b32 v{vt}, s92
s_mov_b64 exec, 1
buffer_atomic_umax v{vt}, off, {DBG}, 0 offset:{word*4} sc1
s_mov_b64 exec, -1""")
```

```python
from asmlib import *
from layout import *

KNAME = "interleave_layers__memory_aug_recurrent_mem_tr__dense_activation_relu__prompt_kernel"
S_BUD = 's3'
S_W   = 's4'
S_G   = 's5'
S_I   = 's6'
S_L   = 's7'
WS    = 's[8:11]'
DBG   = 's[24:27]'
P_X, P_MEM0, P_WQ, P_WK, P_WV, P_WO, P_W1, P_W2, P_OUT, P_DBG, P_WS = 64, 66, 68, 70, 72, 74, 80, 82, 84, 86, 88
BUDGET = 400000

def srd(a, d, p, size):
    a(f"""s_mov_b32 s{d}, s{p}
s_mov_b32 s{d+1}, s{p+1}
s_mov_b32 s{d+2}, {size}
s_mov_b32 s{d+3}, 0x20000""")

def spin_dec(a, code):
    a(f"""s_sub_u32 {S_BUD}, {S_BUD}, 1
s_cbranch_scc1 bail_{code}""")
    a.bails.add(code)

def emit_bails(a):
    for c in sorted(a.bails):
        a(f"""bail_{c}:
s_movk_i32 s28, {c}
s_branch bail_common""")
    a(f"""bail_common:
s_mov_b64 exec, 1
s_lshl_b32 s29, {S_G}, 16
s_or_b32 s28, s28, s29
s_lshl_b32 s29, {S_I}, 8
s_or_b32 s28, s28, s29
s_lshl_b32 s29, {S_W}, 24
s_or_b32 s28, s28, s29
s_or_b32 s28, s28, 0x80000000
s_and_b32 s29, {S_G}, 7
s_lshl_b32 s29, s29, 2
s_add_u32 s29, s29, {D_ERR*4}
v_mov_b32 v2, s28
v_mov_b32 v3, s29
buffer_store_dword v2, v3, {DBG}, 0 offen sc1
s_waitcnt vmcnt(0)
s_endpgm""")

def allreduce(a, v, t, op='add'):
    for r in (8, 4, 2, 1):
        a(f"v_{op}_f32_dpp {v}, {v}, {v} row_ror:{r} row_mask:0xf bank_mask:0xf")
    a(f"""v_mov_b32 {t}, {v}
v_permlane16_swap_b32 {t}, {v}
v_{op}_f32 {v}, {v}, {t}
v_mov_b32 {t}, {v}
v_permlane32_swap_b32 {t}, {v}
v_{op}_f32 {v}, {v}, {t}""")

def layernorm8(a, x, o, t):
    s, u = f'v{t}', f'v{t+1}'
    a(f"""v_add_f32 {s}, v{x}, v{x+1}
v_add_f32 {u}, v{x+2}, v{x+3}
v_add_f32 {s}, {s}, v{x+4}
v_add_f32 {u}, {u}, v{x+5}
v_add_f32 {s}, {s}, v{x+6}
v_add_f32 {u}, {u}, v{x+7}
v_add_f32 {s}, {s}, {u}""")
    allreduce(a, s, u)
    a(f"v_mul_f32 {s}, 0x3b000000, {s}")
    for i in range(8): a(f"v_sub_f32 v{x+i}, v{x+i}, {s}")
    a(f"v_mul_f32 {s}, v{x}, v{x}\nv_mul_f32 {u}, v{x+1}, v{x+1}")
    for i in range(2, 8): a(f"v_fmac_f32 {s if i%2==0 else u}, v{x+i}, v{x+i}")
    a(f"v_add_f32 {s}, {s}, {u}")
    allreduce(a, s, u)
    a(f"""v_mov_b32 {u}, 0x3727c5ac
v_fmac_f32 {u}, 0x3b000000, {s}
v_rsq_f32 {u}, {u}""")
    for i in range(8): a(f"v_mul_f32 v{x+i}, v{x+i}, {u}")
    for i in range(4): a(f"v_cvt_pk_bf16_f32 v{o+i}, v{x+2*i}, v{x+2*i+1}")

def load_counters(a, v):
    a(f"""v_and_b32 v{v+1}, 15, v1
v_lshlrev_b32 v{v+1}, 2, v{v+1}
v_add_u32 v{v+1}, {D_TICK*4}, v{v+1}
v_cmp_eq_u32 vcc, {D_TICK*4}, v{v+1}
v_cndmask_b32 v{v+1}, v{v+1}, 0, vcc
buffer_load_dword v{v}, v{v+1}, {DBG}, 0 offen sc1
s_waitcnt vmcnt(0)""".replace("v_cndmask_b32 v%d, v%d, 0, vcc" % (v+1, v+1), "v_cndmask_b32_e64 v%d, v%d, 0, vcc" % (v+1, v+1)))

def total_counters(a, v, sd, st):
    a(f"v_readlane_b32 s{sd}, v{v}, 0")
    for x in range(1, 16):
        a(f"v_readlane_b32 s{st}, v{v}, {x}\ns_nop 0\ns_add_u32 s{sd}, s{sd}, s{st}")

def prologue(a, opt):
    a(f"""s_cmp_ge_u32 s2, 256
s_cbranch_scc1 the_end
s_load_dwordx16 s[64:79], s[0:1], 0
s_load_dwordx8 s[80:87], s[0:1], 64
s_load_dwordx2 s[88:89], s[0:1], 96
s_memrealtime s[90:91]
s_getreg_b32 s30, hwreg(HW_REG_XCC_ID)
s_and_b32 s30, s30, 15
s_mov_b32 {S_BUD}, {BUDGET}
s_mov_b32 {S_G}, 0
s_mov_b32 {S_I}, 0
s_mov_b32 {S_L}, 0
v_lshrrev_b32 v1, 6, v0
v_readfirstlane_b32 {S_W}, v1
v_and_b32 v1, 63, v0""")
    if opt.get('fake_xcc') == 'all9': a("s_mov_b32 s30, 9")
    if opt.get('fake_xcc') == 'some':
        a("""s_and_b32 s31, s2, 0x19
s_cmp_eq_u32 s31, 0x19
s_cselect_b32 s30, 9, s30""")
    mp = opt.get('MAP', [0, 3, 5, 6, 1, 2, 4, 7])
    assert sorted(mp) == list(range(8))
    a(f"""s_lshl_b32 s31, s30, 2
s_lshr_b32 s31, {hex(sum(g << (4*x) for x, g in enumerate(mp)))}, s31
s_and_b32 s31, s31, 7
s_cmp_lt_u32 s30, 8
s_cselect_b32 s30, s31, s30""")
    a("s_waitcnt lgkmcnt(0)")
    srd(a, 8, P_WS, hex(WS_SIZE))
    srd(a, 24, P_DBG, 256)
    a(f"""s_cmp_eq_u32 {S_W}, 0
s_cbranch_scc0 pro_nt
s_lshl_b32 s31, s30, 2
s_add_u32 s31, s31, {D_TICK*4}
s_cmp_eq_u32 s30, 0
s_cselect_b32 s31, {D_TICK0*4}, s31
s_mov_b64 exec, 1
v_mov_b32 v2, s31
v_mov_b32 v3, 1
buffer_atomic_add v3, v2, {DBG}, 0 offen sc0 sc1
s_mul_i32 s31, s30, 300
s_add_u32 s90, s90, s31
s_add_u32 s90, s90, {opt.get('CALD', 340)}
s_or_b32 s90, s90, 3
v_mov_b32 v8, s90
v_mov_b32 v9, 0
s_cmp_lt_u32 s30, 2
s_cbranch_scc0 pro_nc
s_lshl_b32 s31, s30, 2
buffer_atomic_cmpswap v[8:9], off, {DBG}, s31 offset:{D_CAL*4} sc0 sc1
pro_nc:
v_mov_b32 v2, 0
s_waitcnt vmcnt(0)
v_mov_b32 v9, s90
v_cmp_eq_u32 vcc, 0, v8
v_cndmask_b32 v8, v8, v9, vcc
ds_write2_b32 v2, v3, v8 offset1:1
s_mov_b64 exec, -1
pro_nt:
s_waitcnt vmcnt(0) lgkmcnt(0)
s_barrier
v_mov_b32 v2, 0
ds_read2_b32 v[8:9], v2 offset1:1""")
    a(f"""s_waitcnt lgkmcnt(0)
v_readfirstlane_b32 {S_I}, v8
v_readfirstlane_b32 s99, v9
s_barrier
s_mov_b32 {S_G}, s30
s_cmp_lt_u32 s30, 8
s_cselect_b32 s31, 32, 0
s_cmp_lt_u32 {S_I}, s31
s_cbranch_scc1 pro_done
s_sub_u32 s32, {S_I}, s31
pro_ov:""")
    spin_dec(a, 1)
    a("s_sleep 8")
    load_counters(a, 4)
    total_counters(a, 4, 33, 34)
    a("""s_cmp_lt_u32 s33, 256
s_cbranch_scc1 pro_ov""")
    for x in range(15):
        cap = 32 if x < 8 else 0
        a(f"""v_readlane_b32 s34, v4, {x}
s_nop 0
s_max_u32 s34, s34, {cap}
s_sub_u32 s34, s34, {cap}
s_cmp_gt_u32 s30, {x}
s_cselect_b32 s34, s34, 0
s_add_u32 s32, s32, s34""")
    for g in range(8):
        a(f"""v_readlane_b32 s34, v4, {g}
s_nop 0
s_min_u32 s34, s34, 32
s_mov_b32 {S_G}, {g}
s_add_u32 {S_I}, s34, s32
s_cmp_lt_u32 {S_I}, 32
s_cbranch_scc1 pro_done
s_sub_u32 s32, {S_I}, 32""")
    a("s_branch the_end\npro_done:")
    a(f"s_and_b32 {S_I}, {S_I}, 31\ns_and_b32 {S_G}, {S_G}, 7")

def decide_mode(a, slow_label, vt=4):
    L = a.newlabel('dm'); F = a.newlabel('dmf')
    a(f"{L}:")
    load_counters(a, vt)
    a(f"""v_readlane_b32 s34, v{vt}, {S_G}
s_nop 0
s_cmp_ge_u32 s34, 32
s_cbranch_scc1 {F}""")
    total_counters(a, vt, 33, 34)
    a(f"""s_cmp_ge_u32 s33, 256
s_cbranch_scc1 {slow_label}""")
    spin_dec(a, 2)
    a(f"s_sleep 8\ns_branch {L}\n{F}:")

def wait_dbg(a, idx_expr_sgpr_or_const, thr, code, vt=4, sleep=8):
    L = a.newlabel('wd'); D = a.newlabel('wdd')
    a(f"""v_mov_b32 v{vt+1}, {idx_expr_sgpr_or_const}
s_mov_b64 exec, 1
{L}:
buffer_load_dword v{vt}, v{vt+1}, {DBG}, 0 offen sc1
s_waitcnt vmcnt(0)
v_cmp_gt_u32 vcc, {thr}, v{vt}
s_cbranch_vccz {D}""")
    spin_dec(a, code)
    a(f"s_sleep {sleep}\ns_branch {L}\n{D}:\ns_mov_b64 exec, -1")

def stage_tr(a, n, slots, slot_bytes, s_m0base, dma, consume, per=1, hook=None):
    def issue(i):
        for q in range(per):
            a(f"s_add_u32 m0, {s_m0base}, {(i % slots) * slot_bytes + q * 1024}")
            dma(i, q)
    for i in range(min(slots, n)):
        issue(i)
        if hook and i == 1: hook()
    for i in range(n):
        out = min(n, i + slots) - (i + 1) if i == 0 else min(n, i - 1 + slots) - (i + 1)
        a(f"s_waitcnt vmcnt({max(out,0)*per})")
        nrd = consume(i, (i % slots) * slot_bytes)
        if i >= 1 and i - 1 + slots < n:
            a(f"s_waitcnt lgkmcnt({nrd})")
            issue(i - 1 + slots)
    a("s_waitcnt lgkmcnt(0)")

def tr_stamp(a, opt, k):
    if opt.get('trace'): a(f"{'s_memrealtime' if opt.get('rt') else 's_memtime'} s[{90+2*k}:{91+2*k}]")
def tr_flush(a, opt, lane, ks, vb, wait=False):
    if opt.get('trace'):
        if wait: a("s_waitcnt lgkmcnt(0)")
        a(f"s_mov_b32 s100, m0\ns_mov_b32 m0, {lane}")
        for k in ks: a(f"v_writelane_b32 v{vb+k}, s{90+2*k}, m0")
        a("s_mov_b32 m0, s100")
def tr_begin(a, opt):
    if opt.get('trace'):
        a(f"""s_memrealtime s[90:91]
s_memtime s[92:93]
s_lshl_b32 s94, {S_G}, 5
s_add_u32 s94, s94, {S_I}
s_lshl_b32 s94, s94, 2
s_add_u32 s94, s94, {S_W}
s_lshl_b32 s94, s94, 11
s_add_u32 s101, s94, {TRACE}
s_waitcnt lgkmcnt(0)
v_mov_b32 v2, s90
v_mov_b32 v3, s92
v_mov_b32 v4, 0
s_mov_b64 exec, 1
buffer_store_dwordx2 v[2:3], v4, {WS}, s101 offen offset:2040
s_mov_b64 exec, -1
s_waitcnt vmcnt(0)""")
def tr_dump(a, opt, n, vb, vt):
    if opt.get('trace'):
        a(f"v_lshlrev_b32 v{vt}, 2, v1")
        for k in range(n): a(f"buffer_store_dword v{vb+k}, v{vt}, {WS}, s101 offen offset:{256*k}")
        a(f"""s_memrealtime s[90:91]
s_memtime s[92:93]
s_waitcnt lgkmcnt(0) vmcnt(0)
v_mov_b32 v{vb}, s90
v_mov_b32 v{vb+1}, s92
s_mov_b64 exec, 1
buffer_store_dwordx2 v[{vb}:{vb+1}], v{vt}, {WS}, s101 offen offset:2032
s_mov_b64 exec, -1""")


class Cnt:
    def __init__(self, a, name, mx):
        self.a, self.name, self.mx, self.q, self.done = a, name, mx, [], 0
    def issue(self, text, tag=None):
        self.a(text); self.q.append(tag)
    def wait(self, *tags):
        idx = max(max(i for i, t in enumerate(self.q) if t == tag) for tag in tags)
        if idx < self.done: return
        n = len(self.q) - 1 - idx
        self.a(f"s_waitcnt {self.name}({min(n, self.mx)})")
        self.done = idx + 1 if n <= self.mx else len(self.q) - self.mx
    def all(self):
        self.a(f"s_waitcnt {self.name}(0)"); self.done = len(self.q)

def tr_direct(a, opt, seg, n, v1, v2):
    if opt.get('trace'):
        a("s_waitcnt lgkmcnt(0)")
        for k in range(n): a(f"v_writelane_b32 v{v1}, s{90+2*k}, {k}")
        a(f"""v_lshlrev_b32 v{v2}, 8, v1
s_lshl_b32 s100, {seg}, 2
s_add_u32 s100, s100, s101
s_mov_b64 exec, {(1<<n)-1}
buffer_store_dword v{v1}, v{v2}, {WS}, s100 offen
s_mov_b64 exec, -1""")

def layernorm8f(a, x, o, t, keep=None):
    P2 = lambda r: f"v[{r}:{r+1}]"
    a(f"""v_pk_add_f32 {P2(t)}, {P2(x)}, {P2(x+2)}
v_pk_mul_f32 {P2(t+2)}, {P2(x)}, {P2(x)}
v_pk_add_f32 {P2(t)}, {P2(t)}, {P2(x+4)}
v_pk_fma_f32 {P2(t+2)}, {P2(x+2)}, {P2(x+2)}, {P2(t+2)}
v_pk_add_f32 {P2(t)}, {P2(t)}, {P2(x+6)}
v_pk_fma_f32 {P2(t+2)}, {P2(x+4)}, {P2(x+4)}, {P2(t+2)}
v_add_f32 v{t}, v{t}, v{t+1}
v_pk_fma_f32 {P2(t+2)}, {P2(x+6)}, {P2(x+6)}, {P2(t+2)}
v_add_f32 v{t+2}, v{t+2}, v{t+3}""")
    a(f"""v_permlane32_swap_b32 v{t}, v{t+2}
v_add_f32 v{t}, v{t}, v{t+2}""")
    fill = []
    if keep is not None:
        fill = [f"v_cvt_pk_bf16_f32 v{keep+i}, v{x+2*i}, v{x+2*i+1}" for i in range(4)] + \
               [f"v_permlane16_swap_b32 v{keep}, v{keep+2}", f"v_permlane16_swap_b32 v{keep+1}, v{keep+3}", f"v_min_u32 v{keep}, -2, v{keep}"]
    for r in (8, 4, 2, 1):
        for _ in range(2):
            if fill: a(fill.pop(0))
        a(f"v_add_f32_dpp v{t}, v{t}, v{t} row_ror:{r} row_mask:0xf bank_mask:0xf")
    a(f"""v_mov_b32 v{t+1}, v{t}
v_permlane16_swap_b32 v{t+1}, v{t}
v_add_f32 v{t+2}, v{t}, v{t+1}
v_add_f32 v{t}, v{t}, v{t+1}
v_mov_b32 v{t+3}, 0x3727c5ac
v_permlane32_swap_b32 v{t}, v{t+2}
v_mul_f32 v{t}, 0x3b000000, v{t}
v_mul_f32 v{t+2}, 0x3b000000, v{t+2}
v_fma_f32 v{t+2}, -v{t}, v{t}, v{t+2}
v_max_f32 v{t+2}, 0, v{t+2}
v_add_f32 v{t+2}, v{t+2}, v{t+3}
v_rsq_f32 v{t+2}, v{t+2}""")
    for i in range(0, 8, 2): a(f"v_pk_add_f32 {P2(x+i)}, {P2(x+i)}, {P2(t)} op_sel_hi:[1,0] neg_lo:[0,1] neg_hi:[0,1]")
    for i in range(0, 8, 2): a(f"v_pk_mul_f32 {P2(x+i)}, {P2(x+i)}, {P2(t+2)} op_sel_hi:[1,0]")
    for i in (0, 2, 1, 3): a(f"v_cvt_pk_bf16_f32 v{o+i}, v{x+2*i}, v{x+2*i+1}")
    if keep is not None:
        a(f"v_permlane16_swap_b32 v{o}, v{o+2}\nv_permlane16_swap_b32 v{o+1}, v{o+3}\nv_min_u32 v{o}, -2, v{o}")

def interleave(a, fns):
    L = []
    for f in fns:
        b = Asm(); f(b); L.append(list(b.items))
    while any(L):
        for x in L:
            if x: a.items.append(x.pop(0))

def warm_weights(a, g0):
    srd(a, 40, P_WO, 0x400000)
    a(f"""s_lshl_b32 s33, {S_I}, 2
s_add_u32 s33, s33, {S_W}
s_lshl_b32 s33, s33, 15
v_lshlrev_b32 v60, 7, v1""")
    for k in range(4):
        a(f"buffer_load_dword v61, v60, s[40:43], s33 offen\ns_add_u32 s33, s33, 8192")

def diag(a, opt, word, vt):
    if opt.get('diag'):
        a(f"""s_memrealtime s[92:93]
s_waitcnt lgkmcnt(0)
v_mov_b32 v{vt}, s92
s_mov_b64 exec, 1
buffer_atomic_umax v{vt}, off, {DBG}, 0 offset:{word*4} sc1
s_mov_b64 exec, -1""")

GINIT_N = 64
XROW = 1040
def xq_addr(a, v, t, s_m0):
    a(f"""v_lshrrev_b32 {v}, 3, v1
v_mul_u32_u24 {v}, {XROW}, {v}
v_and_b32 {t}, 7, v1
v_lshl_add_u32 {v}, {t}, 7, {v}
v_add_u32 {v}, {s_m0}, {v}""")
def xq_read(vaddr, V): return f"ds_read2_b32 v[{V}:{V+1}], {vaddr} offset1:16"
def xq_cmp(V, SM): return [f"v_max_u32 v{V}, v{V}, v{V+1}", f"v_cmp_eq_u32 s[{SM}:{SM+1}], -1, v{V}"]
def xfetch_loop(a, name, vga, vaddr, V, SM, s_m0, s_src, st, code):
    a(f"{name}:")
    spin_dec(a, code)
    for r in range(8):
        L = a.newlabel('xf')
        a(f"""s_and_b32 {st}, s{SM + (r >> 2)}, {hex(0xff << (8*(r & 3)))}
s_cbranch_scc0 {L}
s_add_u32 m0, {s_m0}, {r*XROW}
s_add_u32 {st}, {s_src}, {r*1024}
buffer_load_dwordx4 {vga}, {WS}, {st} offen sc1 lds
{L}:""")
    a("s_waitcnt vmcnt(0)\n" + xq_read(vaddr, V) + "\ns_waitcnt lgkmcnt(0)")
    for x in xq_cmp(V, SM): a(x)
    a(f"s_cmp_lg_u64 s[{SM}:{SM+1}], 0\ns_cbranch_scc1 {name}")
def xredo(a, name, back, vga, s_m0, s_src, s_adv, st, st2, code):
    a(f"{name}:")
    spin_dec(a, code)
    a(f"s_waitcnt lgkmcnt(0)\ns_barrier\ns_sub_u32 {st2}, {s_src}, {s_adv}")
    for r in range(8):
        a(f"s_xor_b32 {st}, {s_m0}, 0x10000\ns_add_u32 m0, {st}, {r*XROW}\ns_add_u32 {st}, {st2}, {r*1024}\nbuffer_load_dwordx4 {vga}, {WS}, {st} offen sc1 lds")
    a(f"s_waitcnt vmcnt(0)\ns_branch {back}")

def light_wait(a, s_src, vt, code, sleep=8):
    L = a.newlabel('lw')
    a(f"s_mov_b64 exec, 1\n{L}:")
    spin_dec(a, code)
    a(f"""s_sleep {sleep}
buffer_load_dword v{vt}, off, {WS}, {s_src} sc1
s_waitcnt vmcnt(0)
v_cmp_eq_u32 vcc, -1, v{vt}
s_cbranch_vccnz {L}
s_mov_b64 exec, -1""")
```

```python
from common import *
SCL = 0x3e0293ee
SYNC = 0x4000
BIG = 0x40000000

def lds_spin(a, vaddr, vt, nwords, off, thr, code, sleep=1):
    L = a.newlabel('ls'); D = a.newlabel('lsd')
    a(f"{L}:")
    if nwords == 1:
        a(f"ds_read_b32 v{vt}, {vaddr} offset:{off}\ns_waitcnt lgkmcnt(0)")
    else:
        a(f"ds_read2_b32 v[{vt}:{vt+1}], {vaddr} offset0:{off//4} offset1:{off//4+1}\ns_waitcnt lgkmcnt(0)\nv_min_i32 v{vt}, v{vt}, v{vt+1}")
    a(f"v_cmp_gt_i32 vcc, {thr}, v{vt}\ns_cbranch_vccz {D}")
    spin_dec(a, code)
    if sleep: a(f"s_sleep {sleep}")
    a(f"s_branch {L}\n{D}:")

def load_w_perm8(a, srdname, vaddr, s_base, nz, dst, tmp):
    a("s_mov_b32 s58, 0x05040100\ns_mov_b32 s59, 0x07060302")
    NB = 4
    def issue(z):
        sb, off = s_base(z)
        for j in range(8):
            r = tmp + 32 * (z % NB) + 4 * j
            a(f"s_add_u32 s33, {sb}, {off + (8*(j >> 2) + (j & 3)) * 1024}")
            a(f"buffer_load_dwordx4 v[{r}:{r+3}], {vaddr}, {srdname}, s33 offen")
    for z in range(min(NB, nz)): issue(z)
    t = tmp + 32 * NB
    for z in range(nz):
        a(f"s_waitcnt vmcnt({8 * (min(nz, z + NB) - z - 1)})")
        b = tmp + 32 * (z % NB)
        for tau in range(8):
            for i in range(4):
                lo, hi = b + 8*i + (tau >> 1), b + 8*i + 4 + (tau >> 1)
                a(f"v_perm_b32 v{t + (i&1)}, v{hi}, v{lo}, {'s58' if tau % 2 == 0 else 's59'}")
                a(f"v_accvgpr_write_b32 a{dst(tau, z) + i}, v{t + (i&1)}")
        if z + NB < nz: issue(z + NB)

def w_addr(a, v, t):
    a(f"""v_bfe_u32 {v}, v1, 4, 1
v_lshlrev_b32 {v}, 14, {v}
v_lshrrev_b32 {t}, 5, v1
v_lshl_add_u32 {v}, {t}, 12, {v}
v_and_b32 {t}, 15, v1
v_lshl_add_u32 {v}, {t}, 4, {v}""")

def half_epilogue(G, PK, vaddr, s_slot, s_phase, TS, half, SC1):
    L = []
    for r in range(4):
        p = PK + 4 * r
        L += [f"v_cvt_pk_bf16_f32 v{p+i}, v{G+8*i+r}, v{G+8*i+4+r}" for i in range(4)]
        L += [f"v_and_or_b32 v{p}, v{p}, -2, {s_phase}", f"s_add_u32 s33, {s_slot}, {(16*half + r) * TS}",
              f"buffer_store_dwordx4 v[{p}:{p+3}], {vaddr}, {WS}, s33 offen{SC1}"]
    return L

def shadow16(a, L):
    if L and not L[0].startswith('v_'): a(L.pop(0))
    for _ in range(2):
        if L and L[0].startswith('v_'): a(L.pop(0))

def part_addr(a, v, t, TS):
    a(f"""v_lshrrev_b32 {v}, 4, v1
v_mul_u32_u24 {v}, {4*TS}, {v}
v_and_b32 {t}, 15, v1
v_lshl_add_u32 {v}, {t}, 4, {v}""")

def swap4(a, r):
    a(f"v_permlane16_swap_b32 v{r}, v{r+2}\nv_permlane16_swap_b32 v{r+1}, v{r+3}")

def selectors(a, S1, S2, t):
    a(f"""v_bfe_u32 v{t}, v1, 1, 3
v_and_b32 v{t+1}, 1, v1
v_lshlrev_b32 v{t+1}, 4, v{t+1}
v_mov_b32 v{t+2}, 0x3f80
v_lshlrev_b32 v{t+1}, v{t+1}, v{t+2}""")
    for q in range(4):
        a(f"v_cmp_eq_u32 vcc, {q}, v{t}\nv_cndmask_b32 v{S1+q}, 0, v{t+1}, vcc")
        a(f"v_cmp_eq_u32 vcc, {q+4}, v{t}\nv_cndmask_b32 v{S2+q}, 0, v{t+1}, vcc")

def reduce_loads(a, NQ, vaddrs, s_base, D, groups=(0, 1, 2, 3)):
    for q in range(NQ):
        if q: a(f"s_add_u32 s33, {s_base}, {4096*q}")
        for gi, G in enumerate(groups):
            r = D + 4 * (len(groups)*q + gi)
            a(f"buffer_load_dwordx4 v[{r}:{r+3}], {vaddrs[q]}, {WS}, {'s33' if q else s_base} offen offset:{256*G} sc1")

def reduce_sum(a, NQ, D, S1, S2, R, vt, s_phase, after, lastmask=None, groups=(0, 1, 2, 3), cin=None, mid=None):
    n = len(groups) * NQ
    started = set()
    for i in range(n):
        q, G = i // len(groups), groups[i % len(groups)]
        r = D + 4 * i
        if mid: after += mid(i)
        a(f"s_waitcnt vmcnt({n - 1 - i + after})")
        acc = R + 4 * (G & 1)
        first = acc not in started
        started.add(acc)
        S = S1 if G < 2 else S2
        c0 = '0' if cin is None else f'v[{cin + 4*(G&1)}:{cin + 4*(G&1) + 3}]'
        a(f"v_mfma_f32_16x16x32_bf16 v[{acc}:{acc+3}], v[{S}:{S+3}], v[{r}:{r+3}], {c0 if first else f'v[{acc}:{acc+3}]'}")
        tv = vt + 1 if (lastmask and q == NQ - 1) else vt
        if i == 0 or (lastmask and i == n - 4): a(f"v_xor_b32 v{tv}, {s_phase}, v{r}")
        else: a(f"v_bitop3_b32 v{tv}, v{tv}, {s_phase}, v{r} bitop3:0xf6")
    if lastmask: a(f"v_and_or_b32 v{vt}, v{vt+1}, {lastmask}, v{vt}")
    a(f"v_and_b32 v{vt}, 1, v{vt}\nv_cmp_ne_u32 vcc, 0, v{vt}")

def add_resid(a, R, X, O):
    for i in range(4):
        a(f"""v_lshlrev_b32 v{O}, 16, v{X+i}
v_and_b32 v{O+1}, 0xffff0000, v{X+i}
v_add_f32 v{R+2*i}, v{R+2*i}, v{O}
v_add_f32 v{R+2*i+1}, v{R+2*i+1}, v{O+1}""")
    for i in range(4): a(f"v_cvt_pk_bf16_f32 v{O+i}, v{R+2*i}, v{R+2*i+1}")

def add_resid2(a, R, U, O):
    for i in range(0, 8, 2): a(f"v_pk_add_f32 v[{R+i}:{R+i+1}], v[{R+i}:{R+i+1}], v[{U+i}:{U+i+1}]")
    for i in range(4): a(f"v_cvt_pk_bf16_f32 v{O+i}, v{R+2*i}, v{R+2*i+1}")

def unpack8(a, R, O):
    for i in range(4): a(f"v_lshlrev_b32 v{R+2*i}, 16, v{O+i}\nv_and_b32 v{R+2*i+1}, 0xffff0000, v{O+i}")

def flag_store(a, val, vt, vz, soff):
    a(f"""v_mov_b32 v{vt}, {val}
s_mov_b64 exec, 1
buffer_store_dword v{vt}, {vz}, {WS}, {soff} offen sc1
s_mov_b64 exec, -1""")

def done_store(a, val, vt, vz, soff, smode, ex):
    L = a.newlabel('dn'); E = a.newlabel('dne')
    a(f"""v_mov_b32 v{vt}, {val}
s_mov_b64 exec, {ex}
s_cmp_eq_u32 {smode}, 0
s_cbranch_scc0 {L}
buffer_store_dword v{vt}, {vz}, {WS}, {soff} offen
s_branch {E}
{L}:
buffer_store_dword v{vt}, {vz}, {WS}, {soff} offen sc1
{E}:
s_mov_b64 exec, -1""")

def phase_slot(a, s_seg, s_phase, s_slot, s_ring, shift):
    a(f"""s_lshr_b32 {s_phase}, {s_seg}, 1
s_and_b32 {s_phase}, {s_phase}, 1
s_xor_b32 {s_phase}, {s_phase}, 1
s_and_b32 {s_slot}, {s_seg}, 1
s_lshl_b32 {s_slot}, {s_slot}, {shift}
s_add_u32 {s_slot}, {s_slot}, {s_ring}""")

def ring_next(a, s_idx, s_phase, s_slot, s_ring, shift, R):
    a(f"""s_add_u32 {s_idx}, {s_idx}, 1
s_cmp_eq_u32 {s_idx}, {R}
s_cselect_b32 {s_idx}, 0, {s_idx}
s_cselect_b32 {s_slot}, 1, 0
s_xor_b32 {s_phase}, {s_phase}, {s_slot}
s_lshl_b32 {s_slot}, {s_idx}, {shift}
s_add_u32 {s_slot}, {s_slot}, {s_ring}""")

def role_ao(a, opt):
    AOR = opt.get('AOR', globals()['AOR'])
    if 'ao_layers' in opt:
        for l in (0, 1):
            if l not in opt['ao_layers']: a(f"s_cmp_eq_u32 {S_L}, {l}\ns_cbranch_scc1 the_end")
    a(f"""v_lshlrev_b32 v2, 2, v1
v_add_u32 v2, {SYNC}, v2
v_mov_b32 v3, 0
ds_write_b32 v2, v3
s_waitcnt lgkmcnt(0)
s_barrier
v_mov_b32 v2, {SYNC}
v_lshlrev_b32 v3, 4, v1
s_mov_b32 s20, 0
s_mov_b32 s44, {AOR-1}
s_mov_b32 s22, 0
s_cmp_eq_u32 {S_W}, 0
s_cbranch_scc1 ao_A
s_cmp_eq_u32 {S_W}, 3
s_cbranch_scc1 ao_R""")
    def wait_init(code):
        if not opt.get('noinit'):
            a(f"s_movk_i32 s33, {GINIT_N}")
            wait_dbg(a, D_GINIT*4, 's33', code, vt=4)
    OHO = AOR * MB // 2
    srd(a, 12, P_WO, 0x400000)
    a(f"""s_sub_u32 s36, {S_W}, 1
s_and_b32 s33, {S_I}, 1
s_lshl_b32 s33, s33, 1
s_add_u32 s45, s33, s36
s_lshl_b32 s33, s45, 8
s_lshl_b32 s37, {S_I}, 17
s_add_u32 s37, s37, s33
s_xor_b32 s46, s37, 0x20000
""")
    w_addr(a, 'v4', 'v5')
    load_w_perm8(a, 's[12:15]', 'v4', lambda z: ('s37' if z < 4 else 's46', (z & 3) * 32768), 8, lambda tau, z: (tau*8 + z) * 4, 16)
    diag(a, opt, 13, 8)
    wait_init(20)
    part_addr(a, 'v6', 'v7', 16384)
    a(f"""s_lshl_b32 s38, {S_L}, 22
s_add_u32 s38, s38, {AORING}
s_xor_b32 s33, {S_I}, 1
s_lshl_b32 s33, s33, 13
s_add_u32 s47, s38, s33
s_add_u32 s47, s47, {OHO}
s_lshr_b32 s33, {S_I}, 1
s_lshl_b32 s33, s33, 10
s_add_u32 s38, s38, s33
s_lshl_b32 s33, s45, 8
s_add_u32 s38, s38, s33
s_lshl_b32 s33, s36, 2
v_add_u32 v7, s33, v2
s_lshl_b32 s33, {S_L}, 7
s_add_u32 s39, s33, {F_AOD}
s_lshl_b32 s33, {S_L}, 9
s_lshl_b32 s34, s36, 7
s_add_u32 s33, s33, s34
s_lshl_b32 s34, {S_I}, 2
s_add_u32 s33, s33, s34
s_add_u32 s41, s33, {F_AOM}
s_lshl_b32 s33, {S_L}, 8
s_lshl_b32 s34, {S_I}, 3
s_add_u32 s33, s33, s34
s_lshl_b32 s34, s36, 2
s_add_u32 s33, s33, s34
s_add_u32 s42, s33, {F_AOP}
v_and_b32 v12, 31, v1
v_lshlrev_b32 v12, 2, v12""")
    a("""v_bfe_u32 v8, v1, 4, 1
v_lshlrev_b32 v8, 10, v8
v_lshrrev_b32 v11, 5, v1
v_lshl_add_u32 v8, v11, 9, v8
v_and_b32 v11, 15, v1
v_lshl_add_u32 v8, v11, 4, v8
v_mov_b32 v15, v8""")
    OFR, PK, GS, PFS = 16, 48, (80, 112), (144, 176)
    for f in range(8): a(f"v_mov_b32 v{PFS[0]+4*f}, 0")
    decide_mode(a, 'aows_top0')
    for P, SC1 in (('aowf', ''), ('aows', ' sc1')):
        def pld(PFR, f, s0, s1): return f"buffer_load_dwordx4 v[{PFR+4*f}:{PFR+4*f+3}], v15, {WS}, {s0 if (f&3) < 2 else s1} offen offset:{2048*(f&1) + 256*(f>>2)} sc1"
        def pchk(PFR):
            return [f"v_xor_b32 v14, s48, v{PFR}"] + [f"v_bitop3_b32 v14, v14, s48, v{PFR+4*z} bitop3:0xf6" for z in range(1, 8)] + \
                   ["v_and_b32 v14, 1, v14", "v_cmp_ne_u32 vcc, 0, v14"]
        RD = 1
        NM = 0 if RD else 1
        mark = (lambda h_: f"ds_write_b32 v7, v9 offset:{12 + 8*h_}") if RD else \
            (lambda h_: f"s_mov_b64 exec, 1\nbuffer_store_dword v9, off, {WS}, s41 offset:{256*h_}{SC1}\ns_mov_b64 exec, -1")
        for par in range(2):
            PFR, PFN, B = PFS[par], PFS[1-par], f"{P}{par}"
            a(f"{P}_top{par}:\ns_add_u32 s21, s20, 1")
            lds_spin(a, 'v2', 10, 1, 0, 's21', 21)
            tr_stamp(a, opt, 0)
            for f in range(8): a(f"ds_read_b128 v[{OFR+4*f}:{OFR+4*f+3}], v8 offset:{8192*par + 2048*(f&3) + 256*(f>>2)}")
            a(f"""s_lshr_b32 s48, s20, 1
s_and_b32 s48, s48, 1
s_xor_b32 s48, s48, 1
s_add_u32 s49, s47, {par*MB//4}
s_add_u32 s50, s49, 4096
s_add_u32 s52, s47, {(1-par)*MB//4}
s_add_u32 s53, s52, 4096
v_mov_b32 v9, s21""")
            ring_next(a, 's44', 's22', 's23', 's38', 19, AOR)
            side = [f"s_waitcnt vmcnt({8 + 2*NM})"] + pchk(PFR)
            n_ = 0
            PL = opt.get('APL', 12)
            for own, half in ((1, 0), (1, 1), (0, 0), (0, 1)):
                for T in range(4):
                    f = 4*half + T
                    if own: a(f"s_waitcnt lgkmcnt({7-f})")
                    fr = (OFR if own else PFR) + 4*f
                    z = T if own else 4 + T
                    for tau in range(8):
                        b = (tau*8 + z) * 4
                        A = GS[half] + 4*tau
                        a(f"v_mfma_f32_16x16x32_bf16 v[{A}:{A+3}], v[{fr}:{fr+3}], a[{b}:{b+3}], {'0' if z==0 else f'v[{A}:{A+3}]'}")
                        if n_ == PL: a(f"s_cbranch_vccnz {B}_ld\n{B}_lk:")
                        if n_ == 43: a(f"s_sub_u32 s40, s20, {AOR-1}")
                        if n_ == 56: a("ds_write_b32 v7, v9 offset:4")
                        DL = opt.get('ADL', 44)
                        if n_ == DL: a(f"buffer_load_dword v13, v12, {WS}, s39 offen sc1")
                        if n_ == 57: tr_stamp(a, opt, 3); side = ["s_waitcnt vmcnt(1)"] + pchk(PFR)
                        if n_ == 63: a(f"s_cbranch_vccnz {B}_pr\n{B}_pok:"); tr_stamp(a, opt, 4)
                        if n_ == 64: a(f"s_mov_b64 exec, 1\nbuffer_store_dword v9, off, {WS}, s42{SC1}\ns_mov_b64 exec, -1")
                        if n_ == 72: a(f"buffer_load_dword v11, v12, {WS}, s39 offen sc1")
                        if 76 <= n_ < 92 and n_ % 2 == 0: a(pld(PFN, (n_ - 76)//2, 's52', 's53'))
                        if n_ == 92: side = ["s_waitcnt vmcnt(10)", "v_cmp_gt_i32 vcc, s40, v13"]
                        if n_ == 94: a(f"s_and_b32 s33, vcc_lo, 0xffff")
                        if n_ == 95: a(f"s_cbranch_scc1 {B}_rw0\n{B}_rok0:")
                        if n_ == 97: side = half_epilogue(GS[0], PK, 'v6', 's23', 's22', 16384, 0, SC1) + [mark(0)]
                        if n_ == 123: side += [f"s_waitcnt vmcnt({12 + NM})", "v_cmp_gt_i32 vcc, s40, v11"]
                        if n_ == 126: a(f"s_cbranch_vccnz {B}_rw1\n{B}_rok1:")
                        shadow16(a, side)
                        n_ += 1
            assert not side
            tr_stamp(a, opt, 1)
            for x in half_epilogue(GS[1], PK + 16, 'v6', 's23', 's22', 16384, 1, SC1): a(x)
            a(mark(1))
            tr_stamp(a, opt, 2)
            tr_flush(a, opt, 's20', range(5), 240, wait=True)
            a("s_mov_b32 s20, s21")
        a(f"s_cmp_lt_u32 s20, 64\ns_cbranch_scc1 {P}_top0")
        tr_dump(a, opt, 5, 240, 10)
        a("s_branch the_end")
        for par in range(2):
            PFR, B = PFS[par], f"{P}{par}"
            for h_ in range(2):
                a(f"{B}_rw{h_}:")
                spin_dec(a, 29)
                a(f"""buffer_load_dword v13, v12, {WS}, s39 offen sc1
s_waitcnt vmcnt(0)
v_cmp_gt_i32 vcc, s40, v13
s_and_b32 s33, vcc_lo, {'0xffff' if h_ == 0 else '-1'}
s_cbranch_scc1 {B}_rw{h_}
s_branch {B}_rok{h_}""")
            a(f"{B}_ld:")
            for z in range(8): a(pld(PFR, z, 's49', 's50'))
            a(f"s_branch {B}_lk\n{B}_pr:")
            spin_dec(a, 19)
            for z in range(8): a(pld(PFR, z, 's49', 's50'))
            a("s_waitcnt vmcnt(0)")
            for x in pchk(PFR): a(x)
            a(f"s_cbranch_vccnz {B}_pr\ns_branch {B}_pok")
    S1, S2, R, X, O, D = 16, 20, 24, 32, 36, 64
    a("ao_R:")
    a(f"""s_cmp_eq_u32 {S_L}, 0
s_cselect_b32 s12, s{P_X}, s{P_WS}
s_cselect_b32 s13, s{P_X+1}, s{P_WS+1}
s_mov_b32 s14, {hex(WS_SIZE)}
s_cselect_b32 s14, {hex(2*MB)}, s14
s_mov_b32 s15, 0x20000
s_cselect_b32 s36, 0, {XF}
s_lshl_b32 s33, {S_I}, 10
s_add_u32 s36, s36, s33
s_lshl_b32 s34, {S_L}, 21
s_add_u32 s37, s34, s33
s_add_u32 s37, s37, {XA}
s_lshl_b32 s33, {S_I}, 14
s_lshl_b32 s34, {S_L}, 22
s_add_u32 s38, s34, s33
s_add_u32 s38, s38, {AORING}
s_lshl_b32 s33, {S_L}, 7
s_lshl_b32 s34, {S_I}, 2
s_add_u32 s33, s33, s34
s_add_u32 s40, s33, {F_AOD}
s_lshl_b32 s33, s33, 5
s_add_u32 s39, s33, {F_AOR}
s_lshl_b32 s33, {S_L}, 9
s_add_u32 s42, s33, {F_AOM}
s_lshr_b32 s33, {S_I}, 4
s_lshl_b32 s33, s33, 8
s_add_u32 s42, s42, s33
v_lshrrev_b32 v6, 4, v1
v_lshlrev_b32 v6, 10, v6
v_and_b32 v7, 15, v1
v_lshl_add_u32 v6, v7, 4, v6
v_lshlrev_b32 v7, 3, v1
v_mov_b32 v8, 0""")
    selectors(a, S1, S2, 10)
    wait_init(22)
    a("s_mov_b32 s41, 1")
    decide_mode(a, 'aor_top')
    a("s_mov_b32 s41, 0\nv_lshlrev_b32 v5, 9, v1") if False else a("s_mov_b32 s41, 0")
    U = 48
    resid = lambda: a(f"buffer_load_dwordx4 v[{X}:{X+3}], v3, s[12:15], s36 offen sc1")
    a(f"""aor_top:
s_lshr_b32 s33, {S_I}, 4
s_lshl_b32 s33, s33, 3
s_add_u32 s33, s33, {SYNC + 12}
v_mov_b32 v4, s33
s_cmp_eq_u32 {S_L}, 0
s_cselect_b64 s[46:47], 0, -1
s_mov_b32 s21, 1
v_lshlrev_b32 v5, 7, v1
s_lshl_b32 s33, {S_I}, 13
s_sub_u32 s34, s38, s33
s_add_u32 s34, s34, {AOR*MB//2}""")
    for sl in range(AOR):
        for q in range(2): a(f"s_add_u32 s33, s38, {sl*MB//2 + q*8192}\nbuffer_load_dword v10, v5, {WS}, s33 offen sc1")
    for sl in range(2): a(f"s_add_u32 s33, s34, {sl*MB//4}\nbuffer_load_dword v10, v5, {WS}, s33 offen sc1")
    a("s_waitcnt vmcnt(0)")
    lds_spin(a, 'v2', 10, 1, 0, 's21', 23, sleep=4)
    a("aor_rx:")
    spin_dec(a, 26)
    resid()
    a(f"""s_waitcnt vmcnt(0)
aor_loop:
v_cmp_eq_u32 vcc, -1, v{X}
s_add_u32 s21, s20, 1
s_and_b64 vcc, vcc, s[46:47]
s_cbranch_scc1 aor_rx""")
    swap4(a, X)
    unpack8(a, U, X)
    ring_next(a, 's44', 's22', 's23', 's38', 19, AOR)
    a(f"""s_cmp_lt_u32 s20, 63
s_cselect_b32 s33, 32768, 0
s_add_u32 s36, s36, s33""")
    lds_spin(a, 'v4', 12, 2, 0, 's21', 24)
    a("aor_p:")
    spin_dec(a, 25)
    tr_stamp(a, opt, 0)
    reduce_loads(a, 4, ['v6']*4, 's23', D)
    reduce_sum(a, 4, D, S1, S2, R, 10, 's22', 0, cin=U)
    a("s_cbranch_vccnz aor_p")
    tr_stamp(a, opt, 1)
    done_store(a, 's21', 9, 'v8', 's40', 's41', 1)
    resid()
    a(f"s_sub_u32 s33, s37, {XA - XNF}")
    layernorm8f(a, R, O+4, 12, keep=O)
    a(f"""buffer_store_dwordx4 v[{O+4}:{O+7}], v3, {WS}, s33 offen sc1
buffer_store_dwordx4 v[{O}:{O+3}], v3, {WS}, s37 offen sc1""")
    tr_stamp(a, opt, 2)
    a("s_add_u32 s37, s37, 32768")
    tr_flush(a, opt, 's20', range(3), 240, wait=True)
    a(f"""s_mov_b32 s20, s21
s_waitcnt vmcnt(2)
s_cmp_lt_u32 s20, 64
s_cbranch_scc1 aor_loop""")
    tr_dump(a, opt, 3, 240, 10)
    a("s_branch the_end")
    FA, FT, FD, KMA, VMA, OW = 4, 5, 6, 7, 8, 9
    BI, S, SM, PF, PM, KMF, VMF, OA, OP = 16, 32, 48, 52, 60, 64, 96, 112, 176
    a("ao_A:")
    wait_init(18)
    a("s_mov_b32 s46, 1")
    decide_mode(a, 'aoa_m')
    a(f"""s_mov_b32 s46, 0
aoa_m:
s_lshl_b32 s47, {S_L}, 22
s_lshl_b32 s33, {S_I}, 13
s_add_u32 s47, s47, s33
s_add_u32 s47, s47, {AORING + OHO}
s_lshl_b32 s33, {S_L}, 5
s_add_u32 s33, s33, {S_I}
s_lshl_b32 s33, s33, 9
s_add_u32 s40, s33, {F_KM}
s_add_u32 s41, s33, {F_KV}
s_lshl_b32 s33, {S_L}, 4
s_lshr_b32 s34, {S_I}, 1
s_add_u32 s33, s33, s34
s_lshl_b32 s33, s33, 9
s_add_u32 s42, s33, {F_Q}
s_lshl_b32 s33, {S_L}, 7
s_add_u32 s43, s33, {F_AOD - 128}
v_mov_b32 v{FA}, s42
v_mov_b32 v{FD}, -100
v_mov_b32 v10, s42
v_mov_b32 v11, -100
v_cmp_gt_u32 vcc, 32, v1
v_cndmask_b32 v{FA}, v{FA}, v10, vcc
v_cndmask_b32 v{FD}, v{FD}, v11, vcc
v_cmp_gt_u32 vcc, 12, v1
v_cndmask_b32_e64 v{FD}, v{FD}, 2, vcc
v_mov_b32 v10, s41
v_cmp_gt_u32 vcc, 8, v1
v_cndmask_b32 v{FA}, v{FA}, v10, vcc
v_mov_b32 v10, s40
v_cmp_gt_u32 vcc, 4, v1
v_cndmask_b32 v{FA}, v{FA}, v10, vcc
v_cndmask_b32_e64 v{FD}, v{FD}, 1, vcc
v_and_b32 v10, 3, v1
v_lshlrev_b32 v10, 7, v10
v_add_u32 v{FA}, v10, v{FA}
s_lshl_b32 s33, {S_L}, 8
s_xor_b32 s34, {S_I}, 1
s_lshl_b32 s34, s34, 3
s_add_u32 s33, s33, s34
s_add_u32 s33, s33, {F_AOP - 48}
v_lshl_add_u32 v10, v1, 2, s33
v_cmp_lt_u32 vcc, 11, v1
v_cndmask_b32 v{FA}, v{FA}, v10, vcc
v_bfe_u32 v10, v1, 3, 1
v_lshlrev_b32 v10, 2, v10
v_and_b32 v11, 3, v1
v_add_u32 v10, v10, v11
v_lshlrev_b32 v10, 5, v10
v_lshrrev_b32 v11, 5, v1
v_lshl_add_u32 v{KMA}, v11, 4, v10
v_bfe_u32 v10, v1, 2, 1
v_bfe_u32 v11, v1, 4, 1
v_xor_b32 v10, v10, v11
v_lshl_add_u32 v{KMA}, v10, 30, v{KMA}
v_lshrrev_b32 v11, 5, v1
v_lshlrev_b32 v{VMA}, 3, v1
v_mov_b32 v{OW}, v3
v_lshlrev_b32 v11, 2, v11
v_and_b32 v10, 31, v1
v_sub_u32 v10, v10, v11
v_mov_b32 v11, 0xf149f2ca""")
    for r in range(16):
        a(f"v_cmp_gt_i32 vcc, {8*(r>>2) + (r&3)}, v10\nv_cndmask_b32 v{BI+r}, 0, v11, vcc")
    a(f"""s_mul_i32 s33, {S_L}, {48*MB}
s_mul_i32 s34, {S_I}, 24576
s_add_u32 s33, s33, s34
s_add_u32 s36, s33, {QKV}
s_lshl_b32 s33, {S_L}, 23
s_lshl_b32 s34, {S_I}, 12
s_add_u32 s33, s33, s34
s_add_u32 s37, s33, {KM}
s_mov_b32 s38, {SCL}
s_mov_b32 s39, {SCL}""")
    def poll(seg, code):
        L = a.newlabel('ap'); Dn = a.newlabel('apd')
        if seg is not None: a(f"v_add_u32 v{FT}, {seg}, v{FD}\nv_min_i32 v{FT}, 64, v{FT}")
        a(f"""s_mov_b64 exec, 0xfff
{L}:
buffer_load_dword v10, v{FA}, {WS}, 0 offen sc1
s_waitcnt vmcnt(0)
v_cmp_gt_i32 vcc, v{FT}, v10
s_cbranch_vccz {Dn}
s_mov_b64 exec, vcc""")
        spin_dec(a, code)
        a(f"s_sleep 1\ns_branch {L}\n{Dn}:\ns_mov_b64 exec, -1")
    def qkv_list(base):
        L = []
        for f in range(24):
            L.append((f"s_add_u32 s34, s36, {1024*f}\n" if f % 4 == 0 else "") + f"buffer_load_dwordx4 a[{base+4*f}:{base+4*f+3}], v3, {WS}, s34 offen offset:{1024*(f%4)} {opt.get('AFL', 'sc1')}")
        if not opt.get('ABL_HIT'): L[-1] += f"\ns_add_u32 s36, s36, {32*24576}"
        return L
    def qkv_loads(base):
        for x in qkv_list(base): a(x)
    poll(-1, 26)
    qkv_loads(0)
    NAFT = 8
    a(f"v_mov_b32 v15, 0\nv_mov_b32 v{OW}, 0\ns_mov_b32 s52, 0\ns_waitcnt vmcnt(0)\naoa_top:")
    for half in range(2):
        Xb, Yb = 96*half, 96*(1-half)
        q = lambda z: f"a[{Xb+4*z}:{Xb+4*z+3}]"
        k = lambda z: f"a[{Xb+32+4*z}:{Xb+32+4*z+3}]"
        v = lambda z: f"a[{Xb+64+4*z}:{Xb+64+4*z+3}]"
        m, t = 12, 13
        sx = lambda z: a(f"v_mfma_f32_32x32x16_bf16 v[{S}:{S+15}], {k(z)}, {q(z)}, v[{BI if z==0 else S}:{(BI if z==0 else S)+15}]")
        KMF, VMF = (64, 96) if half == 0 else (208, 104)
        KMN, VMN = (64, 96) if half == 1 else (208, 104)
        def kmlist(K_, V_, sb):
            return [f"buffer_load_dwordx4 v[{K_+4*z}:{K_+4*z+3}], v{KMA}, {WS}, {sb} offen offset:{256*z} sc1" for z in range(8)] + \
                   [f"buffer_load_dwordx2 v[{V_+2*T}:{V_+2*T+1}], v{VMA}, {WS}, {sb} offen offset:{2048+512*T} sc1" for T in range(4)]
        def kml():
            for x in kmlist(KMF, VMF, 's37'): a(x)
        FLD = lambda r: f"s_mov_b64 exec, 0x3fff\nbuffer_load_dword v{r}, v{FA}, {WS}, 0 offen sc1\ns_mov_b64 exec, -1"
        NE = 9
        pf = [FLD(OW)] + qkv_list(Yb)
        a(f"""s_cmp_eq_u32 s20, 63
s_cselect_b32 s33, {32*24576}, 0
s_sub_u32 s36, s36, s33
v_add_u32 v{FT}, s20, v{FD}
v_min_i32 v{FT}, 64, v{FT}
s_waitcnt vmcnt({NAFT + 8})
v_cmp_gt_i32 vcc, v{FT}, v15
s_cmp_eq_u32 s52, 1
s_cbranch_scc1 aoa_p{half}
s_cbranch_vccz aoa_k{half}""")
        for z in range(8): sx(z)
        poll(None, 27)
        tr_stamp(a, opt, 0)
        kml()
        for x in pf[:NE]: a(x); a("s_nop 11")
        a(f"s_branch aoa_j{half}\naoa_k{half}:")
        kml()
        a(f"aoa_p{half}:")
        tr_stamp(a, opt, 0)
        a(pf[0])
        for z in range(8): sx(z); a(pf[z+1])
        a(f"""aoa_j{half}:
s_add_u32 s37, s37, {32*4096}
s_add_u32 s33, s20, 1
v_add_u32 v{FT}, s33, v{FD}
v_min_i32 v{FT}, 64, v{FT}""")
        pf = pf[NE:]
        kn = kmlist(KMN, VMN, 's53')
        a(f"v_max3_f32 v{m}, v{S}, v{S+1}, v{S+2}\nv_max3_f32 v{t}, v{S+3}, v{S+4}, v{S+5}")
        for i in range(6, 16, 4):
            a(f"v_max3_f32 v{m}, v{m}, v{S+i}, v{S+i+1}")
            if i + 2 < 16: a(f"v_max3_f32 v{t}, v{t}, v{S+i+2}, v{S+i+3}")
        for z in range(8):
            a(f"s_waitcnt vmcnt({7 - z + 4 + NE})")
            a(f"v_mfma_f32_16x16x32_bf16 v[{SM}:{SM+3}], v[{KMF+4*z}:{KMF+4*z+3}], {q(z)}, {'0' if z==0 else f'v[{SM}:{SM+3}]'}")
        a(f"s_waitcnt vmcnt({NE})")
        tr_stamp(a, opt, 1)
        a(pf.pop(0)); a(pf.pop(0))
        for T in range(4): a(f"v_permlane16_swap_b32 v{VMF+2*T}, v{VMF+2*T+1}")
        a(f"""v_max3_f32 v{m}, v{m}, v{SM}, v{SM+1}
v_max3_f32 v{t}, v{t}, v{SM+2}, v{SM+3}
v_max_f32 v{m+2}, v{m}, v{t}
v_max_f32 v{m}, v{m}, v{t}""")
        a(pf.pop(0))
        a(f"""v_permlane32_swap_b32 v{m+2}, v{m}
v_max_f32 v{m}, v{m}, v{m+2}
v_mul_f32 v{m}, s38, v{m}""")
        for i in range(0, 20, 2): a(f"v_pk_fma_f32 v[{S+i}:{S+i+1}], v[{S+i}:{S+i+1}], s[38:39], v[{m}:{m+1}] op_sel_hi:[1,0,0] neg_lo:[0,0,1] neg_hi:[0,0,1]")
        for i in range(20):
            a(f"v_exp_f32 v{S+i}, v{S+i}")
            if i % 4 == 0: a(pf.pop(0))
        a(f"s_waitcnt vmcnt({NE - 1 + 8})\nv_cmp_gt_i32 vcc, v{FT}, v{OW}")
        for i in range(10): a(f"v_cvt_pk_bf16_f32 v{PF+i}, v{S+2*i}, v{S+2*i+1}")
        a(f"s_cmp_eq_u64 vcc, 0\ns_cselect_b32 s52, 1, 0\ns_cselect_b32 s53, s37, 0x40000000")
        a(FLD(15))
        pf = kn + pf
        tr_stamp(a, opt, 3)
        fill = []
        for i in range(2, 20): fill.append(f"v_add_f32 v{S+(i&1)}, v{S+(i&1)}, v{S+i}")
        fill += [f"v_add_f32 v{S+2}, v{S}, v{S+1}", f"v_add_f32 v{S}, v{S}, v{S+1}", None, f"v_permlane32_swap_b32 v{S+2}, v{S}",
                 f"v_add_f32 v{S}, v{S}, v{S+2}", f"v_rcp_f32 v{S}, v{S}"]
        def fin(T, pk):
            L = []
            for i in range(8):
                r = OA + 16*T + 2*i
                if pk: L += [f"v_pk_mul_f32 v[{r}:{r+1}], v[{r}:{r+1}], v[{S}:{S+1}] op_sel_hi:[1,0]"]
                else: L += [f"v_mul_f32 v{r}, v{r}, v{S}", f"v_mul_f32 v{r+1}, v{r+1}, v{S}"]
                L += [f"v_cvt_pk_bf16_f32 v{OP+8*T+i}, v{r}, v{r+1}"]
            return L
        fill += fin(0, 0) + fin(1, 0)
        for T in range(4):
            A = OA + 16*T
            ms = [f"v_mfma_f32_32x32x16_bf16 v[{A}:{A+15}], {v(2*T)}, v[{PF}:{PF+3}], 0",
                  f"v_mfma_f32_32x32x16_bf16 v[{A}:{A+15}], {v(2*T+1)}, v[{PF+4}:{PF+7}], v[{A}:{A+15}]",
                  f"v_mfma_f32_32x32x8_bf16 v[{A}:{A+15}], v[{VMF+2*T}:{VMF+2*T+1}], v[{PM}:{PM+1}], v[{A}:{A+15}]"]
            for j, x in enumerate(ms):
                a(x)
                a(pf.pop(0))
                for _ in range(6):
                    if fill:
                        y = fill.pop(0)
                        if y is None: break
                        a(y)
        fill += fin(2, 1) + fin(3, 1)
        for n_, x in enumerate(fill):
            a(x)
            if n_ % 4 == 3 and pf: a(pf.pop(0))
        for x in pf: a(x)
        tr_stamp(a, opt, 4)
        a("s_sub_u32 s21, s20, 1")
        lds_spin(a, 'v2', 10, 2, 4, 's21', 28)
        a("s_mov_b32 s51, s21")
        for z in range(8): a(f"ds_write_b128 v3, v[{OP+4*z}:{OP+4*z+3}] offset:{8192*half + 1024*z}")
        a(f"""s_add_u32 s21, s20, 1
v_mov_b32 v10, s21
s_lshr_b32 s48, s20, 1
s_and_b32 s48, s48, 1
s_xor_b32 s48, s48, 1
s_add_u32 s49, s47, {half*MB//4}
s_add_u32 s50, s49, 4096
s_waitcnt lgkmcnt(0)
ds_write_b32 v2, v10""")
        tr_stamp(a, opt, 2)
        a(f"s_waitcnt vmcnt(20)\ns_mov_b64 exec, 0x3000\nv_cmp_gt_i32 vcc, s51, v15\ns_mov_b64 exec, -1")
        for z in range(8): a(f"v_and_or_b32 v{OP+4*z}, v{OP+4*z}, -2, s48")
        a(f"s_cbranch_vccnz aoa_w{half}\naoa_o{half}:\ns_cmp_eq_u32 s46, 0\ns_cbranch_scc0 aoa_s{half}")
        for md in ('', ' sc1'):
            if md: a(f"s_branch aoa_e{half}\naoa_s{half}:")
            for z in range(8): a(f"buffer_store_dwordx4 v[{OP+4*z}:{OP+4*z+3}], v3, {WS}, {'s49' if z < 4 else 's50'} offen offset:{1024*(z&3)}{md}")
        a(f"aoa_e{half}:")
        tr_flush(a, opt, 's20', range(5), 240, wait=True)
        a("s_mov_b32 s20, s21")
    a("s_cmp_lt_u32 s20, 64\ns_cbranch_scc1 aoa_top")
    tr_dump(a, opt, 5, 240, 10)
    a("s_waitcnt lgkmcnt(0)\ns_branch the_end")
    for half in range(2):
        a(f"aoa_w{half}:")
        spin_dec(a, 17)
        a(f"""s_mov_b64 exec, 0x3000
buffer_load_dword v10, v{FA}, {WS}, 0 offen sc1
s_waitcnt vmcnt(0)
v_cmp_gt_i32 vcc, s51, v10
s_mov_b64 exec, -1
s_cbranch_vccnz aoa_w{half}
s_branch aoa_o{half}""")
```

```python
from common import *

MEMB, KB, VB, QX, KX, OX = 0x20000, 0x22000, 0x24000, 0x26000, 0x26A00, 0x20000
QROW = 288
JUNK = 0x27800
ORD, TAGM, IDX, L16, SEL, WK, HI, M0A, ST, PUB, QW, QR, QRM, OW, KG, VG, KMS, VMS, PD, FV = \
    0, 1, 2, 3, 4, 8, 9, 10, 14, 15, 16, 17, 18, 19, 20, 21, 22, 23, 24, 25
T0 = 26
MEMF = 28
RING = 60
NRING = 5
ACC = 100
VAC = 116
XT = 124
SC = 0x3e0293ee
K_LDS = [0, 1, 3, 4, 5]
K_REG = [2, 6, 7]
O_LDS = [(1, 1), (2, 1), (3, 1)]
O_REG = [(0, 0), (1, 0), (2, 0), (3, 0), (0, 1)]
def areg_k(s, t): return 128 + (K_REG.index(s)*2 + t)*8
def areg_o(phi, kp, y): return 128 + 48 + (O_REG.index((phi, kp))*2 + y)*8

def cst(a, opt, k):
    pos = opt.get('cpos', [0, 1, 2, 3, 4, 5, 6])
    if opt.get('trace') and k in pos:
        i = pos.index(k); a(f"{'s_memrealtime' if opt.get('rt') else 's_memtime'} s[{64+2*i}:{65+2*i}]")
def cflush(a, opt):
    if opt.get('trace'):
        a("s_waitcnt lgkmcnt(0)")
        for k in range(7): a(f"v_writelane_b32 v{MEMF+30}, s{64+2*k}, {k}")
        a(f"""v_lshlrev_b32 v{MEMF+31}, 4, v{L16}
s_lshl_b32 s33, s20, 2
s_max_u32 s33, s33, 4
s_add_u32 s33, s33, s101
s_sub_u32 s33, s33, 4
s_mov_b64 exec, 0x7f
buffer_store_dword v{MEMF+30}, v{MEMF+31}, {WS}, s33 offen
s_mov_b64 exec, -1""")

def role_chain(a, opt):
    D1 = None; D2 = opt.get('D2', 260)
    a("role_chain:")
    if 'chain_layers' in opt:
        for l in (0, 1):
            if l not in opt['chain_layers']: a(f"s_cmp_eq_u32 {S_L}, {l}\ns_cbranch_scc1 the_end")
    srd(a, 12, P_WQ, 0x400000); srd(a, 16, P_WV, 0x400000); srd(a, 20, P_WO, 0x400000); srd(a, 28, P_WK, 0x400000)
    a(f"""s_lshl_b32 s36, {S_W}, 15
s_lshl_b32 s37, {S_I}, 8
s_lshl_b32 s33, {S_W}, 20
s_add_u32 s37, s37, s33
s_lshl_b32 s39, {S_I}, 17
s_add_u32 s39, s39, s36
s_lshl_b32 s38, {S_W}, 13
v_lshrrev_b32 v2, 4, v1
v_and_b32 v3, 15, v1
v_lshlrev_b32 v6, 2, v2
v_xor_b32 v6, v6, v3
v_lshlrev_b32 v6, 4, v6
v_lshl_add_u32 v4, v2, 13, v6
v_and_b32 v6, 1, v2
v_lshlrev_b32 v6, 2, v6
v_xor_b32 v6, v6, v3
v_lshlrev_b32 v6, 4, v6
v_lshl_add_u32 v5, v2, 10, v6
v_xor_b32 v6, 0x80, v5
v_lshlrev_b32 v13, 4, v1
v_add_u32 v13, s36, v13""")
    def tr_addr(m, hi):
        if m == 'o':
            a(f"""v_bfe_u32 v7, v1, 4, 1
v_lshlrev_b32 v12, 4, v7
v_bfe_u32 v14, v1, 5, 1
v_lshl_add_u32 v12, v14, 2, v12
v_bfe_u32 v14, v1, 2, 1
v_add_u32 v12, v14, v12
v_lshl_add_u32 v7, v7, 1, v14
v_xor_b32 v7, {S_W}, v7
v_lshlrev_b32 v7, 6, v7
v_lshl_add_u32 v7, v12, 8, v7
v_and_b32 v12, 3, v1
v_lshl_add_u32 v7, v12, 4, v7
v_bfe_u32 v12, v1, 3, 1
v_lshl_add_u32 v7, v12, 3, v7""")
        else:
            a(f"""v_bfe_u32 v12, v1, 2, 2
v_xor_b32 v7, {S_W}, v12
v_lshlrev_b32 v7, 6, v7
v_lshl_add_u32 v7, v12, 8, v7
v_lshl_add_u32 v7, v2, 11, v7""")
            if m == 'v': a("v_and_b32 v12, 3, v1\nv_lshl_add_u32 v7, v12, 3, v7")
            else: a("v_bfe_u32 v12, v1, 1, 1\nv_lshl_add_u32 v7, v12, 5, v7\nv_and_b32 v12, 1, v1\nv_lshl_add_u32 v7, v12, 3, v7")
        for sg in range(4):
            a(f"s_xor_b32 s33, {S_W}, {sg}" if m == 'o' else f"s_add_u32 s33, {S_W}, {sg}\ns_and_b32 s33, s33, 3")
            a(f"s_lshl_b32 s33, s33, 13\nv_add_u32 v{8+sg}, s33, v7")
    pieces = [(m, x) for m in 'qvko' for x in range(4)]
    KLs = [(s_, t) for s_ in K_LDS for t in range(2)]
    def tmp(n): return 16 + 8 * (n if n < 14 else n - 6)
    def dmas(p):
        m, x = pieces[p]
        L = []
        for i in range(8):
            if m == 'o': src, ad, sr = f"s_add_u32 s33, s39, {x*256 + 4*i*1024}", 'v5' if i < 4 else 'v6', 's[20:23]'
            else: src, ad, sr = f"s_add_u32 s33, s37, {(64*(x>>1) + 32*(x&1) + 4*i)*8192}", 'v4', dict(q='s[12:15]', v='s[16:19]', k='s[28:31]')[m]
            L.append(f"s_add_u32 m0, s38, {(p & 3)*32768 + i*1024}\n{src}\nbuffer_load_dwordx4 {ad}, {sr}, s33 offen lds")
        return L
    def reads(p):
        m, x = pieces[p]
        L = []
        for sg in range(4):
            if m == 'o':
                kp, t = sg >> 1, sg & 1
                f, r = ('a', areg_o(x, kp, t)) if (x, kp) in O_REG else ('v', tmp(10 + O_LDS.index((x, kp))*2 + t))
                for u in range(4): L.append((f, r + 2*u, sg, (8*(u>>1) + 2*(u&1))*256))
            else:
                s_ = 2*sg + (x >> 1)
                for t in range(2):
                    if m == 'q': f, r = 'a', (2*s_ + t)*8
                    elif m == 'v': f, r = 'v', 128 + (2*s_ + t)*8
                    elif s_ in K_REG: f, r = 'a', areg_k(s_, t)
                    else: f, r = 'v', tmp(KLs.index((s_, t)))
                    for ul in range(2): L.append((f, r + 4*(x&1) + 2*ul, sg, 1024*ul + (32 if m == 'v' else 16)*t))
        return [f"ds_read_b64_tr_b16 {f}[{r}:{r+1}], v{8+sg} offset:{(p & 1)*32768 + o}" for f, r, sg, o in L]
    def load_all(side):
        for p in range(3):
            for x in dmas(p): a(x)
        for p in range(16):
            if p % 4 == 0: tr_addr(pieces[p][0], 0)
            if p % 4 == 2:
                for sg in range(4): a(f"v_xor_b32 v{8+sg}, 0x10000, v{8+sg}")
            a(f"s_waitcnt vmcnt({side.get(p, 0) + 8*min(2, 15 - p)}) lgkmcnt(0)\ns_barrier")
            if p == 12:
                a(f"v_lshlrev_b32 v15, 4, v1\ns_lshl_b32 s33, {S_W}, 12\ns_add_u32 s33, s33, {MEMB}\nv_add_u32 v15, s33, v15")
                for x in range(4): a(f"ds_write_b128 v15, v[{tmp(8)+4*x}:{tmp(8)+4*x+3}] offset:{1024*x}")
            d = dmas(p + 3) if p + 3 < 16 else []
            for n_, x in enumerate(reads(p)):
                a(x)
                if n_ % 2 and d: a(d.pop(0))
            if f'e{p}' in side: side[f'e{p}']()
        a("s_waitcnt lgkmcnt(0)\ns_barrier")
        for n in list(range(8)) + list(range(10, 16)):
            for h_ in range(2): a(f"ds_write_b128 v13, v[{tmp(n)+4*h_}:{tmp(n)+4*h_+3}] offset:{2048*n + 1024*h_}")
            if n == 1:
                a("s_waitcnt lgkmcnt(0)")
                for x in range(4): a(f"ds_read_b128 v[{16+4*x}:{19+4*x}], v15 offset:{1024*x}")
        a("s_waitcnt lgkmcnt(0)")
        for x in range(4): a(f"ds_write_b128 v13, v[{16+4*x}:{19+4*x}] offset:{2048*8 + 1024*x}")
        a("s_waitcnt lgkmcnt(0)")
    def calib():
        NB = 16
        a(f"""s_cmp_eq_u32 {S_W}, 3
s_cbranch_scc0 ch_nocal
s_sub_u32 s34, s99, 8
ch_cal:
s_memrealtime s[64:65]
s_waitcnt lgkmcnt(0)
s_sub_u32 s33, s34, s64
s_cmp_lt_u32 s33, 1000
s_cbranch_scc1 ch_cal
s_memtime s[96:97]""")
        for k in range(NB): a(f"s_memrealtime s[{64+2*k}:{65+2*k}]\ns_nop 1")
        a("s_waitcnt lgkmcnt(0)")
        for k in range(NB): a(f"s_sub_u32 s33, s99, s{64+2*k}\ns_cmp_lt_u32 s33, 1000\ns_cselect_b32 s33, 12, 0\ns_add_u32 s96, s96, s33")
        a(f"v_mov_b32 v20, s96\nv_mov_b32 v21, {JUNK}\nds_write_b32 v21, v20\ns_waitcnt lgkmcnt(0)")
        if opt.get('trace'):
            a(f"s_sub_u32 s33, s99, s64\nv_mov_b32 v20, s33\ns_mov_b64 exec, 1\nbuffer_store_dword v20, off, {WS}, s101 offset:2024\ns_mov_b64 exec, -1\ns_waitcnt vmcnt(0)")
        if opt.get('diag'):
            a(f"s_sub_u32 s33, s99, s64\nv_mov_b32 v20, s33\nv_mov_b32 v21, s99\ns_mov_b64 exec, 1\nbuffer_atomic_umax v20, off, {DBG}, 0 offset:4 sc1\nbuffer_atomic_umax v21, off, {DBG}, 0 offset:8 sc1\ns_mov_b64 exec, -1\ns_waitcnt vmcnt(0)")
        a("ch_nocal:")
    if opt.get('SYNC', 1): calib()
    a(f"""s_lshl_b32 s33, {S_L}, 20
s_add_u32 s54, s33, {CRING}
s_mul_i32 s53, {S_I}, {CSTR}
s_lshl_b32 s52, {S_W}, 11
s_add_u32 s53, s53, s52
s_mul_i32 s33, {S_L}, {48*MB}
s_mul_i32 s34, {S_I}, 24576
s_add_u32 s33, s33, s34
s_add_u32 s40, s33, {QKV + 8192}
s_lshl_b32 s33, {S_L}, 5
s_add_u32 s33, s33, {S_I}
s_lshl_b32 s33, s33, 9
s_lshl_b32 s34, {S_W}, 7
s_add_u32 s33, s33, s34
s_add_u32 s41, s33, {F_KV}
s_add_u32 s42, s33, {F_KM}
s_add_u32 s44, {S_G}, {D_TICK}
s_cmp_eq_u32 {S_G}, 0
s_cselect_b32 s44, {D_TICK0}, s44
s_add_u32 s45, {S_L}, {D_CINIT}
s_mov_b32 s57, 0
v_mov_b32 v0, 0""")
    def e10(): a(f"v_lshlrev_b32 v3, 2, v1\nbuffer_load_dword v3, v3, {DBG}, 0 offen sc1")
    def e13():
        a(f"""v_readlane_b32 s33, v3, s44
v_readlane_b32 s34, v3, s45
v_readlane_b32 s35, v3, {D_INIT}
v_lshlrev_b32 v3, 5, v1
s_min_u32 s33, s33, s34
s_add_u32 s35, s35, {32 - NZERO}
s_min_u32 s33, s33, s35
s_cmp_ge_u32 s33, 32
s_cbranch_scc0 ch_e13
s_mov_b32 s57, 1
s_mov_b64 exec, 1
buffer_load_dword v0, off, {WS}, s41 sc1
s_mov_b64 exec, -1""")
        for x in ("s_add_u32 s33, s40, s52", "s_add_u32 s33, s33, 8192", "s_add_u32 s33, s54, s53", f"s_add_u32 s33, s33, {CSLOT}",
                  f"s_add_u32 s33, s54, s52\ns_add_u32 s33, s33, {CMEM_OFF}", "s_add_u32 s33, s33, 8192", "s_add_u32 s33, s33, 8192", "s_add_u32 s33, s33, 8192"):
            a(f"{x}\nbuffer_load_dword v14, v3, {WS}, s33 offen sc1")
        a("ch_e13:")
    load_all({} if opt.get('noinit') else {11: 1, 12: 1, 'e10': e10, 'e13': e13})
    a("v_readfirstlane_b32 s56, v0")
    def sst(k):
        if opt.get('trace'):
            a(f"s_memrealtime s[64:65]\ns_waitcnt lgkmcnt(0)\nv_mov_b32 v40, s64\ns_mov_b64 exec, 1\nbuffer_store_dword v40, off, {WS}, s101 offset:{2000+4*k}\ns_mov_b64 exec, -1")
    sst(0)
    a(f"s_barrier\nv_mov_b32 v21, {JUNK}\nds_read_b32 v20, v21\ns_waitcnt lgkmcnt(0)\nv_readfirstlane_b32 s98, v20")
    if opt.get('trace'):
        a(f"s_mov_b64 exec, 1\nbuffer_store_dword v20, off, {WS}, s101 offset:2028\ns_mov_b64 exec, -1")
    a("s_mov_b32 s60, 0\ns_cmp_eq_u32 s57, 1\ns_cbranch_scc1 ch_mode")
    if not opt.get('noinit'):
        wait_dbg(a, D_INIT*4, NZERO, 10, vt=4)
        a(f"s_lshl_b32 s33, {S_L}, 2\ns_add_u32 s33, s33, {D_CINIT*4}")
        wait_dbg(a, 's33', 32, 11, vt=4)
    decide_mode(a, 'ch_setslow')
    a("s_branch ch_mode\nch_setslow:\ns_mov_b32 s60, 1\nch_mode:")
    sst(1)
    if opt.get('diag'):
        a(f"s_cmp_eq_u32 {S_L}, 0\ns_cbranch_scc0 ch_dg0")
        diag(a, opt, 3, 40)
        a("ch_dg0:")
    n, c, t1, t2 = 'v28', 'v29', 'v30', 'v31'
    a(f"""v_and_b32 {n}, 15, v1
v_lshrrev_b32 {c}, 4, v1
v_lshlrev_b32 v{L16}, 4, v1
v_add_u32 v{WK}, s36, v{L16}
v_add_u32 v{HI}, {MEMB}, v{L16}
; idx
v_bfe_u32 {t1}, v1, 1, 1
v_mul_u32_u24 {t1}, 0xaaaa, {t1}
v_add_u32 v{IDX}, 0x4444, {t1}""")
    for q in range(4):
        a(f"""s_add_u32 s33, {S_W}, {q}
s_and_b32 s33, s33, 3
s_lshl_b32 s33, s33, 11
v_add_u32 v{M0A+q}, s33, v{HI}""")
    a(f"""v_and_b32 {t1}, 3, v1
v_lshlrev_b32 {t1}, 1, {t1}
v_bfe_u32 {t2}, v1, 2, 1
v_add_u32 {t1}, {t1}, {t2}
v_bfe_u32 {t2}, v1, 3, 1
v_lshlrev_b32 {t2}, 4, {t2}
v_mov_b32 v32, 0x3f80
v_lshlrev_b32 {t2}, {t2}, v32""")
    for q in range(4):
        a(f"v_cmp_eq_u32 vcc, {q}, {t1}\nv_cndmask_b32 v{SEL+q}, 0, {t2}, vcc")
    a(f"""; partial store offset: (8w+4m+c)*8192 + h*64 + (n&7)*8
v_bfe_u32 {t1}, v1, 3, 1
v_lshl_add_u32 {t1}, {t1}, 2, {c}
s_lshl_b32 s33, {S_W}, 3
v_add_u32 {t1}, s33, {t1}
v_mul_u32_u24 {t1}, {CSTR}, {t1}
v_and_b32 {t2}, 7, v1
v_lshl_add_u32 {t1}, {t2}, 3, {t1}
s_lshl_b32 s33, {S_I}, 6
v_add_u32 v{ST}, s33, {t1}
v_and_b32 {t1}, 1, v1
v_lshlrev_b32 {t1}, 5, {t1}
v_bfe_u32 {t2}, v1, 5, 1
v_lshl_add_u32 {t1}, {t2}, 4, {t1}
v_bfe_u32 {t2}, v1, 1, 1
v_lshl_add_u32 {t1}, {t2}, 3, {t1}
v_bfe_u32 {t2}, v1, 4, 1
v_lshl_add_u32 {t1}, {t2}, 2, {t1}
v_bfe_u32 {t2}, v1, 2, 1
v_lshl_add_u32 {t1}, {t2}, 14, {t1}
s_lshr_b32 s33, {S_I}, 1
s_lshl_b32 s33, s33, 8
s_and_b32 s34, {S_I}, 1
s_lshl_b32 s34, s34, 6
s_add_u32 s33, s33, s34
s_lshr_b32 s34, {S_W}, 1
s_lshl_b32 s34, s34, 12
s_and_b32 s35, {S_W}, 1
s_lshl_b32 s35, s35, 7
s_add_u32 s35, s35, s34
s_add_u32 s33, s33, s35
s_add_u32 s33, s33, 8192
v_add_u32 v{PUB}, s33, {t1}
v_bfe_u32 v{PD}, v1, 2, 1
v_or_b32 v{PD}, -2, v{PD}
v_mul_u32_u24 {t1}, {2*QROW}, {c}
v_lshl_add_u32 {t1}, {n}, 2, {t1}
s_lshl_b32 s33, {S_W}, 6
s_add_u32 s34, s33, {QX}
v_add_u32 v{QW}, s34, {t1}
v_bfe_u32 {t1}, v1, 2, 2
v_lshlrev_b32 {t1}, 1, {t1}
v_and_b32 {t2}, 1, v1
v_add_u32 {t1}, {t1}, {t2}
v_mul_u32_u24 {t1}, {QROW}, {t1}
v_lshl_add_u32 {t1}, {c}, 4, {t1}
v_add_u32 v{QR}, {QX}, {t1}
v_bfe_u32 {t2}, v1, 1, 1
v_lshl_add_u32 v{QRM}, {t2}, 7, v{QR}
v_bfe_u32 {t1}, v1, 2, 3
v_mul_u32_u24 {t1}, {QROW}, {t1}
v_bfe_u32 {t2}, v1, 5, 1
v_lshl_add_u32 {t1}, {t2}, 5, {t1}
v_and_b32 {t2}, 3, v1
v_lshl_add_u32 {t1}, {t2}, 3, {t1}
s_lshl_b32 s33, {S_W}, 6
s_add_u32 s33, s33, {KX}
v_add_u32 v{KMS}, s33, {t1}
v_lshlrev_b32 {t1}, 4, {n}
v_lshl_add_u32 {t1}, {c}, 2, {t1}
v_add_u32 v{VMS}, 2048, {t1}
v_bfe_u32 {t1}, v1, 2, 2
v_lshlrev_b32 {t1}, 1, {t1}
v_and_b32 {t2}, 1, v1
v_add_u32 {t1}, {t1}, {t2}
v_lshlrev_b32 {t1}, 4, {t1}
v_lshl_add_u32 {t1}, {c}, 7, {t1}
s_lshl_b32 s33, {S_W}, 9
s_add_u32 s33, s33, {OX}
v_add_u32 v{ORD}, s33, {t1}
v_bfe_u32 {t2}, v1, 1, 1
v_lshl_add_u32 v{OW}, {t2}, 3, v{ORD}
v_bfe_u32 {t1}, v1, 5, 1
v_lshlrev_b32 {t1}, 10, {t1}
v_bfe_u32 {t2}, v1, 4, 1
v_lshl_add_u32 {t1}, {t2}, 9, {t1}
s_lshl_b32 s33, {S_W}, 11
v_add_u32 {t1}, s33, {t1}
v_lshl_add_u32 v{VG}, {n}, 4, {t1}
v_bfe_u32 {t2}, v1, 3, 1
v_lshl_add_u32 v{KG}, {t2}, 7, v{VG}
v_and_b32 v{TAGM}, 1, v1
v_xor_b32 v{TAGM}, 1, v{TAGM}""")
    a(f"""s_lshl_b32 s33, {S_L}, 20
s_add_u32 s54, s33, {CRING}
s_add_u32 s37, s54, {CMEM_OFF}
s_mul_i32 s53, {S_I}, {CSTR}
s_lshl_b32 s33, {S_W}, 11
s_add_u32 s53, s53, s33
s_add_u32 s55, s37, s35
s_add_u32 s43, s33, {KB}
s_lshl_b32 s33, {S_L}, 23
s_lshl_b32 s34, {S_I}, 12
s_add_u32 s33, s33, s34
s_add_u32 s39, s33, {KM}
s_lshl_b32 s34, {S_W}, 9
s_add_u32 s39, s39, s34
s_mul_i32 s33, {S_L}, {48*MB}
s_mul_i32 s34, {S_I}, 24576
s_add_u32 s33, s33, s34
s_add_u32 s40, s33, {QKV + 8192}
s_lshl_b32 s33, {S_L}, 5
s_add_u32 s33, s33, {S_I}
s_lshl_b32 s33, s33, 9
s_lshl_b32 s34, {S_W}, 7
s_add_u32 s33, s33, s34
s_add_u32 s41, s33, {F_KV}
s_lshl_b32 s84, {S_W}, 11
s_mov_b32 s58, 0x3f803f80
s_mov_b32 s59, 0x3f803f80
s_add_u32 s42, s33, {F_KM}
s_mov_b32 s44, 0x33333333
s_mov_b32 s45, 0x33333333
s_mov_b32 s46, 0xcccccccc
s_mov_b32 s47, 0xcccccccc
s_mov_b32 s48, 0x000f000f
s_mov_b32 s49, 0x000f000f
s_mov_b32 s50, 0x00ff00ff
s_mov_b32 s51, 0x00ff00ff
s_mov_b32 s52, {SC}
s_mov_b32 s20, 0
s_mov_b32 s38, s55""")
    a("s_cmp_lg_u32 s56, 0\ns_cbranch_scc1 ch_kv0ok\ns_cmp_eq_u32 s57, 1\ns_cbranch_scc1 ch_kv0")
    a(f"s_add_u32 s33, s54, s53")
    for sl in range(2):
        for q in range(2): a(f"buffer_load_dwordx4 v[28:31], v{L16}, {WS}, s33 offen offset:{1024*q} sc1")
        a(f"s_add_u32 s33, s33, {CSLOT}")
    for sl in range(1, 4):
        a(f"s_add_u32 s33, s37, s84\ns_add_u32 s33, s33, {8192*sl}")
        for q in range(2): a(f"buffer_load_dwordx4 v[28:31], v{L16}, {WS}, s33 offen offset:{1024*q} sc1")
    a(f"""ch_kv0:
s_mov_b64 exec, 1
buffer_load_dword v{FV}, off, {WS}, s41 sc1
s_waitcnt vmcnt(0)
v_cmp_eq_u32 vcc, 0, v{FV}
s_cbranch_vccz ch_kv0ok""")
    spin_dec(a, 12)
    a("s_sleep 2\ns_branch ch_kv0\nch_kv0ok:\ns_mov_b64 exec, -1")
    sst(2)
    diag(a, opt, 12, 40)
    for i in range(2):
        a(f"s_add_u32 m0, s43, {896*i}\nbuffer_load_dwordx4 v{KG}, {WS}, s40 offen offset:{128*i} sc1 lds")
    a(f"s_add_u32 s56, s40, 8192")
    for i in range(2):
        a(f"s_add_u32 m0, s43, {VB - KB + 768*i}\nbuffer_load_dwordx4 v{VG}, {WS}, s56 offen offset:{256*i} sc1 lds")
    a(f"s_add_u32 s40, s40, {32*24576}\ns_add_u32 s85, s40, s84")
    if opt.get('SYNC', 1):
        Q_ = opt.get('Q', 512)
        a(f"""s_sub_u32 s33, 3, {S_W}
s_mul_i32 s61, s33, {opt.get('WS', 32)}
s_add_u32 s82, s61, {76 + (8 if opt.get('cnt') else 0)}
s_mul_i32 s83, s33, {opt.get('WS', 32) - opt.get('WS2', 24)}
s_add_u32 s83, s83, {opt.get('C2', 590)}
s_mov_b32 s63, s98
s_mov_b32 s62, s63""")
    a("s_cmp_eq_u32 s60, 1\ns_cbranch_scc1 chs_entry")
    for mode in ('chf', 'chs'):
        step_loop(a, opt, mode, '' if mode == 'chf' else ' sc1', D1, D2)
    a(f"""ch_fin:
s_waitcnt vmcnt(0)
v_mov_b32 v{T0}, 64
s_mov_b64 exec, 1
buffer_store_dword v{T0}, off, {WS}, s42 sc1
s_mov_b64 exec, -1""")
    if opt.get('diag'):
        a(f"s_cmp_eq_u32 {S_L}, 0\ns_cbranch_scc0 ch_dg1")
        diag(a, opt, 4, 40)
        a("ch_dg1:")
        diag(a, opt, 5, 40)
    if opt.get('trace'):
        a("v_mbcnt_lo_u32_b32 v1, -1, 0\nv_mbcnt_hi_u32_b32 v1, -1, v1")
        tr_dump(a, opt, 0, 40, 10)
    a("s_branch the_end")

def warm(a, cycles, reg):
    for _ in range(max(0, cycles)//4): a(f"v_mov_b32 v{reg}, 0")

def step_loop(a, opt, P, SC1, D1, D2):
    lds = Cnt(a, 'lgkmcnt', 15)
    vm = Cnt(a, 'vmcnt', 63)
    R4 = lambda r: f"v[{r}:{r+3}]"
    slot = [100]
    def tick():
        cst(a, opt, slot[0]); slot[0] += 1
    memf = lambda s: R4(MEMF + 4*s)
    ETA = 's[46:47]'
    KL = [(s, t) for s in K_LDS for t in range(2)]
    def wk(n, h):
        r = RING + 8*(n % NRING) + 4*h
        return lambda: lds.issue(f"ds_read_b128 {R4(r)}, v{WK} offset:{2048*n + 1024*h}", ('wk', n))
    def S(m, s, t):
        if m == 'q': d, b = ACC + 4*t, f"a[{(2*s+t)*8}:{(2*s+t)*8+7}]"
        elif m == 'v': d, b = VAC + 4*t, f"v[{128+(2*s+t)*8}:{128+(2*s+t)*8+7}]"
        else:
            d = ACC + 8 + 4*t
            if s in K_REG: r = areg_k(s, t); b = f"a[{r}:{r+7}]"
            else:
                n = KL.index((s, t)); r = RING + 8*(n % NRING); b = f"v[{r}:{r+7}]"
                if n >= NRING: lds.wait(('wk', n))
        if s >= 2: lds.wait(('m', s))
        a(f"v_smfmac_f32_16x16x64_bf16 {R4(d)}, {memf(s)}, {b}, v{IDX}"); tick()
    def do(*xs):
        for x in xs:
            if x is None: continue
            if callable(x): x()
            else: a(x)
    def zero(r0, r1): return [f"v_mov_b64 v[{r}:{r+1}], 0" for r in range(r0, r1, 2)]
    def prep():
        z = zero(ACC + 16, ACC + 24)
        for n in range(NRING):
            wk(n, 0)(); wk(n, 1)()
        do(*z)
    a(f"{P}_entry:")
    a(f"v_mov_b32 v{FV}, 127\nv_mov_b32 v{XT+1}, 0\nv_and_b32 v{XT+2}, 0x380, v{L16}\nv_add_u32 v{XT+2}, v{XT+2}, v{L16}")
    prep()
    PQ = MEMF + 24
    NR = 4
    a(f"{P}_h2:")
    cst(a, opt, 29)
    a(f"""buffer_load_dwordx4 {memf(0)}, v{XT+2}, {WS}, s38 offen sc1
buffer_load_dwordx4 {memf(1)}, v{XT+2}, {WS}, s38 offen offset:2048 sc1
v_lshlrev_b32 v{XT}, 2, v{L16}
v_and_b32 v{XT+3}, 0x800, v{XT}
v_mad_u32_u24 v{XT}, v{XT+3}, 3, v{XT}""")
    do(*zero(ACC, ACC + 16))
    TRC = 1 if opt.get('trace') else 0
    cflush(a, opt)
    a(f"""s_waitcnt lgkmcnt(0)
s_waitcnt vmcnt({1 + TRC})""")
    lds.q = []; lds.done = 0
    cst(a, opt, 0)
    lds.issue(f"ds_write_b128 v{M0A}, {memf(0)}", 'mw')
    S('q', 0, 0)
    a(f"s_waitcnt vmcnt({TRC})")
    lds.issue(f"ds_write_b128 v{M0A}, {memf(1)} offset:1024", 'mw')
    S('q', 0, 1); a(f"v_max_u32 v{T0}, v{MEMF}, v{MEMF+4}")
    S('k', 0, 0); a(f"v_cmp_eq_u32 vcc, -1, v{T0}")
    SY = opt.get('SYNC', 1)
    S('k', 0, 1)
    S('q', 1, 0); a(f"s_cbranch_vccnz {P}_h2retry")
    def vst(t, tag=None):
        if opt.get('NOKM') and f"v{KMS}," in t: return None
        if opt.get('NOVM') and f"v{VMS}," in t: return None
        if opt.get('NOTOUCH') and 'buffer_load_dword v' in t and t.endswith('lds'): return None
        return lambda: vm.issue(t, tag)
    S('q', 1, 1); do(wk(5, 0))
    S('k', 1, 0); do(wk(5, 1), f"s_add_u32 m0, s43, {VB - KB}")
    lds.wait('mw')
    cst(a, opt, 10)
    a("s_barrier")
    cst(a, opt, 11)
    mr = lambda s: (lambda: lds.issue(f"ds_read_b128 {memf(s)}, v{M0A + (s>>1)} offset:{1024*(s&1)}", ('m', s)))
    kf = lambda T, i: RING + 16*T + 4*i
    kr = lambda T, i: (lambda: lds.issue(f"ds_read_b128 {R4(kf(T, i))}, v{HI} offset:{KB - MEMB + 2048*i + 1024*T}", ('K', T, i)))
    K0, K1, Q0, Q1 = ACC + 8, ACC + 12, ACC, ACC + 4
    RT = 0
    VMV = 'c'
    CV = True
    V1 = vst(f"buffer_load_dwordx4 v{VG}, {WS}, s56 offen sc1 lds", 'V')
    V2 = vst(f"buffer_load_dwordx4 v{VG}, {WS}, s56 offen offset:256 sc1 lds", 'V')
    FS = vst(f"buffer_store_dword v{T0}, off, {WS}, s42 sc1", 'fs')
    TK = vst(f"buffer_load_dword v{FV}, v{XT}, {WS}, s85 offen sc1")
    TV = None
    do(mr(2), "s_memrealtime s[80:81]" if RT else None, mr(3))
    FSX = ["s_mov_b64 exec, 1", vst(f"buffer_store_dword v{XT+1}, off, {WS}, s42 sc1", 'fs'), "s_mov_b64 exec, -1"]
    S('k', 1, 1); do(V1, f"s_add_u32 m0, s43, {VB - KB + 768}")
    S('v', 0, 0); do(V2)
    S('v', 0, 1); do(wk(6, 0))
    S('q', 2, 0); do(wk(6, 1))
    S('q', 2, 1); do(*FSX)
    S('k', 2, 0); do(mr(4))
    S('k', 2, 1); do(TK)
    S('k', 3, 0); do(wk(7, 0))
    S('q', 3, 0); do(wk(7, 1))
    S('q', 3, 1); do(mr(5))
    S('k', 3, 1)
    S('k', 4, 0); do(mr(6))
    S('q', 4, 0); do(wk(8, 0), "s_add_u32 s57, s20, 1")
    S('k', 4, 1); do(wk(8, 1))
    S('q', 4, 1); do(mr(7), "s_lshr_b32 s21, s20, 1")
    S('k', 6, 0); do(wk(9, 0))
    S('k', 6, 1); do(wk(9, 1), "s_not_b32 s21, s21")
    S('k', 5, 0)
    S('k', 7, 0); do(kr(0, 0), "s_min_u32 s57, s57, 62")
    S('k', 7, 1); do(kr(0, 1), "s_and_b32 s21, s21, 1")
    S('k', 5, 1); do(kr(0, 2), f"v_add_f32 v{K0}, v{K0}, v{K0+2}")
    S('q', 5, 0); do(kr(0, 3), f"v_add_f32 v{K0+1}, v{K0+1}, v{K0+3}")
    S('q', 6, 0); do(kr(1, 0), f"v_add_f32 v{K1}, v{K1}, v{K1+2}")
    S('q', 7, 0); do(kr(1, 1), f"v_add_f32 v{K1+1}, v{K1+1}, v{K1+3}")
    S('q', 5, 1); do(kr(1, 2), f"v_cvt_pk_bf16_f32 v{XT}, v{K0}, v{K1}")
    S('q', 6, 1); do(kr(1, 3), f"v_cvt_pk_bf16_f32 v{XT+1}, v{K0+1}, v{K1+1}")
    S('q', 7, 1); do(lambda: lds.issue(f"ds_write_b32 v{QW}, v{XT} offset:{KX - QX}", 'kw'), f"v_add_f32 v{Q0}, v{Q0}, v{Q0+2}")
    cst(a, opt, 1)
    S('v', 1, 0); do(lambda: lds.issue(f"ds_write_b32 v{QW}, v{XT+1} offset:{KX - QX + QROW}", 'kw'), f"v_add_f32 v{Q0+1}, v{Q0+1}, v{Q0+3}")
    S('v', 1, 1); do(lambda: lds.issue(f"ds_read_b64 v[{XT+2}:{XT+3}], v{KMS}", 'kr'))
    a(f"""v_add_f32 v{Q1}, v{Q1}, v{Q1+2}
v_add_f32 v{Q1+1}, v{Q1+1}, v{Q1+3}
v_cvt_pk_bf16_f32 v{Q0+2}, v{Q0}, v{Q1}
v_cvt_pk_bf16_f32 v{Q0+3}, v{Q0+1}, v{Q1+1}""")
    lds.issue(f"ds_write2_b32 v{QW}, v{Q0+2}, v{Q0+3} offset1:{QROW//4}", 'qw')
    S('v', 2, 0); do(f"v_lshrrev_b32 v{XT}, 1, v{L16}")
    S('v', 2, 1); do(lambda: lds.wait('kr'), vst(f"buffer_store_dwordx2 v[{XT+2}:{XT+3}], v{XT}, {WS}, s39 offen sc1"))
    S('v', 3, 0)
    lds.wait('qw')
    a("s_barrier")
    cst(a, opt, 16)
    QF = [92, 96, ACC + 8, ACC + 12]
    QM, KMF = [MEMF, MEMF + 4], [MEMF + 8, MEMF + 12]
    qr = lambda i: (lambda: lds.issue(f"ds_read_b128 {R4(QF[i])}, v{QR} offset:{64*i}", ('q', i)))
    qmr = lambda i: (lambda: lds.issue(f"ds_read_b128 {R4(QM[i])}, v{QRM} offset:{64*i}", ('qm', i)))
    kmr = lambda i: (lambda: lds.issue(f"ds_read_b128 {R4(KMF[i])}, v{QRM} offset:{KX - QX + 64*i}", ('km', i)))
    VF = MEMF + 16
    do(qr(0))
    S('v', 3, 1); do(qr(1))
    S('v', 4, 0); do(qr(2))
    S('v', 4, 1); do(qr(3))
    S('v', 5, 0); do(qmr(0), "s_add_u32 s56, s40, 8192")
    S('v', 5, 1); do(kmr(0))
    S('v', 6, 0); do(qmr(1))
    S('v', 7, 0); do(kmr(1))
    S('v', 6, 1); do(lambda: vm.wait('V'))
    S('v', 7, 1); do("s_mov_b64 exec, 1", vst(f"buffer_load_dword v{XT+1}, off, {WS}, s41 sc1", 'fl'), "s_mov_b64 exec, -1")
    DV1 = DV2 = None
    cst(a, opt, 2)
    X0, X1, SM = ACC, ACC + 4, MEMF + 24
    V0, V1 = VAC, VAC + 4
    def MM(d, x, y, first): a(f"v_mfma_f32_16x16x32_bf16 {R4(d)}, {R4(x)}, {R4(y)}, {'0' if first else R4(d)}"); tick()
    VP = VAC + 2
    ONE = VAC + 4
    m, m2 = T0, T0 + 1
    WA = RING
    OS = [MEMF, MEMF + 8, 92, ACC + 8, MEMF + 24, VAC]
    osr = lambda n, h: (lambda: lds.issue(f"ds_read_b128 {R4(OS[n] + 4*h)}, v{WK} offset:{2048*(10 + n) + 1024*h}", ('os', n)))
    vr = lambda t: (lambda: lds.issue(f"ds_read_b128 {R4(VF + 4*t)}, v{M0A} offset:{VB - MEMB + 1024*t}", ('V', t)))
    QP = "quad_perm:[2,3,0,1] row_mask:0xf bank_mask:0xf"
    EM = XT + 2
    lds.wait(('q', 3))
    MM(X0, kf(0, 0), QF[0], True);  do(f"v_add_f32 v{V0}, v{V0}, v{V0+2}")
    MM(X0, kf(0, 1), QF[1], False); do("s_and_b32 s33, s20, 1", f"v_add_f32 v{V0+1}, v{V0+1}, v{V0+3}", f"v_add_f32 v{V1}, v{V1}, v{V1+2}")
    MM(X0, kf(0, 2), QF[2], False); do(f"s_mul_i32 s33, s33, {CSLOT}", f"v_add_f32 v{V1+1}, v{V1+1}, v{V1+3}", f"v_cvt_pk_bf16_f32 v{VP}, v{V0}, v{V0+1}")
    MM(X0, kf(0, 3), QF[3], False); do(lambda: lds.wait(('km', 1)), f"v_cvt_pk_bf16_f32 v{VP+1}, v{V1}, v{V1+1}", *zero(WA, WA + 2))
    MM(SM, KMF[0], QM[0], True);    do(vst(f"buffer_store_dwordx2 v[{VP}:{VP+1}], v{XT}, {WS}, s39 offen offset:2048 sc1"), f"v_mov_b64 v[{ONE}:{ONE+1}], s[58:59]")
    MM(SM, KMF[1], QM[1], False);   do(vr(0) if CV else None, f"v_max3_f32 v{m}, v{X0}, v{X0+1}, v{X0+2}")
    MM(X1, kf(1, 0), QF[0], True);  do(vr(1) if CV else None, f"v_mov_b64 v[{ONE+2}:{ONE+3}], s[58:59]")
    MM(X1, kf(1, 1), QF[1], False); do("s_add_u32 s22, s54, s33", f"v_cndmask_b32_e64 v{SM}, v{SM}, v{SM+2}, {ETA}", f"v_cndmask_b32_e64 v{SM+1}, v{SM+1}, v{SM+3}, {ETA}")
    MM(X1, kf(1, 2), QF[2], False); do(f"v_add_f32_dpp v{SM}, v{SM}, v{SM} {QP}", f"v_add_f32_dpp v{SM+1}, v{SM+1}, v{SM+1} {QP}")
    MM(X1, kf(1, 3), QF[3], False)
    do(f"v_max3_f32 v{m}, v{m}, v{X0+3}, v{SM}",
       f"v_cndmask_b32_e64 v{EM}, v{SM}, v{SM+1}, {ETA}", f"v_max_f32 v{m}, v{m}, v{SM+1}", *zero(WA + 2, WA + 10))
    cst(a, opt, 19)
    sel = lambda i: f"v_cndmask_b32_e64 v{X0+i}, v{X0+i}, v{X1+i}, {ETA}"
    a(f"""v_max3_f32 v{m}, v{m}, v{X1}, v{X1+1}
v_max3_f32 v{m2}, v{m}, v{X1+2}, v{X1+3}
v_max3_f32 v{m}, v{m}, v{X1+2}, v{X1+3}
{sel(0)}
{sel(1)}
v_permlane16_swap_b32 v{m2}, v{m}
v_max_f32 v{EM+1}, v{m}, v{m2}
v_max_f32 v{m}, v{m}, v{m2}
{sel(2)}
{sel(3)}
v_permlane32_swap_b32 v{EM+1}, v{m}
v_max_f32 v{m}, v{m}, v{EM+1}
v_mul_f32 v{m}, s52, v{m}""")
    cst(a, opt, 20)
    E = [X0, X0+1, X0+2, X0+3]
    if not CV: do(lambda: vm.wait('V'), vr(0), vr(1))
    for e in E: a(f"v_fma_f32 v{e}, v{e}, s52, -v{m}")
    for e in E: a(f"v_exp_f32 v{e}, v{e}")
    B0, B1, BM, O, p0, p1, LS = X1, 76, 80, 84, 82, 83, 88
    a(f"""v_cvt_pk_bf16_f32 v{p0}, v{X0}, v{X0+1}
v_cvt_pk_bf16_f32 v{p1}, v{X0+2}, v{X0+3}
v_cndmask_b32_e64 v{B1+2}, 0, v{p0}, {ETA}
v_cndmask_b32_e64 v{B1+3}, 0, v{p1}, {ETA}
v_cndmask_b32_e64 v{B0}, v{p0}, 0, {ETA}
v_cndmask_b32_e64 v{B0+1}, v{p1}, 0, {ETA}
v_mov_b32_dpp v{B0+2}, v{B1+2} {QP}
v_mov_b32_dpp v{B0+3}, v{B1+3} {QP}
v_fma_f32 v{EM}, v{EM}, s52, -v{m}""")
    lds.wait(('V', 1))
    cst(a, opt, 3)
    MM(LS, ONE, B0, True);  do(DV1, f"v_mov_b32_dpp v{B1}, v{B0} {QP}", f"v_mov_b32_dpp v{B1+1}, v{B0+1} {QP}")
    MM(O, VF, B0, True);    do(osr(0, 0), f"v_exp_f32 v{EM}, v{EM}")
    MM(LS, ONE, B1, False); do(osr(0, 1), f"v_mov_b32_dpp v{EM+1}, v{EM} {QP}")
    MM(O, VF + 4, B1, False)
    do(f"v_cvt_pk_bf16_f32 v{BM}, v{EM}, v{EM+1}", f"v_cndmask_b32_e64 v{BM}, v{BM}, 0, {ETA}", *zero(WA + 10, WA + 14),
       f"v_mov_b32_dpp v{BM+1}, v{BM} {QP}", *zero(WA + 14, WA + 16))
    a(f"v_mfma_f32_16x16x16_bf16 {R4(LS)}, v[{ONE}:{ONE+1}], v[{BM}:{BM+1}], {R4(LS)}")
    do(osr(1, 0))
    a(f"v_mfma_f32_16x16x16_bf16 {R4(O)}, v[{VP}:{VP+1}], v[{BM}:{BM+1}], {R4(O)}")
    do(osr(1, 1), DV2, "s_cmp_lt_u32 s20, 61", f"s_cselect_b32 s33, {32*24576}, 0")
    a(f"v_rcp_f32 v{LS}, v{LS}")
    do("s_add_u32 s87, s40, s33", "s_cmp_eq_u32 s20, 63")
    OP = X0
    for i in range(4): a(f"v_mul_f32 v{O+i}, v{O+i}, v{LS}")
    a(f"v_cvt_pk_bf16_f32 v{OP}, v{O}, v{O+1}\nv_cvt_pk_bf16_f32 v{OP+1}, v{O+2}, v{O+3}")
    cst(a, opt, 22)
    lds.issue(f"ds_write_b64 v{OW}, v[{OP}:{OP+1}]", 'ow')
    OF = [X1, VF, VF + 4, B1]
    for i in range(4):
        a(f"v_mov_b32_dpp v{OF[0]+i}, v{OP+(i&1)} quad_perm:{'[0,1,0,1]' if i < 2 else '[2,3,2,3]'} row_mask:0xf bank_mask:0xf")
    do(*[f"v_xor_b32 v{O+sg}, {512*sg}, v{ORD}" for sg in (1, 2, 3)])
    def so(phi, sg):
        d = WA + 4*phi
        kp, t = sg >> 1, sg & 1
        if (phi, kp) in O_REG: r = areg_o(phi, kp, t); b = f"a[{r}:{r+7}]"
        else:
            n = O_LDS.index((phi, kp))*2 + t; b = f"v[{OS[n]}:{OS[n]+7}]"
            lds.wait(('os', n))
        if sg: lds.wait(('o', sg))
        a(f"v_smfmac_f32_16x16x64_bf16 {R4(d)}, {R4(OF[sg])}, {b}, v{IDX}"); tick()
    so(0, 0); do("s_cbranch_scc1 ch_fin")
    lds.wait('ow')
    cst(a, opt, 24)
    a("s_barrier")
    orr = lambda sg: (lambda: lds.issue(f"ds_read_b128 {R4(OF[sg])}, v{O+sg}", ('o', sg)))
    do(orr(1))
    so(1, 0); do(orr(2), "s_add_u32 s23, s22, 4096")
    so(2, 0); do(orr(3), "s_add_u32 s36, s22, s53")
    so(3, 0); do(osr(2, 0), "s_add_u32 s20, s20, 1")
    cst(a, opt, 4)
    def epi(phi):
        A_ = WA + 4*phi
        return [f"v_cvt_pk_bf16_f32 v{A_}, v{A_}, v{A_+1}", f"v_cvt_pk_bf16_f32 v{A_+1}, v{A_+2}, v{A_+3}", f"v_bfi_b32 v{A_}, v{TAGM}, s21, v{A_}",
                f"buffer_store_dwordx2 v[{A_}:{A_+1}], v{ST}, {WS}, {'s22' if phi < 2 else 's23'} offen offset:{2048*(phi&1)}{SC1}"]
    e0, e1, e2, e3 = [epi(p) for p in range(4)]
    so(0, 1); do(osr(2, 1))
    so(0, 2); do(osr(3, 0))
    so(0, 3); do(osr(3, 1))
    so(1, 1); do(osr(4, 0), (lambda: vm.wait('sig')) if RT else None)
    so(1, 2); do(osr(4, 1), e0[0], e0[1], e0[2])
    so(1, 3); do(e0[3], osr(5, 0))
    so(2, 1); do(osr(5, 1), f"v_subrev_u32 v{FV}, s80, v{FV}" if RT else None)
    so(2, 2); do(f"s_add_u32 s39, s39, {32*4096}", "s_and_b32 s33, s20, 3", e1[0], e1[1], e1[2])
    so(2, 3); do(e1[3])
    so(3, 1); do("s_lshl_b32 s33, s33, 13", "s_add_u32 s38, s55, s33")
    so(3, 2); do("s_add_u32 s85, s87, s84", e2[0])
    so(3, 3); do(e2[1], e2[2], e2[3], *e3)
    cst(a, opt, 5)
    H = MEMF + 8
    R = MEMF + 16
    D1 = opt.get('D1', [220, 260, 300, 340])
    TT, QQ, C2, TOL, LI = opt.get('T', 3140), opt.get('Q', 512), opt.get('C2', 520), opt.get('TOL', 40), opt.get('LI', 32)
    DS_ = opt.get('DS', 150)
    def wait_rem(name):
        a(f"""{P}_{name}1:
s_sub_u32 s33, s33, {LI}
s_cmp_gt_i32 s33, 0
s_cbranch_scc1 {P}_{name}1""")
    assert QQ & (QQ - 1) == 0
    def grid(reg, thr):
        a(f"""s_waitcnt lgkmcnt(0)
s_sub_u32 s33, {reg}, s80
s_sub_u32 s34, {thr + QQ - 1}, s33
s_max_i32 s34, s34, 0
s_andn2_b32 s34, s34, {QQ - 1}
s_add_u32 s33, s33, s34""")
        if opt.get('cnt'): a(f"s_lshl_b32 s35, s34, {24 - QQ.bit_length() + 1}\ns_add_u32 s76, s76, s35")
    OV = 72 + (8 if opt.get('cnt') else 0)
    if SY:
        a(f"""s_memtime s[80:81]
s_add_u32 s63, s63, {TT}""")
        grid('s63', DS_)
        a("s_sub_u32 s33, s33, s82\ns_add_u32 s63, s63, s34\ns_sub_u32 s62, s63, s61")
        wait_rem('ga')
    else:
        a.nops((D1[0] - 24)//4)
        for w in (1, 2, 3):
            if D1[w] > D1[w-1]:
                a(f"s_cmp_lt_u32 {S_W}, {w}\ns_cbranch_scc1 {P}_h1a")
                a.nops((D1[w] - D1[w-1] - 16)//4)
    a(f"{P}_h1a:")
    cst(a, opt, 27)
    a(f"""buffer_load_dwordx4 {R4(H)}, v{L16}, {WS}, s36 offen sc1
buffer_load_dwordx4 {R4(H+4)}, v{L16}, {WS}, s36 offen offset:1024 sc1""")
    a(f"""s_waitcnt vmcnt(7)
v_readfirstlane_b32 s86, v{XT+1}
v_bfe_i32 v{T0+1}, v{PD}, 0, 1
v_and_b32 v{XT+2}, 0x380, v{L16}
v_add_u32 v{XT+2}, v{XT+2}, v{L16}""")
    prep()
    a(f"""s_cmp_ge_u32 s57, s86
s_cbranch_scc1 {P}_kvwait
{P}_kvok:""")
    for i_ in range(2): a(f"s_add_u32 m0, s43, {896*i_}\nbuffer_load_dwordx4 v{KG}, {WS}, s40 offen offset:{128*i_} sc1 lds")
    a(f"""v_mov_b32 v{XT+1}, s20
s_waitcnt vmcnt(3)
{P}_h1b:
v_mfma_f32_16x16x32_bf16 {R4(R)}, {R4(SEL)}, {R4(H)}, 0
v_xor_b32 v{T0}, s21, v{H}
s_waitcnt vmcnt(2)
v_mfma_f32_16x16x32_bf16 {R4(R)}, {R4(SEL)}, {R4(H+4)}, {R4(R)}
v_bitop3_b32 v{T0}, v{T0}, s21, v{H+4} bitop3:0xf6
v_and_b32 v{T0}, 1, v{T0}
v_cmp_ne_u32 vcc, 0, v{T0}
v_add_f32_dpp v{R}, v{R}, v{R} row_ror:4 row_mask:0xf bank_mask:0xf
v_add_f32_dpp v{R+1}, v{R+1}, v{R+1} row_ror:4 row_mask:0xf bank_mask:0xf
s_cbranch_vccnz {P}_h1retry
v_add_f32_dpp v{R}, v{R}, v{R} row_ror:8 row_mask:0xf bank_mask:0xf
v_add_f32_dpp v{R+1}, v{R+1}, v{R+1} row_ror:8 row_mask:0xf bank_mask:0xf
s_mov_b64 exec, s[50:51]
v_cvt_pk_bf16_f32 v{R}, v{R}, v{R+1}
v_med3_u32 v{R}, v{R}, v{PD}, v{T0+1}
buffer_store_dword v{R}, v{PUB}, {WS}, s37 offen{SC1}
s_memtime s[80:81]
s_mov_b64 exec, -1
v_add_u32 v{PUB}, 0x2000, v{PUB}
v_and_b32 v{PUB}, 0x7fff, v{PUB}
s_add_u32 s62, s62, s83
s_mov_b32 s40, s87""")
    cst(a, opt, 6)
    if SY:
        a(f"{P}_gb0:")
        grid('s62', OV + 20 - TOL)
        a(f"s_add_u32 s62, s62, s34\ns_sub_u32 s33, s33, {OV + 20}")
        wait_rem('gb')
    else: a.nops((D2 - 36)//4)
    a(f"s_branch {P}_h2")
    a(f"{P}_h2retry:"); spin_dec(a, 13)
    if opt.get('cnt'): a("s_add_u32 s76, s76, 0x10000")
    a(f"s_memtime s[80:81]\ns_branch {P}_gb0" if SY else f"s_branch {P}_h2")
    a(f"{P}_h1retry:"); spin_dec(a, 14)
    if opt.get('cnt'): a("s_add_u32 s76, s76, 1")
    if SY:
        a("s_memtime s[80:81]")
        grid('s62', OV + 20 - TOL)
        a(f"s_add_u32 s62, s62, s34\ns_sub_u32 s33, s33, {OV + opt.get('RA', 24)}")
        wait_rem('gr')
    cst(a, opt, 27)
    a(f"""buffer_load_dwordx4 {R4(H)}, v{L16}, {WS}, s36 offen sc1
buffer_load_dwordx4 {R4(H+4)}, v{L16}, {WS}, s36 offen offset:1024 sc1""")
    prep()
    a(f"s_branch {P}_kvok")
    a(f"{P}_kvwait:"); spin_dec(a, 15)
    a(f"""s_sleep 1
buffer_load_dword v{XT+1}, off, {WS}, s41 sc1
s_waitcnt vmcnt(0)
v_cmp_ge_u32 vcc, s57, v{XT+1}
s_cbranch_vccnz {P}_kvwait
s_branch {P}_kvok""")
```

```python
from common import *
from r_qkv import xtile_setup
from r_ao import load_w_perm8, w_addr, half_epilogue, shadow16, swap4, ring_next, part_addr, selectors, reduce_loads, reduce_sum, unpack8, done_store
HB = 0x20000
TS = 16384

def role_ffn(a, opt):
    a(f"""role_ffn:
s_lshr_b32 {S_L}, {S_I}, 4
s_and_b32 s35, {S_I}, 15""")
    if 'ffn_layers' in opt:
        for l in (0, 1):
            if l not in opt['ffn_layers']: a(f"s_cmp_eq_u32 {S_L}, {l}\ns_cbranch_scc1 the_end")
    a(f"""s_cmp_ge_u32 s35, 11
s_cbranch_scc1 ffn_R""")
    def wait_init(code):
        if not opt.get('noinit'):
            a(f"s_movk_i32 s33, {GINIT_N}")
            wait_dbg(a, D_GINIT*4, 's33', code + 1, vt=10)
    if opt.get('WARM', 0) and not opt.get('noinit'): warm_weights(a, 2)
    srd(a, 12, P_W1, 512*2752); srd(a, 16, P_W2, 1376*1024)
    a(f"""s_lshl_b32 s33, s35, 2
s_add_u32 s33, s33, {S_W}
s_lshl_b32 s50, s33, 6
s_cmp_eq_u32 s33, 43
s_cselect_b32 s50, 0x200000, s50
v_lshrrev_b32 v2, 2, v1
v_mul_u32_u24 v2, 2752, v2
v_and_b32 v3, 3, v1
v_lshl_add_u32 v2, v3, 4, v2
s_mul_i32 s52, {S_W}, 40960
v_lshrrev_b32 v3, 5, v1
v_lshlrev_b32 v3, 9, v3
v_bfe_u32 v4, v1, 2, 2
v_lshl_add_u32 v3, v4, 6, v3
v_bfe_u32 v4, v1, 4, 1
v_lshl_add_u32 v3, v4, 5, v3
v_and_b32 v4, 3, v1
v_lshl_add_u32 v3, v4, 3, v3
v_add_u32 v3, s52, v3""")
    def dma(i, q):
        a(f"buffer_load_dwordx4 v2, s[12:15], s50 offen lds\ns_add_u32 s50, s50, {16*2752}")
    def consume(i, off):
        r = 4 * i
        a(f"ds_read_b64_tr_b16 a[{r}:{r+1}], v3 offset:{off}")
        a(f"ds_read_b64_tr_b16 a[{r+2}:{r+3}], v3 offset:{off+256}")
        return 2
    stage_tr(a, 32, 32, 1024, 's52', dma, consume)
    a(f"""s_lshl_b32 s37, s35, 17
s_lshl_b32 s33, {S_W}, 8
s_add_u32 s37, s37, s33
""")
    for z in range(4): a(f"s_xor_b32 s33, {S_W}, {z}\ns_lshl_b32 s33, s33, 15\ns_add_u32 s{40+z}, s37, s33")
    w_addr(a, 'v4', 'v5')
    load_w_perm8(a, 's[16:19]', 'v4', lambda z: (f's{40+z}', 0), 4, lambda tau, z: 128 + (tau*4 + z) * 4, 16)
    wait_init(30)
    xtile_setup(a, 'v4', 'v5', 's36')
    part_addr(a, 'v8', 'v9', TS)
    a(f"""s_lshl_b32 s37, {S_L}, 21
s_add_u32 s37, s37, {XNF}
s_lshl_b32 s33, {S_W}, 13
s_add_u32 s37, s37, s33
s_lshl_b32 s38, {S_L}, 21
s_add_u32 s38, s38, {FFRING}
s_lshl_b32 s33, s35, 10
s_add_u32 s38, s38, s33
s_lshl_b32 s33, {S_W}, 8
s_add_u32 s38, s38, s33
s_lshl_b32 s33, {S_L}, 7
s_add_u32 s33, s33, {F_FFD}
v_min_u32 v6, 19, v1
v_lshl_add_u32 v6, v6, 2, s33
; h exchange
v_add_u32 v14, {HB}, v4
s_lshl_b32 s33, {S_W}, 11
v_add_u32 v13, s33, v14
v_xor_b32 v14, 0x800, v13
v_xor_b32 v15, 0x1000, v13
v_xor_b32 v3, 0x1800, v13
s_mov_b32 s44, {FFR-1}
s_mov_b32 s22, 0
s_mov_b32 s20, -1
s_barrier""")
    a(f"s_lshl_b32 s33, s35, 2\ns_add_u32 s33, s33, {S_W}\ns_lshl_b32 s33, s33, 2\ns_lshl_b32 s34, {S_L}, 8\ns_add_u32 s33, s33, s34\ns_add_u32 s47, s33, {F_FFM}")
    a(f"s_add_u32 s46, s37, {XA - XNF - 32768}\ns_cmp_eq_u32 s35, 0\ns_cselect_b64 s[56:57], -1, 0")
    a(f"s_mul_i32 s33, s35, 6\ns_lshl_b64 s[60:61], 63, s33" if opt.get('FT', 1) == 1 else "s_mov_b64 s[60:61], -1")
    decide_mode(a, 'ffs_pre', vt=10)
    FR, H, HO, HF, PK, GS = 16, 48, 64, 72, 96, (128, 160)
    def flag_load(): a(f"buffer_load_dword v7, v6, {WS}, 0 offen sc1")
    for P, SC1 in (('fff', ''), ('ffs', ' sc1')):
        a(f"""{P}_pre:
v_lshlrev_b32 v11, 7, v1""")
        xq_addr(a, 'v12', 'v9', 's36')
        light_wait(a, 's37', 10, 31, sleep=4)
        a("s_mov_b64 s[64:65], -1")
        xfetch_loop(a, f"{P}_wait", 'v4', 'v12', 192, 64, 's36', 's37', 's33', 32)
        FCK = opt.get('FCK', 22)
        MARK = f"s_mov_b64 exec, 1\nbuffer_store_dword v2, off, {WS}, s47{SC1}\ns_mov_b64 exec, -1"
        epiB = lambda: half_epilogue(GS[1], PK + 16, 'v8', 's23', 's22', TS, 1, SC1) + [MARK]
        NH = 8
        for pend in (0, 1):
            if pend: a(f"{P}_topp:")
            upd = f"s_add_u32 s20, s20, 1\ns_cmp_lt_u32 s20, 63\ns_cselect_b32 s39, 32768, 0\ns_add_u32 s37, s37, s39\ns_xor_b32 s36, s36, 0x10000\ns_add_u32 s46, s46, 32768\nv_xor_b32 v12, 0x10000, v12"
            if not pend: a(upd + f"\n{P}_again:")
            a("s_barrier")
            tr_stamp(a, opt, 0)
            for k in range(6): a(f"ds_read_b128 v[{FR+4*k}:{FR+4*k+3}], v5 offset:{32*k}")
            if pend: a(upd)
            side = epiB() if pend else []
            def s1(k):
                f = FR + 4 * (k % 8)
                a(f"s_waitcnt lgkmcnt({min(31, k + 5) - k})")
                a(f"v_mfma_f32_32x32x16_bf16 v[{H}:{H+15}], a[{4*k}:{4*k+3}], v[{f}:{f+3}], {f'v[{H}:{H+15}]' if k else '0'}")
                if k + 6 < 32:
                    n = FR + 4 * ((k + 6) % 8)
                    a(f"ds_read_b128 v[{n}:{n+3}], v5 offset:{32*(k+6)}")
                if k == 1: a(f"v_max_u32 v9, v{FR}, v{f}")
                elif k % 2: a(f"v_max3_u32 v9, v9, v{FR + 4*((k-1) % 8)}, v{f}")
            for _ in range(7):
                if side: a(side.pop(0))
            for k in range(NH):
                s1(k)
                for _ in range(3):
                    if side: a(side.pop(0))
            assert not side
            if not pend: a(f"s_branch {P}_mid")
        a(f"{P}_mid:")
        for k in range(NH, 32):
            s1(k)
            if k == NH: a(f"s_mov_b64 exec, s[56:57]\nbuffer_load_dword v10, v11, {WS}, s46 offen sc1\ns_mov_b64 exec, -1")
            DK, DN = opt.get('FDK', []), opt.get('FDN', [2, 7, 12, 17, 22, 27, 32, 37])
            xd = lambda r: f"s_add_u32 m0, s36, {r*XROW}\ns_add_u32 s34, s37, {r*1024}\nbuffer_load_dwordx4 v4, {WS}, s34 offen sc1 lds"
            if k in DK: a(xd(DK.index(k)))
            if k == 21: flag_load(); a(f"s_sub_u32 s41, s20, {FFR - 1}\ns_add_u32 s40, s20, 2")
            if k == opt.get('FTK', 20): a(f"s_mov_b64 exec, s[60:61]\nbuffer_load_dword v10, v11, {WS}, s37 offen sc1\ns_mov_b64 exec, -1")
        a(f"v_cmp_eq_u32 vcc, -1, v9\nv_mov_b32 v2, s40\ns_cbranch_vccnz {P}_redo\nv_xor_b32 v5, 0x10000, v5")
        if 'FSP' not in opt: tr_stamp(a, opt, 4)
        for i in range(4):
            a(f"v_cvt_pk_bf16_f32 v{HO+i}, v{H+2*i}, v{H+2*i+1}\nv_cvt_pk_bf16_f32 v{HO+4+i}, v{H+8+2*i}, v{H+8+2*i+1}")
        for i in range(4): a(f"v_permlane16_swap_b32 v{HO+i}, v{HO+4+i}")
        for i in range(8): a(f"v_pk_max_i16 v{HO+i}, v{HO+i}, 0")
        tr_stamp(a, opt, 1)
        side = []
        n_ = 0
        adr = {1: 'v14', 2: 'v15', 3: 'v3'}
        order = [(0, 0), (1, 0)] + [(h_, z) for h_ in range(2) for z in (1, 2, 3)]
        lds = Cnt(a, 'lgkmcnt', 15)
        BP = opt.get('FBP', 10)
        XW = opt.get('FXW', 1)
        for bi, (half, z) in enumerate(order):
            fr = HO + 4*half if z == 0 else HF + 4*(bi - 2)
            if z: lds.wait(bi)
            for tau in range(8):
                b = 128 + (tau*4 + z) * 4
                A = GS[half] + 4*tau
                a(f"v_mfma_f32_16x16x32_bf16 v[{A}:{A+3}], v[{fr}:{fr+3}], a[{b}:{b+3}], {'0' if z==0 else f'v[{A}:{A+3}]'}")
                if n_ == opt.get('FSP'): tr_stamp(a, opt, 4)
                if n_ == 0: a(f"ds_write_b128 v13, v[{HO}:{HO+3}]")
                if n_ == 3: a(f"ds_write_b128 v13, v[{HO+4}:{HO+7}] offset:1024")
                if n_ == BP: a("s_waitcnt lgkmcnt(0)\ns_barrier")
                if BP <= n_ < BP + 6:
                    h2, z2 = order[n_ - BP + 2]
                    lds.issue(f"ds_read_b128 v[{HF+4*(n_-BP)}:{HF+4*(n_-BP)+3}], {adr[z2]} offset:{1024*h2}", n_ - BP + 2)
                if n_ in DN: a(xd(len(DK) + DN.index(n_)))
                if n_ == 38: a("s_waitcnt vmcnt(8)\nv_cmp_gt_i32 vcc, s41, v7")
                if n_ == 40: a(f"s_cbranch_vccnz {P}_ringwait\n{P}_ringok:")
                if n_ == 41:
                    side = half_epilogue(GS[0], PK, 'v8', 's23', 's22', TS, 0, SC1)
                if n_ == 58: side += ["s_waitcnt vmcnt(4)\n" + xq_read('v12', 192)]
                if n_ == 62: side += ["s_waitcnt lgkmcnt(0)"] + xq_cmp(192, 64)
                if n_ in (19, 20, 21):
                    b_ = Asm(); ring_next(b_, 's44', 's22', 's23', 's38', 19, FFR)
                    a.items.extend(b_.items[{19: 0, 20: 3, 21: 5}[n_]:{19: 3, 20: 5, 21: 7}[n_]])
                shadow16(a, side)
                n_ += 1
        tr_stamp(a, opt, 2)
        for x in side: a(x)
        if opt.get('trace'):
            tr_stamp(a, opt, 3)
            tr_flush(a, opt, 's20', range(5), 240, wait=True)
        eb = epiB()
        a(f"s_cmp_eq_u32 s20, 63\ns_cbranch_scc1 {P}_last")
        a(f"s_cmp_lg_u64 s[64:65], 0\ns_cbranch_scc0 {P}_topp\n{P}_last:")
        for x in eb: a(x)
        if opt.get('trace'):
            tr_stamp(a, opt, 3)
            tr_flush(a, opt, 's20', [3], 240, wait=True)
        a(f"""s_cmp_eq_u32 s20, 63
s_cbranch_scc0 {P}_wait
s_branch ffn_fin""")
        xredo(a, f"{P}_redo", f"{P}_again", 'v4', 's36', 's37', 's39', 's33', 's34', 39)
        a(f"{P}_ringwait:")
        spin_dec(a, 33)
        flag_load()
        a(f"""s_waitcnt vmcnt(0)
v_cmp_gt_i32 vcc, s41, v7
s_cbranch_vccz {P}_ringok
s_sleep 1
s_branch {P}_ringwait""")
    a("ffn_fin:")
    tr_dump(a, opt, 5, 240, 10)
    a("s_branch the_end")
    S1, S2, R, X, U, D = 16, 20, 24, 32, 40, 64
    a("ffn_R:\ns_sub_u32 s35, s35, 11")
    if not opt.get('noinit'):
        a(f"""s_mul_i32 s33, {S_L}, 5
s_add_u32 s33, s33, s35
s_mul_i32 s33, s33, {FLG_SIZE//NZERO}
v_lshlrev_b32 v2, 4, v0
v_mov_b32 v4, 0
v_mov_b32 v5, 0
v_mov_b32 v6, 0
v_mov_b32 v7, 0""")
        for i in range(FLG_SIZE // NZERO // 4096):
            a(f"buffer_store_dwordx4 v[4:7], v2, {WS}, s33 offen sc1\ns_add_u32 s33, s33, 4096")
        a(f"""s_waitcnt vmcnt(0)
s_barrier
s_cmp_eq_u32 {S_W}, 0
s_cbranch_scc0 ffr_nz
s_mov_b64 exec, 1
v_mov_b32 v4, 1
buffer_atomic_add v4, off, {DBG}, 0 offset:{D_INIT*4} sc1
s_mov_b64 exec, -1
ffr_nz:""")
    a(f"""s_mul_i32 s46, {S_W}, 5
s_add_u32 s46, s46, s35
s_add_u32 s46, s46, 20
s_lshl_b32 s35, s35, 2
s_add_u32 s35, s35, {S_W}
s_sub_u32 s47, s46, s35
s_lshl_b32 s48, s47, 14
s_lshl_b32 s49, s47, 10
s_cmp_eq_u32 {S_L}, 0
s_cselect_b32 s12, s{P_WS}, s{P_OUT}
s_cselect_b32 s13, s{P_WS+1}, s{P_OUT+1}
s_mov_b32 s14, {hex(2*MB)}
s_cselect_b32 s14, {hex(WS_SIZE)}, s14
s_mov_b32 s15, 0x20000
s_cselect_b32 s37, {XF}, 0
s_lshl_b32 s33, s35, 10
s_add_u32 s37, s37, s33
s_lshl_b32 s34, {S_L}, 21
s_add_u32 s36, s34, s33
s_add_u32 s36, s36, {XA - 32768}
s_lshl_b32 s33, s35, 14
s_lshl_b32 s34, {S_L}, 21
s_add_u32 s38, s33, s34
s_add_u32 s38, s38, {FFRING}
s_lshl_b32 s33, {S_L}, 7
s_lshl_b32 s34, s35, 2
s_add_u32 s33, s33, s34
s_add_u32 s40, s33, {F_FFD}
s_lshl_b32 s34, s35, 7
s_add_u32 s39, s34, {F_FFR}
s_lshl_b32 s33, {S_L}, 8
s_add_u32 s41, s33, {F_FFM}
v_lshrrev_b32 v6, 4, v1
v_lshlrev_b32 v6, 10, v6
v_and_b32 v7, 15, v1
v_lshl_add_u32 v6, v7, 4, v6
v_lshlrev_b32 v7, 4, v1
s_mov_b32 s43, {FFR-1}
s_mov_b32 s22, 0
s_lshl_b32 s33, s47, 7
v_mul_lo_u32 v2, s33, v1
v_mov_b32 v8, 0
v_cmp_gt_u32 vcc, 48, v1
v_cndmask_b32_e64 v5, 0, -1, vcc
v_mov_b32 v4, 0x40000000
v_cndmask_b32 v4, v4, v6, vcc
v_min_u32 v3, 43, v1
v_lshlrev_b32 v3, 2, v3
s_mov_b32 s20, 0""")
    selectors(a, S1, S2, 10)
    wait_init(34)
    a("s_mov_b32 s42, 1")
    decide_mode(a, 'ffr_sel', vt=10)
    a(f"""s_mov_b32 s42, 0
ffr_sel:
v_mov_b32 v9, 0
s_cmp_lt_u32 s46, 32
s_cselect_b32 s33, 2, 0
s_add_u32 s33, s33, {S_L}""")
    a("s_mov_b32 s54, s33\ns_add_u32 s55, s36, 32768")
    a("v_lshlrev_b32 v11, 7, v1\ns_cmp_lt_u32 s46, 32\ns_cselect_b32 s56, s48, 0\ns_add_u32 s56, s56, s38")
    for sl in range(FFR):
        for sb in ('s38', 's56'):
            for q in range(2): a(f"s_add_u32 s33, {sb}, {sl*MB//2 + q*8192}\nbuffer_load_dword v10, v11, {WS}, s33 offen sc1")
    light_wait(a, 's55', 10, 38, sleep=16)
    for v_ in (1, 2, 3): a(f"s_cmp_eq_u32 s54, {v_}\ns_cbranch_scc1 ffr{v_}_loop")
    for v_ in range(4):
        L0, NT, P = (v_ & 1) == 0, 1 + (v_ >> 1), f"ffr{v_}"
        NST = NT * (2 if L0 else 1)
        OO = (48, 56)
        def loads(t):
            b = Asm()
            b(f"buffer_load_dwordx4 v[{X+4*t}:{X+4*t+3}], v7, {WS}, {'s51' if t else 's36'} offen sc1")
            reduce_loads(b, 3, ['v6', 'v6', 'v4'], 's50' if t else 's23', D + 48*t)
            return list(b.items)
        a(f"""{P}_loop:
s_add_u32 s21, s20, 1
s_add_u32 s45, s20, 2
v_cmp_gt_u32 vcc, s45, v9""")
        ring_next(a, 's43', 's22', 's23', 's38', 19, FFR)
        a(f"""s_add_u32 s36, s36, 32768
s_add_u32 s50, s23, s48
s_add_u32 s51, s36, s49
s_cbranch_vccz {P}_g
{P}_p:
buffer_load_dword v9, v3, {WS}, s41 offen sc1""")
        spin_dec(a, 37)
        a(f"""s_waitcnt vmcnt(0)
v_cmp_gt_u32 vcc, s45, v9
s_cbranch_vccnz {P}_p
{P}_g:""")
        tr_stamp(a, opt, 0)
        a.items.extend(loads(0))
        rest = loads(1) if NT == 2 else []
        def more(n):
            c = 0
            while rest and c < n:
                it = rest.pop(0); a.items.append(it)
                if it[1].kind == 'vmem': c += 1
            return c
        ahead = more(opt.get('FRA', 4))
        a(f"s_sub_u32 s44, s37, {XF - (XN + 2*MB)}\ns_add_u32 s52, s44, s49\ns_add_u32 s53, s37, s49")
        for t in range(NT):
            a(f"s_waitcnt vmcnt({12 + (ahead if t == 0 else 0)})\nv_cmp_eq_u32 vcc, -1, v{X+4*t}")
            swap4(a, X + 4*t)
            unpack8(a, U, X + 4*t)
            a(f"s_cbranch_vccnz {P}_p")
            reduce_sum(a, 3, D + 48*t, S1, S2, R, 10, 's22', ahead if t == 0 else 0, lastmask='v5', cin=U, mid=lambda i: more(1))
            assert not rest
            a(f"s_cbranch_vccnz {P}_p")
            if t == NT - 1:
                tr_stamp(a, opt, 1)
                done_store(a, 's21', 13, 'v8', 's40', 's42', 1)
                a(f"buffer_load_dword v9, v3, {WS}, s41 offen sc1")
                if t and L0: a(f"buffer_store_dwordx4 v[{OO[0]+4}:{OO[0]+7}], v7, {WS}, s44 offen sc1")
            o = OO[t]
            if L0: layernorm8f(a, R, o + 4, 12, keep=o)
            else:
                for i in (0, 2, 1, 3): a(f"v_cvt_pk_bf16_f32 v{o+i}, v{R+2*i}, v{R+2*i+1}")
                swap4(a, o)
        if L0: a(f"buffer_store_dwordx4 v[{OO[NT-1]+4}:{OO[NT-1]+7}], v7, {WS}, {'s52' if NT == 2 else 's44'} offen sc1")
        for t in range(NT):
            a(f"buffer_store_dwordx4 v[{OO[t]}:{OO[t]+3}], v7, s[12:15], {'s53' if t else 's37'} offen{' sc1' if L0 else ''}")
        tr_stamp(a, opt, 2)
        tr_flush(a, opt, 's20', range(3), 240, wait=True)
        a(f"""s_add_u32 s37, s37, 32768
s_mov_b32 s20, s21
s_waitcnt vmcnt({NST})
s_cmp_lt_u32 s20, 64
s_cbranch_scc1 {P}_loop""")
        tr_dump(a, opt, 3, 240, 10)
        diag(a, opt, 6, 10)
        a("s_branch the_end")
```

```python
from common import *

def ln1_and_init(a, opt):
    srd(a, 12, P_X, hex(2*MB))
    a(f"""s_lshl_b32 s31, {S_L}, 5
s_add_u32 s31, s31, {S_I}
s_lshl_b32 s31, s31, 2
s_add_u32 s36, s31, {S_W}
s_lshl_b32 s37, s36, 10
v_lshlrev_b32 v2, 4, v1""")
    for p in range(8):
        a(f"s_add_u32 s31, s37, {p*256*1024}\nbuffer_load_dwordx4 v[{16+4*p}:{19+4*p}], v2, s[12:15], s31 offen")
    NW = 0
    if NW: warm_weights(a, 2)
    for p in range(8):
        a(f"s_waitcnt vmcnt({7 + NW})")
        for i in range(4):
            a(f"v_lshlrev_b32 v{4+2*i}, 16, v{16+4*p+i}\nv_and_b32 v{5+2*i}, 0xffff0000, v{16+4*p+i}")
        layernorm8(a, 4, 16+4*p, 12)
        a(f"v_min_u32 v{16+4*p}, -2, v{16+4*p}")
        a(f"s_add_u32 s31, s37, {XN + p*256*1024}\nbuffer_store_dwordx4 v[{16+4*p}:{19+4*p}], v2, {WS}, s31 offen sc1")
    if not opt.get('noinit'): wait_dbg(a, D_INIT*4, NZERO, 5, vt=4)
    a(f"""s_waitcnt vmcnt(0)
s_lshl_b32 s31, s36, 7
s_add_u32 s31, s31, {F_LN1}
v_mov_b32 v4, 8
v_mov_b32 v5, 0
s_mov_b64 exec, 1
buffer_store_dword v4, v5, {WS}, s31 offen sc1
s_mov_b64 exec, -1""")
    diag(a, opt, 9, 8)
    if opt.get('noinit'): return
    a(f"""v_lshlrev_b32 v2, 4, v0
v_mov_b32 v4, 0
v_mov_b32 v5, 0
v_mov_b32 v6, 0
v_mov_b32 v7, 0""")
    def fill(lst):
        for base, stride, size in lst:
            per = size // 32
            a(f"""s_mul_i32 s31, {S_L}, {stride}
s_mul_i32 s32, {S_I}, {per}
s_add_u32 s31, s31, s32
s_add_u32 s31, s31, {base}""")
            for i in range(per // 4096):
                a(f"buffer_store_dwordx4 v[4:7], v3, {WS}, s31 offen sc1\ns_add_u32 s31, s31, 4096")
    def signal(idx, name, per_layer=True):
        a(f"""s_waitcnt vmcnt(0)
s_barrier
s_cmp_eq_u32 {S_W}, 0
s_cbranch_scc0 {name}
s_mul_i32 s31, {S_L}, {4 if per_layer else 0}
s_mov_b64 exec, 1
v_mov_b32 v8, 1
buffer_atomic_add v8, off, {DBG}, s31 offset:{idx*4} sc1
s_mov_b64 exec, -1
{name}:""")
    a("v_mov_b32 v3, v2")
    fill([(CRING, MB, CMEM_OFF)])
    srd(a, 12, P_MEM0, 8192)
    a(f"""s_cmp_lt_u32 {S_I}, 8
s_cbranch_scc0 init_nomem
v_mov_b32 v8, -1
v_mov_b32 v9, -1
v_mov_b32 v10, -1
v_mov_b32 v11, -1
s_cmp_lt_u32 {S_I}, 2
s_cbranch_scc0 init_poison
v_bfe_u32 v12, v0, 2, 2
v_lshlrev_b32 v12, 11, v12
v_and_b32 v13, 1, v0
v_lshl_add_u32 v12, v13, 10, v12
v_lshrrev_b32 v13, 4, v0
v_lshl_add_u32 v12, v13, 5, v12
v_bfe_u32 v13, v0, 1, 1
v_lshl_add_u32 v12, v13, 2, v12
s_lshl_b32 s31, {S_I}, 9
buffer_load_dword v8, v12, s[12:15], s31 offen
buffer_load_dword v9, v12, s[12:15], s31 offen offset:8
buffer_load_dword v10, v12, s[12:15], s31 offen offset:16
buffer_load_dword v11, v12, s[12:15], s31 offen offset:24
s_waitcnt vmcnt(0)
v_min_u32 v8, -2, v8
v_min_u32 v9, -2, v9
v_min_u32 v10, -2, v10
v_min_u32 v11, -2, v11
v_bfe_u32 v2, v0, 3, 4
v_lshlrev_b32 v2, 8, v2
v_lshrrev_b32 v12, 7, v0
v_lshl_add_u32 v2, v12, 7, v2
v_and_b32 v12, 7, v0
v_lshl_add_u32 v2, v12, 4, v2
init_poison:
s_lshl_b32 s31, {S_L}, 20
s_lshl_b32 s32, {S_I}, 12
s_add_u32 s31, s31, s32
s_add_u32 s31, s31, {CRING + CMEM_OFF}
buffer_store_dwordx4 v[8:11], v2, {WS}, s31 offen sc1
init_nomem:""")
    signal(D_CINIT, 'init_d1')
    diag(a, opt, 10, 8)
    fill([(AORING, 4*MB, (opt.get('AOR', AOR)+1)*MB//2), (FFRING, 2*MB, FFR*MB//2)])
    a(f"""s_lshl_b32 s31, {S_L}, 5
s_add_u32 s31, s31, {S_I}
s_lshl_b32 s31, s31, 10
v_lshlrev_b32 v3, 2, v0
v_mov_b32 v4, -1""")
    for b in (XN + 2*MB, XNF, XNF + 2*MB, XA, XA + 2*MB, XF):
        a(f"s_add_u32 s32, s31, {b}\nbuffer_store_dword v4, v3, {WS}, s32 offen sc1")
    signal(D_GINIT, 'init_d2', False)
    diag(a, opt, 11, 8)
```

```python
from common import *

XROW = 1040
def xtile_setup(a, vga, vrd, s_m0):
    a(f"""v_lshlrev_b32 {vga}, 4, v1
v_and_b32 {vrd}, 31, v1
v_mul_u32_u24 {vrd}, {XROW}, {vrd}
v_lshrrev_b32 v2, 5, v1
v_lshl_add_u32 {vrd}, v2, 4, {vrd}
s_mul_i32 {s_m0}, {S_W}, {8*XROW}""")

def xtile_dma(a, vga, s_m0, s_src, st):
    for r in range(8):
        a(f"s_add_u32 m0, {s_m0}, {r*XROW}")
        if r: a(f"s_add_u32 {st}, {s_src}, {r*1024}")
        a(f"buffer_load_dwordx4 {vga}, {WS}, {st if r else s_src} offen sc1 lds")

def xld(XS, r, vga, s0, s1):
    return f"buffer_load_dwordx4 v[{XS+4*r}:{XS+4*r+3}], {vga}, {WS}, {s0 if r < 4 else s1} offen offset:{1024*(r&3)} sc1"
def xwr(XS, r, vw):
    return f"ds_write_b128 {vw}, v[{XS+4*r}:{XS+4*r+3}] offset:{r*XROW}"
def xblock(a, XS, vga, vw, s0, s1):
    a(f"s_add_u32 {s1}, {s0}, 4096")
    for r in range(8): a(xld(XS, r, vga, s0, s1))
    for r in range(8): a(f"s_waitcnt vmcnt({7-r})\n" + xwr(XS, r, vw))

def role_qkv(a, opt, g0):
    a(f"""role_qkv:
s_sub_u32 s20, {S_G}, {g0}
s_lshl_b32 s20, s20, 4
s_and_b32 s31, {S_I}, 15
s_add_u32 s20, s20, s31
s_lshr_b32 {S_L}, {S_I}, 4""")
    if 'qkv_layers' in opt:
        for l in (0, 1):
            if l not in opt['qkv_layers']: a(f"s_cmp_eq_u32 {S_L}, {l}\ns_cbranch_scc1 the_end")
    a(f"""s_cmp_lt_u32 s20, 32
s_cselect_b32 s12, s{P_WK}, s{P_WQ}
s_cselect_b32 s13, s{P_WK+1}, s{P_WQ+1}
s_cselect_b32 s16, s{P_WV}, s{P_WQ}
s_cselect_b32 s17, s{P_WV+1}, s{P_WQ+1}
s_mov_b32 s14, 0x400000
s_mov_b32 s15, 0x20000
s_mov_b32 s18, 0x400000
s_mov_b32 s19, 0x20000
s_sub_u32 s31, s20, 32
s_lshl_b32 s31, s31, 1
s_add_u32 s32, s31, 1
s_cmp_lt_u32 s20, 32
s_cselect_b32 s46, s20, s31
s_cselect_b32 s47, s20, s32
s_cselect_b32 s48, 8192, 0
s_cselect_b32 s49, 16384, 0
s_lshl_b32 s31, {S_W}, 6
s_lshl_b32 s50, s46, 8
s_add_u32 s50, s50, s31
s_lshl_b32 s51, s47, 8
s_add_u32 s51, s51, s31
v_lshrrev_b32 v2, 4, v1
v_lshlrev_b32 v2, 7, v2
v_bfe_u32 v3, v1, 2, 2
v_add_u32 v2, v2, v3
v_lshlrev_b32 v2, 13, v2
v_and_b32 v4, 3, v1
v_lshl_add_u32 v2, v4, 4, v2
s_mul_i32 s52, {S_W}, 40960
v_lshrrev_b32 v5, 2, v1
v_lshlrev_b32 v5, 6, v5
v_add_u32 v5, s52, v5
v_lshl_add_u32 v10, v4, 3, v5
v_bfe_u32 v3, v1, 1, 1
v_lshl_add_u32 v3, v3, 5, v5
v_and_b32 v4, 1, v1
v_lshl_add_u32 v3, v4, 3, v3
s_cmp_lt_u32 s20, 32
s_cselect_b64 vcc, -1, 0
s_cselect_b32 s31, 32, 16
v_cndmask_b32 v10, v3, v10, vcc
v_add_u32 v11, s31, v10""")
    def dma(i, q):
        z = i // 32
        sr = 's50' if z == 0 else 's51'
        a(f"buffer_load_dwordx4 v2, {'s[12:15]' if z==0 else 's[16:19]'}, {sr} offen lds")
        a(f"s_add_u32 {sr}, {sr}, {4*8192}")
    def consume(i, off):
        z, kp, ul = i // 32, (i % 32) >> 1, i & 1
        for t in range(2):
            r = 128*z + (2*kp + t)*4 + 2*ul
            a(f"ds_read_b64_tr_b16 a[{r}:{r+1}], {'v3' if z == 0 else f'v{10+t}'} offset:{off + (16*t if z == 0 else 0)}")
        return 2
    stage_tr(a, 64, 40, 1024, 's52', dma, consume)
    a(f"""v_lshlrev_b32 v4, 4, v1
v_bfe_u32 v2, v1, 3, 1
v_and_b32 v3, 7, v1
v_lshl_add_u32 v3, v2, 4, v3
v_mul_u32_u24 v5, {XROW}, v3
v_lshl_add_u32 v5, v2, 7, v5
v_lshrrev_b32 v2, 4, v1
v_lshl_add_u32 v5, v2, 8, v5
v_lshlrev_b32 v2, 9, v2
v_lshl_add_u32 v13, v3, 4, v2
v_and_b32 v3, 15, v1
v_lshl_add_u32 v14, v3, 4, v2
s_mul_i32 s36, {S_W}, {8*XROW}
s_lshr_b32 s31, {S_W}, 1
s_lshl_b32 s31, s31, 7
s_add_u32 s36, s36, s31""")
    a(f"""s_lshl_b32 s37, {S_L}, 21
s_add_u32 s37, s37, {XN}
s_lshl_b32 s31, {S_W}, 13
s_add_u32 s37, s37, s31
s_mul_i32 s31, {S_L}, {48*MB}
s_add_u32 s31, s31, {QKV}
s_lshl_b32 s32, {S_W}, 11
s_add_u32 s31, s31, s32
s_mul_i32 s38, s46, 24576
s_add_u32 s38, s38, s31
s_add_u32 s38, s38, s48
s_mul_i32 s39, s47, 24576
s_add_u32 s39, s39, s31
s_add_u32 s39, s39, s49
s_lshl_b32 s31, {S_L}, 5
s_add_u32 s31, s31, s20
s_lshl_b32 s31, s31, 9
s_add_u32 s31, s31, {F_KV}
s_lshl_b32 s32, {S_L}, 4
s_add_u32 s32, s32, s20
s_sub_u32 s32, s32, 32
s_lshl_b32 s32, s32, 9
s_add_u32 s32, s32, {F_Q}
s_cmp_lt_u32 s20, 32
s_cselect_b32 s43, s31, s32
s_lshl_b32 s31, {S_W}, 7
s_add_u32 s43, s43, s31
v_and_b32 v6, 7, v1
v_lshlrev_b32 v6, 7, v6
v_lshrrev_b32 v7, 3, v1
v_lshl_add_u32 v6, v7, 12, v6
s_lshl_b32 s31, {S_W}, 10
s_add_u32 s45, s31, {F_LN1}
v_mov_b32 v8, 0
s_mov_b32 s21, -1
s_barrier""")
    diag(a, opt, 7, 10)
    a(f"s_cmp_eq_u32 {S_L}, 0\ns_cbranch_scc1 qkv_l0")
    if not opt.get('noinit'):
        a(f"s_movk_i32 s33, {GINIT_N}")
        wait_dbg(a, D_GINIT*4, 's33', 3, vt=10, sleep=32)
    light_wait(a, 's37', 10, 6, sleep=4)
    a("s_branch qkv_go\nqkv_l0:")
    if not opt.get('noinit'): wait_dbg(a, D_INIT*4, NZERO, 3, vt=10)
    a("qkv_ln:")
    spin_dec(a, 5)
    a(f"""buffer_load_dword v7, v6, {WS}, s45 offen sc1
s_waitcnt vmcnt(0)
v_cmp_eq_u32 vcc, 0, v7
s_cbranch_vccnz qkv_ln
qkv_go:""")
    B0 = [XNF, XA, XN + 2*MB, XF]; B1 = [XNF + 2*MB, XA + 2*MB, 0x40000000, 0x40000000]
    a(f"s_lshl_b32 s33, {S_L}, 2\ns_add_u32 s33, s33, {S_W}\ns_mov_b32 s41, {B0[0]}")
    for i_, b in enumerate(B0 + B1):
        if i_: a(f"s_cmp_eq_u32 s33, {i_}\ns_cselect_b32 s41, {b}, s41")
    a("s_lshl_b32 s33, s20, 10\ns_add_u32 s41, s41, s33\nv_mov_b32 v100, -1\nv_mov_b32 v101, -1\nv_mov_b32 v102, -1\nv_mov_b32 v103, -1")
    xq_addr(a, 'v12', 'v9', 's36')
    a("s_mov_b64 s[64:65], -1")
    def publish(delta):
        a(f"""s_add_u32 s31, s21, {delta}
v_mov_b32 v9, s31
s_mov_b64 exec, 1
buffer_store_dword v9, v8, {WS}, s43 offen sc1
s_mov_b64 exec, -1""")
    a(f"s_cmp_lt_u32 s20, 32\ns_cbranch_scc0 qq_wait")
    FR, A0, A1, PK = 16, 48, 64, 80
    xo = lambda k: 8*XROW*(k & 1) + 16*(k >> 1)
    for var in ('kv', 'qq'):
        xfetch_loop(a, f"{var}_wait", 'v4', 'v12', 96, 64, 's36', 's37', 's31', 4)
        a(f"""{var}_top:
s_add_u32 s21, s21, 1
s_cmp_lt_u32 s21, 63
s_cselect_b32 s40, 32768, 0
s_cselect_b32 s42, 0, 0x40000000
s_add_u32 s41, s41, 32768
s_or_b32 s41, s41, s42
s_add_u32 s37, s37, s40
s_xor_b32 s36, s36, 0x10000
v_xor_b32 v12, 0x10000, v12
{var}_again:
s_barrier""")
        tr_stamp(a, opt, 0)
        lds = Cnt(a, 'lgkmcnt', 15)
        for k in range(6): lds.issue(f"ds_read_b128 v[{FR+4*k}:{FR+4*k+3}], v5 offset:{xo(k)}", k)
        a("v_mov_b32 v9, s21")
        def epi(z):
            A = (A0, A1)[z]
            nat = (var == 'kv' and z == 1)
            L = []
            for u in range(2):
                for i in range(4):
                    r0 = A + 8*(i >> 1) + 4*u + 2*(i & 1) if nat else A + 8*u + i
                    r1 = r0 + 1 if nat else r0 + 4
                    L.append(f"v_cvt_pk_bf16_f32 v{PK+8*z+4*u+i}, v{r0}, v{r1}")
                p = PK + 8*z + 4*u
                L.append(f"buffer_store_dwordx4 v[{p}:{p+3}], {'v14' if nat else 'v13'}, {WS}, {'s38' if z==0 else 's39'} offen offset:{(256 if nat else 128)*u} sc1")
            return L
        def mm(z, k, t):
            f = f"v[{FR+4*(k%8)}:{FR+4*(k%8)+3}]"; r = 128*z + (2*(k >> 1) + t)*4; w_ = f"a[{r}:{r+3}]"
            x, y = (f, w_) if (var == 'kv' and z == 1) else (w_, f)
            A = (A0, A1)[z] + 8*(k & 1) + 4*t
            a(f"v_mfma_f32_16x16x32_bf16 v[{A}:{A+3}], {x}, {y}, {f'v[{A}:{A+3}]' if k > 1 else '0'}")
        def split(z, k):
            flush()
            mm(z, k, 0); pend.append((len(a.items), z, k))
        pend = []
        def flush():
            if pend:
                pos, z, k = pend.pop()
                tail = a.items[pos:]; del a.items[pos:]
                h_ = min(len(tail), (len(tail) + 1) // 2)
                ex = [i for i, it in enumerate(tail) if it[0] == 'i' and it[1].text.startswith('s_mov_b64 exec')]
                if ex and ex[0] < h_ <= ex[-1]: h_ = ex[0]
                a.items.extend(tail[:h_]); mm(z, k, 1); a.items.extend(tail[h_:])
        m0 = lambda k: split(0, k)
        m1 = lambda k: split(1, k)
        PB, D0 = opt.get('QPB', 13), opt.get('QD0', 4)
        nd = 0
        for k in range(28):
            lds.wait(k)
            m0(k)
            if k + 6 < 32:
                n = FR + 4 * ((k + 6) % 8)
                lds.issue(f"ds_read_b128 v[{n}:{n+3}], v5 offset:{xo(k+6)}", k + 6)
            if k == 1: a(f"v_max_u32 v7, v{FR}, v{FR+4}")
            elif k % 2: a(f"v_max3_u32 v7, v7, v{FR + 4*((k-1) % 8)}, v{FR + 4*(k % 8)}")
            m1(k)
            if k >= D0 and (k - D0) % 2 == 0 and nd < 8:
                a(f"s_add_u32 m0, s36, {nd*XROW}\ns_add_u32 s31, s37, {nd*1024}\nbuffer_load_dwordx4 v4, {WS}, s31 offen sc1 lds"); nd += 1
            if k == PB:
                tr_stamp(a, opt, 1)
                a(f"s_waitcnt vmcnt({nd})")
                tr_stamp(a, opt, 2)
                a(f"s_mov_b64 exec, 1\nbuffer_store_dword v9, v8, {WS}, s43 offen sc1\ns_mov_b64 exec, -1")
        assert nd == 8
        lds.wait(31)
        m0(28); a(f"v_max3_u32 v7, v7, v{FR+16}, v{FR+20}\nv_max3_u32 v7, v7, v{FR+24}, v{FR+28}")
        m0(29); a("v_cmp_eq_u32 vcc, -1, v7")
        m0(30); m0(31); flush()
        a(f"s_cbranch_vccnz {var}_redo")
        e0 = epi(0)
        m1(28)
        for x in e0[:4]: a(x)
        m1(29)
        for x in e0[4:9]: a(x)
        m1(30)
        a(e0[9])
        m1(31)
        if var == 'kv': a(f"buffer_store_dwordx4 v[100:103], v4, {WS}, s41 offen sc1")
        flush()
        a(f"s_waitcnt vmcnt({3 if var == 'kv' else 2})\n" + xq_read('v12', 96))
        a("v_xor_b32 v5, 0x10000, v5")
        tr_stamp(a, opt, 3)
        for x in epi(1): a(x)
        a("s_waitcnt lgkmcnt(0)")
        for x in xq_cmp(96, 64): a(x)
        tr_stamp(a, opt, 4)
        tr_flush(a, opt, 's21', range(5), 240, wait=True)
        a(f"""s_add_u32 s38, s38, {32*24576}
s_add_u32 s39, s39, {32*24576}
s_cmp_eq_u32 s21, 63
s_cbranch_scc1 qkv_fin""")
        a(f"s_cmp_lg_u64 s[64:65], 0\ns_cbranch_scc0 {var}_top")
        xfetch_loop(a, f"{var}_w1", 'v4', 'v12', 96, 64, 's36', 's37', 's31', 4)
        a.items.pop()
        a("s_cselect_b32 s22, 1, 0")
        publish(1)
        a(f"s_cmp_eq_u32 s22, 1\ns_cbranch_scc1 {var}_wait\ns_branch {var}_top")
        xredo(a, f"{var}_redo", f"{var}_again", 'v4', 's36', 's37', 's40', 's31', 's32', 7)
    a("qkv_fin:\ns_waitcnt vmcnt(0)")
    publish(1)
    tr_dump(a, opt, 5, 240, 10)
    a("s_branch the_end")
```

```python
from asmlib import *
from layout import *

KNAME = "interleave_layers__memory_aug_recurrent_mem_tr__dense_activation_relu__prompt_kernel"
S_BUD = 's3'
S_W   = 's4'
S_G   = 's5'
S_I   = 's6'
S_L   = 's7'
WS    = 's[8:11]'
DBG   = 's[24:27]'
P_X, P_MEM0, P_WQ, P_WK, P_WV, P_WO, P_W1, P_W2, P_OUT, P_DBG, P_WS = 64, 66, 68, 70, 72, 74, 80, 82, 84, 86, 88
BUDGET = 400000

def srd(a, d, p, size):
    a(f"""s_mov_b32 s{d}, s{p}
s_mov_b32 s{d+1}, s{p+1}
s_mov_b32 s{d+2}, {size}
s_mov_b32 s{d+3}, 0x20000""")

def spin_dec(a, code):
    a(f"""s_sub_u32 {S_BUD}, {S_BUD}, 1
s_cbranch_scc1 bail_{code}""")
    a.bails.add(code)

def emit_bails(a):
    for c in sorted(a.bails):
        a(f"""bail_{c}:
s_movk_i32 s28, {c}
s_branch bail_common""")
    a(f"""bail_common:
s_mov_b64 exec, 1
s_lshl_b32 s29, {S_G}, 16
s_or_b32 s28, s28, s29
s_lshl_b32 s29, {S_I}, 8
s_or_b32 s28, s28, s29
s_lshl_b32 s29, {S_W}, 24
s_or_b32 s28, s28, s29
s_or_b32 s28, s28, 0x80000000
s_and_b32 s29, {S_G}, 7
s_lshl_b32 s29, s29, 2
s_add_u32 s29, s29, {D_ERR*4}
v_mov_b32 v2, s28
v_mov_b32 v3, s29
buffer_store_dword v2, v3, {DBG}, 0 offen sc1
s_waitcnt vmcnt(0)
s_endpgm""")

def allreduce(a, v, t, op='add'):
    for r in (8, 4, 2, 1):
        a(f"v_{op}_f32_dpp {v}, {v}, {v} row_ror:{r} row_mask:0xf bank_mask:0xf")
    a(f"""v_mov_b32 {t}, {v}
v_permlane16_swap_b32 {t}, {v}
v_{op}_f32 {v}, {v}, {t}
v_mov_b32 {t}, {v}
v_permlane32_swap_b32 {t}, {v}
v_{op}_f32 {v}, {v}, {t}""")

def layernorm8(a, x, o, t):
    s, u = f'v{t}', f'v{t+1}'
    a(f"""v_add_f32 {s}, v{x}, v{x+1}
v_add_f32 {u}, v{x+2}, v{x+3}
v_add_f32 {s}, {s}, v{x+4}
v_add_f32 {u}, {u}, v{x+5}
v_add_f32 {s}, {s}, v{x+6}
v_add_f32 {u}, {u}, v{x+7}
v_add_f32 {s}, {s}, {u}""")
    allreduce(a, s, u)
    a(f"v_mul_f32 {s}, 0x3b000000, {s}")
    for i in range(8): a(f"v_sub_f32 v{x+i}, v{x+i}, {s}")
    a(f"v_mul_f32 {s}, v{x}, v{x}\nv_mul_f32 {u}, v{x+1}, v{x+1}")
    for i in range(2, 8): a(f"v_fmac_f32 {s if i%2==0 else u}, v{x+i}, v{x+i}")
    a(f"v_add_f32 {s}, {s}, {u}")
    allreduce(a, s, u)
    a(f"""v_mov_b32 {u}, 0x3727c5ac
v_fmac_f32 {u}, 0x3b000000, {s}
v_rsq_f32 {u}, {u}""")
    for i in range(8): a(f"v_mul_f32 v{x+i}, v{x+i}, {u}")
    for i in range(4): a(f"v_cvt_pk_bf16_f32 v{o+i}, v{x+2*i}, v{x+2*i+1}")

def load_counters(a, v):
    a(f"""v_and_b32 v{v+1}, 15, v1
v_lshlrev_b32 v{v+1}, 2, v{v+1}
v_add_u32 v{v}, {D_TICK*4}, v{v+1}
v_cmp_gt_u32 vcc, 4, v{v+1}
v_cndmask_b32 v{v+1}, v{v}, v{v+1}, vcc
buffer_load_dword v{v}, v{v+1}, {DBG}, 0 offen sc1
s_waitcnt vmcnt(0)""".replace("v_cndmask_b32 v%d, v%d, 0, vcc" % (v+1, v+1), "v_cndmask_b32_e64 v%d, v%d, 0, vcc" % (v+1, v+1)))

def total_counters(a, v, sd, st):
    a(f"v_readlane_b32 s{sd}, v{v}, 0")
    for x in range(1, 16):
        a(f"v_readlane_b32 s{st}, v{v}, {x}\ns_nop 0\ns_add_u32 s{sd}, s{sd}, s{st}")

def prologue(a, opt):
    a(f"""s_cmp_ge_u32 s2, 256
s_cbranch_scc1 the_end
s_load_dwordx16 s[64:79], s[0:1], 0
s_load_dwordx8 s[80:87], s[0:1], 64
s_load_dwordx2 s[88:89], s[0:1], 96
s_memrealtime s[90:91]
s_getreg_b32 s30, hwreg(HW_REG_XCC_ID)
s_and_b32 s30, s30, 15
s_mov_b32 {S_BUD}, {BUDGET}
s_mov_b32 {S_G}, 0
s_mov_b32 {S_I}, 0
s_mov_b32 {S_L}, 0
v_lshrrev_b32 v1, 6, v0
v_readfirstlane_b32 {S_W}, v1
v_and_b32 v1, 63, v0""")
    if opt.get('fake_xcc') == 'all9': a("s_mov_b32 s30, 9")
    if opt.get('fake_xcc') == 'some':
        a("""s_and_b32 s31, s2, 0x19
s_cmp_eq_u32 s31, 0x19
s_cselect_b32 s30, 9, s30""")
    mp = opt.get('MAP', [0, 3, 4, 7, 1, 2, 5, 6])
    assert sorted(mp) == list(range(8))
    a(f"""s_lshl_b32 s31, s30, 2
s_lshr_b32 s31, {hex(sum(g << (4*x) for x, g in enumerate(mp)))}, s31
s_and_b32 s31, s31, 7
s_cmp_lt_u32 s30, 8
s_cselect_b32 s30, s31, s30""")
    a("s_waitcnt lgkmcnt(0)")
    srd(a, 8, P_WS, hex(WS_SIZE))
    srd(a, 24, P_DBG, 256)
    a(f"""s_cmp_eq_u32 {S_W}, 0
s_cbranch_scc0 pro_nt
s_lshl_b32 s31, s30, 2
s_cmp_lt_u32 s30, 1
s_cselect_b32 s32, {D_TICK0*4}, {D_TICK*4}
s_add_u32 s31, s31, s32
s_mov_b64 exec, 1
v_mov_b32 v2, s31
v_mov_b32 v3, 1
buffer_atomic_add v3, v2, {DBG}, 0 offen sc0 sc1
s_mul_i32 s31, s30, {opt.get('CALD1', 300)}
s_add_u32 s90, s90, s31
s_add_u32 s90, s90, {opt.get('CALD', 340)}
s_or_b32 s90, s90, 3
v_mov_b32 v8, s90
v_mov_b32 v9, 0
s_cmp_lt_u32 s30, 2
s_cbranch_scc0 pro_nc
s_lshl_b32 s31, s30, 2
buffer_atomic_cmpswap v[8:9], off, {DBG}, s31 offset:{D_CAL*4} sc0 sc1
pro_nc:
v_mov_b32 v2, 0
s_waitcnt vmcnt(0)
v_mov_b32 v9, s90
v_cmp_eq_u32 vcc, 0, v8
v_cndmask_b32 v8, v8, v9, vcc
ds_write2_b32 v2, v3, v8 offset1:1
s_mov_b64 exec, -1
pro_nt:
s_waitcnt vmcnt(0) lgkmcnt(0)
s_barrier
v_mov_b32 v2, 0
ds_read2_b32 v[8:9], v2 offset1:1""")
    a(f"""s_waitcnt lgkmcnt(0)
v_readfirstlane_b32 {S_I}, v8
v_readfirstlane_b32 s99, v9
s_barrier
s_mov_b32 {S_G}, s30
s_cmp_lt_u32 s30, 8
s_cselect_b32 s31, 32, 0
s_cmp_lt_u32 {S_I}, s31
s_cbranch_scc1 pro_done
s_sub_u32 s32, {S_I}, s31
pro_ov:""")
    spin_dec(a, 1)
    a("s_sleep 8")
    load_counters(a, 4)
    total_counters(a, 4, 33, 34)
    a("""s_cmp_lt_u32 s33, 256
s_cbranch_scc1 pro_ov""")
    for x in range(15):
        cap = 32 if x < 8 else 0
        a(f"""v_readlane_b32 s34, v4, {x}
s_nop 0
s_max_u32 s34, s34, {cap}
s_sub_u32 s34, s34, {cap}
s_cmp_gt_u32 s30, {x}
s_cselect_b32 s34, s34, 0
s_add_u32 s32, s32, s34""")
    for g in range(8):
        a(f"""v_readlane_b32 s34, v4, {g}
s_nop 0
s_min_u32 s34, s34, 32
s_mov_b32 {S_G}, {g}
s_add_u32 {S_I}, s34, s32
s_cmp_lt_u32 {S_I}, 32
s_cbranch_scc1 pro_done
s_sub_u32 s32, {S_I}, 32""")
    a("s_branch the_end\npro_done:")
    a(f"s_and_b32 {S_I}, {S_I}, 31\ns_and_b32 {S_G}, {S_G}, 7")

def decide_mode(a, slow_label, vt=4):
    L = a.newlabel('dm'); F = a.newlabel('dmf')
    a(f"{L}:")
    load_counters(a, vt)
    a(f"""v_readlane_b32 s34, v{vt}, {S_G}
s_nop 0
s_cmp_ge_u32 s34, 32
s_cbranch_scc1 {F}""")
    total_counters(a, vt, 33, 34)
    a(f"""s_cmp_ge_u32 s33, 256
s_cbranch_scc1 {slow_label}""")
    spin_dec(a, 2)
    a(f"s_sleep 8\ns_branch {L}\n{F}:")

def wait_dbg(a, idx_expr_sgpr_or_const, thr, code, vt=4, sleep=8):
    L = a.newlabel('wd'); D = a.newlabel('wdd')
    a(f"""v_mov_b32 v{vt+1}, {idx_expr_sgpr_or_const}
s_mov_b64 exec, 1
{L}:
buffer_load_dword v{vt}, v{vt+1}, {DBG}, 0 offen sc1
s_waitcnt vmcnt(0)
v_cmp_gt_u32 vcc, {thr}, v{vt}
s_cbranch_vccz {D}""")
    spin_dec(a, code)
    a(f"s_sleep {sleep}\ns_branch {L}\n{D}:\ns_mov_b64 exec, -1")

def stage_tr(a, n, slots, slot_bytes, s_m0base, dma, consume, per=1, hook=None):
    def issue(i):
        for q in range(per):
            a(f"s_add_u32 m0, {s_m0base}, {(i % slots) * slot_bytes + q * 1024}")
            dma(i, q)
    for i in range(min(slots, n)):
        issue(i)
        if hook and i == 1: hook()
    for i in range(n):
        out = min(n, i + slots) - (i + 1) if i == 0 else min(n, i - 1 + slots) - (i + 1)
        a(f"s_waitcnt vmcnt({max(out,0)*per})")
        nrd = consume(i, (i % slots) * slot_bytes)
        if i >= 1 and i - 1 + slots < n:
            a(f"s_waitcnt lgkmcnt({nrd})")
            issue(i - 1 + slots)
    a("s_waitcnt lgkmcnt(0)")

def tr_stamp(a, opt, k):
    if opt.get('trace'): a(f"{'s_memrealtime' if opt.get('rt') else 's_memtime'} s[{90+2*k}:{91+2*k}]")
def tr_flush(a, opt, lane, ks, vb, wait=False):
    if opt.get('trace'):
        if wait: a("s_waitcnt lgkmcnt(0)")
        a(f"s_mov_b32 s100, m0\ns_mov_b32 m0, {lane}")
        for k in ks: a(f"v_writelane_b32 v{vb+k}, s{90+2*k}, m0")
        a("s_mov_b32 m0, s100")
def tr_begin(a, opt):
    if opt.get('trace'):
        a(f"""s_memrealtime s[90:91]
s_memtime s[92:93]
s_lshl_b32 s94, {S_G}, 5
s_add_u32 s94, s94, {S_I}
s_lshl_b32 s94, s94, 2
s_add_u32 s94, s94, {S_W}
s_lshl_b32 s94, s94, 11
s_add_u32 s101, s94, {TRACE}
s_waitcnt lgkmcnt(0)
v_mov_b32 v2, s90
v_mov_b32 v3, s92
v_mov_b32 v4, 0
s_mov_b64 exec, 1
buffer_store_dwordx2 v[2:3], v4, {WS}, s101 offen offset:2040
s_mov_b64 exec, -1
s_waitcnt vmcnt(0)""")
def tr_dump(a, opt, n, vb, vt):
    if opt.get('trace'):
        a(f"v_lshlrev_b32 v{vt}, 2, v1")
        for k in range(n): a(f"buffer_store_dword v{vb+k}, v{vt}, {WS}, s101 offen offset:{256*k}")
        a(f"""s_memrealtime s[90:91]
s_memtime s[92:93]
s_waitcnt lgkmcnt(0) vmcnt(0)
v_mov_b32 v{vb}, s90
v_mov_b32 v{vb+1}, s92
s_mov_b64 exec, 1
buffer_store_dwordx2 v[{vb}:{vb+1}], v{vt}, {WS}, s101 offen offset:2032
s_mov_b64 exec, -1""")


class Cnt:
    def __init__(self, a, name, mx):
        self.a, self.name, self.mx, self.q, self.done = a, name, mx, [], 0
    def issue(self, text, tag=None):
        self.a(text); self.q.append(tag)
    def wait(self, *tags):
        idx = max(max(i for i, t in enumerate(self.q) if t == tag) for tag in tags)
        if idx < self.done: return
        n = len(self.q) - 1 - idx
        self.a(f"s_waitcnt {self.name}({min(n, self.mx)})")
        self.done = idx + 1 if n <= self.mx else len(self.q) - self.mx
    def all(self):
        self.a(f"s_waitcnt {self.name}(0)"); self.done = len(self.q)

def tr_direct(a, opt, seg, n, v1, v2):
    if opt.get('trace'):
        a("s_waitcnt lgkmcnt(0)")
        for k in range(n): a(f"v_writelane_b32 v{v1}, s{90+2*k}, {k}")
        a(f"""v_lshlrev_b32 v{v2}, 8, v1
s_lshl_b32 s100, {seg}, 2
s_add_u32 s100, s100, s101
s_mov_b64 exec, {(1<<n)-1}
buffer_store_dword v{v1}, v{v2}, {WS}, s100 offen
s_mov_b64 exec, -1""")

def layernorm8f(a, x, o, t, keep=None):
    P2 = lambda r: f"v[{r}:{r+1}]"
    a(f"""v_pk_add_f32 {P2(t)}, {P2(x)}, {P2(x+2)}
v_pk_mul_f32 {P2(t+2)}, {P2(x)}, {P2(x)}
v_pk_add_f32 {P2(t)}, {P2(t)}, {P2(x+4)}
v_pk_fma_f32 {P2(t+2)}, {P2(x+2)}, {P2(x+2)}, {P2(t+2)}
v_pk_add_f32 {P2(t)}, {P2(t)}, {P2(x+6)}
v_pk_fma_f32 {P2(t+2)}, {P2(x+4)}, {P2(x+4)}, {P2(t+2)}
v_add_f32 v{t}, v{t}, v{t+1}
v_pk_fma_f32 {P2(t+2)}, {P2(x+6)}, {P2(x+6)}, {P2(t+2)}
v_add_f32 v{t+2}, v{t+2}, v{t+3}""")
    a(f"""v_permlane32_swap_b32 v{t}, v{t+2}
v_add_f32 v{t}, v{t}, v{t+2}""")
    fill = []
    if keep is not None:
        fill = [f"v_cvt_pk_bf16_f32 v{keep+i}, v{x+2*i}, v{x+2*i+1}" for i in range(4)] + \
               [f"v_permlane16_swap_b32 v{keep}, v{keep+2}", f"v_permlane16_swap_b32 v{keep+1}, v{keep+3}", f"v_min_u32 v{keep}, -2, v{keep}"]
    for r in (8, 4, 2, 1):
        for _ in range(2):
            if fill: a(fill.pop(0))
        a(f"v_add_f32_dpp v{t}, v{t}, v{t} row_ror:{r} row_mask:0xf bank_mask:0xf")
    a(f"""v_mov_b32 v{t+1}, v{t}
v_permlane16_swap_b32 v{t+1}, v{t}
v_add_f32 v{t+2}, v{t}, v{t+1}
v_add_f32 v{t}, v{t}, v{t+1}
v_mov_b32 v{t+3}, 0x3727c5ac
v_permlane32_swap_b32 v{t}, v{t+2}
v_mul_f32 v{t}, 0x3b000000, v{t}
v_mul_f32 v{t+2}, 0x3b000000, v{t+2}
v_fma_f32 v{t+2}, -v{t}, v{t}, v{t+2}
v_max_f32 v{t+2}, 0, v{t+2}
v_add_f32 v{t+2}, v{t+2}, v{t+3}
v_rsq_f32 v{t+2}, v{t+2}""")
    for i in range(0, 8, 2): a(f"v_pk_add_f32 {P2(x+i)}, {P2(x+i)}, {P2(t)} op_sel_hi:[1,0] neg_lo:[0,1] neg_hi:[0,1]")
    for i in range(0, 8, 2): a(f"v_pk_mul_f32 {P2(x+i)}, {P2(x+i)}, {P2(t+2)} op_sel_hi:[1,0]")
    for i in (0, 2, 1, 3): a(f"v_cvt_pk_bf16_f32 v{o+i}, v{x+2*i}, v{x+2*i+1}")
    if keep is not None:
        a(f"v_permlane16_swap_b32 v{o}, v{o+2}\nv_permlane16_swap_b32 v{o+1}, v{o+3}\nv_min_u32 v{o}, -2, v{o}")

def interleave(a, fns):
    L = []
    for f in fns:
        b = Asm(); f(b); L.append(list(b.items))
    while any(L):
        for x in L:
            if x: a.items.append(x.pop(0))

def warm_weights(a, g0):
    srd(a, 40, P_WO, 0x400000)
    a(f"""s_lshl_b32 s33, {S_I}, 2
s_add_u32 s33, s33, {S_W}
s_lshl_b32 s33, s33, 15
v_lshlrev_b32 v60, 7, v1""")
    for k in range(4):
        a(f"buffer_load_dword v61, v60, s[40:43], s33 offen\ns_add_u32 s33, s33, 8192")

def diag(a, opt, word, vt):
    if opt.get('diag'):
        a(f"""s_memrealtime s[92:93]
s_waitcnt lgkmcnt(0)
v_mov_b32 v{vt}, s92
s_mov_b64 exec, 1
buffer_atomic_umax v{vt}, off, {DBG}, 0 offset:{word*4} sc1
s_mov_b64 exec, -1""")

GINIT_N = 96
def own_ring_init(a, s_off, nbytes, vt=10):
    S, E, D = a.newlabel('ri'), a.newlabel('rie'), a.newlabel('rid')
    a(f"""s_lshl_b32 s32, {S_W}, 10
v_lshl_add_u32 v3, v1, 4, s32
v_mov_b32 v4, 0
v_mov_b32 v5, 0
v_mov_b32 v6, 0
v_mov_b32 v7, 0""")
    decide_mode(a, S, vt)
    for md in ('', ' sc1'):
        if md: a(f"s_branch {E}\n{S}:")
        for i in range(nbytes // 4096):
            a(f"buffer_store_dwordx4 v[4:7], v3, {WS}, {s_off} offen{md}\ns_add_u32 {s_off}, {s_off}, 4096")
    a(f"""{E}:
s_waitcnt vmcnt(0)
s_barrier
s_cmp_eq_u32 {S_W}, 0
s_cbranch_scc0 {D}""")
    count_in(a, D_GINIT, GINIT_N)
    a(f"{D}:")
XROW = 1040
def xq_addr(a, v, t, s_m0):
    a(f"""v_lshrrev_b32 {v}, 3, v1
v_mul_u32_u24 {v}, {XROW}, {v}
v_and_b32 {t}, 7, v1
v_lshl_add_u32 {v}, {t}, 7, {v}
v_add_u32 {v}, {s_m0}, {v}""")
def xq_read(vaddr, V): return f"ds_read2_b32 v[{V}:{V+1}], {vaddr} offset1:16"
def xq_cmp(V, SM): return [f"v_max_u32 v{V}, v{V}, v{V+1}", f"v_cmp_eq_u32 s[{SM}:{SM+1}], -1, v{V}"]
def xfetch_loop(a, name, vga, vaddr, V, SM, s_m0, s_src, st, code):
    a(f"{name}:")
    spin_dec(a, code)
    for r in range(8):
        L = a.newlabel('xf')
        a(f"""s_and_b32 {st}, s{SM + (r >> 2)}, {hex(0xff << (8*(r & 3)))}
s_cbranch_scc0 {L}
s_add_u32 m0, {s_m0}, {r*XROW}
s_add_u32 {st}, {s_src}, {r*1024}
buffer_load_dwordx4 {vga}, {WS}, {st} offen sc1 lds
{L}:""")
    a("s_waitcnt vmcnt(0)\n" + xq_read(vaddr, V) + "\ns_waitcnt lgkmcnt(0)")
    for x in xq_cmp(V, SM): a(x)
    a(f"s_cmp_lg_u64 s[{SM}:{SM+1}], 0\ns_cbranch_scc1 {name}")
def xredo(a, name, back, vga, s_m0, s_src, s_adv, st, st2, code):
    a(f"{name}:")
    spin_dec(a, code)
    a(f"s_waitcnt lgkmcnt(0)\ns_barrier\ns_sub_u32 {st2}, {s_src}, {s_adv}")
    for r in range(8):
        a(f"s_xor_b32 {st}, {s_m0}, 0x10000\ns_add_u32 m0, {st}, {r*XROW}\ns_add_u32 {st}, {st2}, {r*1024}\nbuffer_load_dwordx4 {vga}, {WS}, {st} offen sc1 lds")
    a(f"s_waitcnt vmcnt(0)\ns_branch {back}")

def light_wait(a, s_src, vt, code, sleep=8):
    L = a.newlabel('lw')
    a(f"s_mov_b64 exec, 1\n{L}:")
    spin_dec(a, code)
    a(f"""s_sleep {sleep}
buffer_load_dword v{vt}, off, {WS}, {s_src} sc1
s_waitcnt vmcnt(0)
v_cmp_eq_u32 vcc, -1, v{vt}
s_cbranch_vccnz {L}
s_mov_b64 exec, -1""")

def sstamp(a, opt, k, vt):
    if opt.get('trace'):
        a(f"s_memrealtime s[92:93]\ns_waitcnt lgkmcnt(0)\nv_mov_b32 v{vt}, s92\ns_mov_b64 exec, 1\nbuffer_store_dword v{vt}, off, {WS}, s101 offset:{2000+4*k}\ns_mov_b64 exec, -1")

def hold(a, opt, key, code, vt, only_l1):
    n = opt.get(key, 0)
    if n and not opt.get('noinit'):
        L = a.newlabel('hold')
        if only_l1: a(f"s_cmp_eq_u32 {S_L}, 0\ns_cbranch_scc1 {L}")
        wait_dbg(a, D_WLD*4, n, code, vt=vt, sleep=32)
        a(f"{L}:")

def count_in(a, idx, target, soff='0', vt=8):
    L = a.newlabel('ci')
    a(f"""s_mov_b64 exec, 1
v_mov_b32 v{vt}, 1
buffer_atomic_add v{vt}, off, {DBG}, {soff} offset:{idx*4} sc0 sc1
s_waitcnt vmcnt(0)
v_cmp_eq_u32 vcc, {target - 1}, v{vt}
s_cbranch_vccz {L}
v_mov_b32 v{vt}, 1
buffer_store_dword v{vt}, off, {DBG}, {soff} offset:{(idx + DONE)*4} sc1
{L}:
s_mov_b64 exec, -1""")
```

```python
from common import *
SCL = 0x3e0293ee
SYNC = 0x4000
BIG = 0x40000000

def lds_spin(a, vaddr, vt, nwords, off, thr, code, sleep=1):
    L = a.newlabel('ls'); D = a.newlabel('lsd')
    a(f"{L}:")
    if nwords == 1:
        a(f"ds_read_b32 v{vt}, {vaddr} offset:{off}\ns_waitcnt lgkmcnt(0)")
    else:
        a(f"ds_read2_b32 v[{vt}:{vt+1}], {vaddr} offset0:{off//4} offset1:{off//4+1}\ns_waitcnt lgkmcnt(0)\nv_min_i32 v{vt}, v{vt}, v{vt+1}")
    a(f"v_cmp_gt_i32 vcc, {thr}, v{vt}\ns_cbranch_vccz {D}")
    spin_dec(a, code)
    if sleep: a(f"s_sleep {sleep}")
    a(f"s_branch {L}\n{D}:")

def load_w_perm8(a, srdname, vaddr, s_base, nz, dst, tmp):
    a("s_mov_b32 s58, 0x05040100\ns_mov_b32 s59, 0x07060302")
    NB = 4
    def issue(z):
        sb, off = s_base(z)
        for j in range(8):
            r = tmp + 32 * (z % NB) + 4 * j
            a(f"s_add_u32 s33, {sb}, {off + (8*(j >> 2) + (j & 3)) * 1024}")
            a(f"buffer_load_dwordx4 v[{r}:{r+3}], {vaddr}, {srdname}, s33 offen")
    for z in range(min(NB, nz)): issue(z)
    t = tmp + 32 * NB
    for z in range(nz):
        a(f"s_waitcnt vmcnt({8 * (min(nz, z + NB) - z - 1)})")
        b = tmp + 32 * (z % NB)
        for tau in range(8):
            for i in range(4):
                lo, hi = b + 8*i + (tau >> 1), b + 8*i + 4 + (tau >> 1)
                a(f"v_perm_b32 v{t + (i&1)}, v{hi}, v{lo}, {'s58' if tau % 2 == 0 else 's59'}")
                a(f"v_accvgpr_write_b32 a{dst(tau, z) + i}, v{t + (i&1)}")
        if z + NB < nz: issue(z + NB)

def w_addr(a, v, t):
    a(f"""v_bfe_u32 {v}, v1, 4, 1
v_lshlrev_b32 {v}, 14, {v}
v_lshrrev_b32 {t}, 5, v1
v_lshl_add_u32 {v}, {t}, 12, {v}
v_and_b32 {t}, 15, v1
v_lshl_add_u32 {v}, {t}, 4, {v}""")

def half_epilogue(G, PK, vaddr, s_slot, s_phase, TS, half, SC1):
    L = []
    for r in range(4):
        p = PK + 4 * r
        L += [f"v_cvt_pk_bf16_f32 v{p+i}, v{G+8*i+r}, v{G+8*i+4+r}" for i in range(4)]
        L += [f"v_and_or_b32 v{p}, v{p}, -2, {s_phase}", f"s_add_u32 s33, {s_slot}, {(16*half + r) * TS}",
              f"buffer_store_dwordx4 v[{p}:{p+3}], {vaddr}, {WS}, s33 offen{SC1}"]
    return L

def shadow16(a, L):
    if L and not L[0].startswith('v_'): a(L.pop(0))
    for _ in range(2):
        if L and L[0].startswith('v_'): a(L.pop(0))

def part_addr(a, v, t, TS):
    a(f"""v_lshrrev_b32 {v}, 4, v1
v_mul_u32_u24 {v}, {4*TS}, {v}
v_and_b32 {t}, 15, v1
v_lshl_add_u32 {v}, {t}, 4, {v}""")

def swap4(a, r):
    a(f"v_permlane16_swap_b32 v{r}, v{r+2}\nv_permlane16_swap_b32 v{r+1}, v{r+3}")

def selectors(a, S1, S2, t):
    a(f"""v_bfe_u32 v{t}, v1, 1, 3
v_and_b32 v{t+1}, 1, v1
v_lshlrev_b32 v{t+1}, 4, v{t+1}
v_mov_b32 v{t+2}, 0x3f80
v_lshlrev_b32 v{t+1}, v{t+1}, v{t+2}""")
    for q in range(4):
        a(f"v_cmp_eq_u32 vcc, {q}, v{t}\nv_cndmask_b32 v{S1+q}, 0, v{t+1}, vcc")
        a(f"v_cmp_eq_u32 vcc, {q+4}, v{t}\nv_cndmask_b32 v{S2+q}, 0, v{t+1}, vcc")

def reduce_loads(a, NQ, vaddrs, s_base, D, groups=(0, 1, 2, 3)):
    for q in range(NQ):
        if q: a(f"s_add_u32 s33, {s_base}, {4096*q}")
        for gi, G in enumerate(groups):
            r = D + 4 * (len(groups)*q + gi)
            a(f"buffer_load_dwordx4 v[{r}:{r+3}], {vaddrs[q]}, {WS}, {'s33' if q else s_base} offen offset:{256*G} sc1")

def reduce_sum(a, NQ, D, S1, S2, R, vt, s_phase, after, lastmask=None, groups=(0, 1, 2, 3), cin=None, mid=None):
    n = len(groups) * NQ
    started = set()
    for i in range(n):
        q, G = i // len(groups), groups[i % len(groups)]
        r = D + 4 * i
        if mid: after += mid(i)
        a(f"s_waitcnt vmcnt({n - 1 - i + after})")
        acc = R + 4 * (G & 1)
        first = acc not in started
        started.add(acc)
        S = S1 if G < 2 else S2
        c0 = '0' if cin is None else f'v[{cin + 4*(G&1)}:{cin + 4*(G&1) + 3}]'
        a(f"v_mfma_f32_16x16x32_bf16 v[{acc}:{acc+3}], v[{S}:{S+3}], v[{r}:{r+3}], {c0 if first else f'v[{acc}:{acc+3}]'}")
        tv = vt + 1 if (lastmask and q == NQ - 1) else vt
        if i == 0 or (lastmask and i == n - 4): a(f"v_xor_b32 v{tv}, {s_phase}, v{r}")
        else: a(f"v_bitop3_b32 v{tv}, v{tv}, {s_phase}, v{r} bitop3:0xf6")
    if lastmask: a(f"v_and_or_b32 v{vt}, v{vt+1}, {lastmask}, v{vt}")
    a(f"v_and_b32 v{vt}, 1, v{vt}\nv_cmp_ne_u32 vcc, 0, v{vt}")

def add_resid(a, R, X, O):
    for i in range(4):
        a(f"""v_lshlrev_b32 v{O}, 16, v{X+i}
v_and_b32 v{O+1}, 0xffff0000, v{X+i}
v_add_f32 v{R+2*i}, v{R+2*i}, v{O}
v_add_f32 v{R+2*i+1}, v{R+2*i+1}, v{O+1}""")
    for i in range(4): a(f"v_cvt_pk_bf16_f32 v{O+i}, v{R+2*i}, v{R+2*i+1}")

def add_resid2(a, R, U, O):
    for i in range(0, 8, 2): a(f"v_pk_add_f32 v[{R+i}:{R+i+1}], v[{R+i}:{R+i+1}], v[{U+i}:{U+i+1}]")
    for i in range(4): a(f"v_cvt_pk_bf16_f32 v{O+i}, v{R+2*i}, v{R+2*i+1}")

def unpack8(a, R, O):
    for i in range(4): a(f"v_lshlrev_b32 v{R+2*i}, 16, v{O+i}\nv_and_b32 v{R+2*i+1}, 0xffff0000, v{O+i}")

def flag_store(a, val, vt, vz, soff):
    a(f"""v_mov_b32 v{vt}, {val}
s_mov_b64 exec, 1
buffer_store_dword v{vt}, {vz}, {WS}, {soff} offen sc1
s_mov_b64 exec, -1""")

def done_store(a, val, vt, vz, soff, smode, ex):
    L = a.newlabel('dn'); E = a.newlabel('dne')
    a(f"""v_mov_b32 v{vt}, {val}
s_mov_b64 exec, {ex}
s_cmp_eq_u32 {smode}, 0
s_cbranch_scc0 {L}
buffer_store_dword v{vt}, {vz}, {WS}, {soff} offen
s_branch {E}
{L}:
buffer_store_dword v{vt}, {vz}, {WS}, {soff} offen sc1
{E}:
s_mov_b64 exec, -1""")

def phase_slot(a, s_seg, s_phase, s_slot, s_ring, shift):
    a(f"""s_lshr_b32 {s_phase}, {s_seg}, 1
s_and_b32 {s_phase}, {s_phase}, 1
s_xor_b32 {s_phase}, {s_phase}, 1
s_and_b32 {s_slot}, {s_seg}, 1
s_lshl_b32 {s_slot}, {s_slot}, {shift}
s_add_u32 {s_slot}, {s_slot}, {s_ring}""")

def ring_next(a, s_idx, s_phase, s_slot, s_ring, shift, R):
    a(f"""s_add_u32 {s_idx}, {s_idx}, 1
s_cmp_eq_u32 {s_idx}, {R}
s_cselect_b32 {s_idx}, 0, {s_idx}
s_cselect_b32 {s_slot}, 1, 0
s_xor_b32 {s_phase}, {s_phase}, {s_slot}
s_lshl_b32 {s_slot}, {s_idx}, {shift}
s_add_u32 {s_slot}, {s_slot}, {s_ring}""")

def role_ao(a, opt):
    AOR = opt.get('AOR', globals()['AOR'])
    if 'ao_layers' in opt:
        for l in (0, 1):
            if l not in opt['ao_layers']: a(f"s_cmp_eq_u32 {S_L}, {l}\ns_cbranch_scc1 the_end")
    a(f"""v_lshlrev_b32 v2, 2, v1
v_add_u32 v2, {SYNC}, v2
v_mov_b32 v3, 0
ds_write_b32 v2, v3
s_waitcnt lgkmcnt(0)
s_barrier
v_mov_b32 v2, {SYNC}
v_lshlrev_b32 v3, 4, v1
s_mov_b32 s20, 0
s_mov_b32 s44, {AOR-1}
s_mov_b32 s22, 0
s_cmp_eq_u32 {S_W}, 0
s_cbranch_scc1 ao_A
s_cmp_eq_u32 {S_W}, 3
s_cbranch_scc1 ao_R""")
    def wait_init(code):
        if not opt.get('noinit'):
            wait_dbg(a, (D_GINIT + DONE)*4, 1, code, vt=4)
    OHO = AOR * MB // 2
    hold(a, opt, 'HA', 41, 4, True)
    srd(a, 12, P_WO, 0x400000)
    a(f"""s_sub_u32 s36, {S_W}, 1
s_and_b32 s33, {S_I}, 1
s_lshl_b32 s33, s33, 1
s_add_u32 s45, s33, s36
s_lshl_b32 s33, s45, 8
s_lshl_b32 s37, {S_I}, 17
s_add_u32 s37, s37, s33
s_xor_b32 s46, s37, 0x20000
""")
    w_addr(a, 'v4', 'v5')
    load_w_perm8(a, 's[12:15]', 'v4', lambda z: ('s37' if z < 4 else 's46', (z & 3) * 32768), 8, lambda tau, z: (tau*8 + z) * 4, 16)
    sstamp(a, opt, 3, 8)
    wait_init(20)
    sstamp(a, opt, 4, 8)
    part_addr(a, 'v6', 'v7', 16384)
    a(f"""s_lshl_b32 s38, {S_L}, 22
s_add_u32 s38, s38, {AORING}
s_xor_b32 s33, {S_I}, 1
s_lshl_b32 s33, s33, 13
s_add_u32 s47, s38, s33
s_add_u32 s47, s47, {OHO}
s_lshr_b32 s33, {S_I}, 1
s_lshl_b32 s33, s33, 10
s_add_u32 s38, s38, s33
s_lshl_b32 s33, s45, 8
s_add_u32 s38, s38, s33
s_lshl_b32 s33, s36, 2
v_add_u32 v7, s33, v2
s_lshl_b32 s33, {S_L}, 7
s_add_u32 s39, s33, {F_AOD}
s_lshl_b32 s33, {S_L}, 9
s_lshl_b32 s34, s36, 7
s_add_u32 s33, s33, s34
s_lshl_b32 s34, {S_I}, 2
s_add_u32 s33, s33, s34
s_add_u32 s41, s33, {F_AOM}
s_lshl_b32 s33, {S_L}, 8
s_lshl_b32 s34, {S_I}, 3
s_add_u32 s33, s33, s34
s_lshl_b32 s34, s36, 2
s_add_u32 s33, s33, s34
s_add_u32 s42, s33, {F_AOP}
v_and_b32 v12, 31, v1
v_lshlrev_b32 v12, 2, v12""")
    a("""v_bfe_u32 v8, v1, 4, 1
v_lshlrev_b32 v8, 10, v8
v_lshrrev_b32 v11, 5, v1
v_lshl_add_u32 v8, v11, 9, v8
v_and_b32 v11, 15, v1
v_lshl_add_u32 v8, v11, 4, v8
v_mov_b32 v15, v8""")
    OFR, PK, GS, PFS = 16, 48, (80, 112), (144, 176)
    for f in range(8): a(f"v_mov_b32 v{PFS[0]+4*f}, 0")
    decide_mode(a, 'aows_top0')
    for P, SC1 in (('aowf', ''), ('aows', ' sc1')):
        def pld(PFR, f, s0, s1): return f"buffer_load_dwordx4 v[{PFR+4*f}:{PFR+4*f+3}], v15, {WS}, {s0 if (f&3) < 2 else s1} offen offset:{2048*(f&1) + 256*(f>>2)} sc1"
        def pchk(PFR):
            return [f"v_xor_b32 v14, s48, v{PFR}"] + [f"v_bitop3_b32 v14, v14, s48, v{PFR+4*z} bitop3:0xf6" for z in range(1, 8)] + \
                   ["v_and_b32 v14, 1, v14", "v_cmp_ne_u32 vcc, 0, v14"]
        RD = 1
        NM = 0 if RD else 1
        mark = (lambda h_: f"ds_write_b32 v7, v9 offset:{12 + 8*h_}") if RD else \
            (lambda h_: f"s_mov_b64 exec, 1\nbuffer_store_dword v9, off, {WS}, s41 offset:{256*h_}{SC1}\ns_mov_b64 exec, -1")
        for par in range(2):
            PFR, PFN, B = PFS[par], PFS[1-par], f"{P}{par}"
            a(f"{P}_top{par}:\ns_add_u32 s21, s20, 1")
            lds_spin(a, 'v2', 10, 1, 0, 's21', 21)
            tr_stamp(a, opt, 0)
            for f in range(8): a(f"ds_read_b128 v[{OFR+4*f}:{OFR+4*f+3}], v8 offset:{8192*par + 2048*(f&3) + 256*(f>>2)}")
            a(f"""s_lshr_b32 s48, s20, 1
s_and_b32 s48, s48, 1
s_xor_b32 s48, s48, 1
s_add_u32 s49, s47, {par*MB//4}
s_add_u32 s50, s49, 4096
s_add_u32 s52, s47, {(1-par)*MB//4}
s_add_u32 s53, s52, 4096
v_mov_b32 v9, s21""")
            ring_next(a, 's44', 's22', 's23', 's38', 19, AOR)
            side = [f"s_waitcnt vmcnt({8 + 2*NM})"] + pchk(PFR)
            n_ = 0
            PL = opt.get('APL', 12)
            for own, half in ((1, 0), (1, 1), (0, 0), (0, 1)):
                for T in range(4):
                    f = 4*half + T
                    if own: a(f"s_waitcnt lgkmcnt({7-f})")
                    fr = (OFR if own else PFR) + 4*f
                    z = T if own else 4 + T
                    for tau in range(8):
                        b = (tau*8 + z) * 4
                        A = GS[half] + 4*tau
                        a(f"v_mfma_f32_16x16x32_bf16 v[{A}:{A+3}], v[{fr}:{fr+3}], a[{b}:{b+3}], {'0' if z==0 else f'v[{A}:{A+3}]'}")
                        if n_ == PL: a(f"s_cbranch_vccnz {B}_ld\n{B}_lk:")
                        if n_ == 43: a(f"s_sub_u32 s40, s20, {AOR-1}")
                        if n_ == 56: a("ds_write_b32 v7, v9 offset:4")
                        DL = opt.get('ADL', 44)
                        if n_ == DL: a(f"buffer_load_dword v13, v12, {WS}, s39 offen sc1")
                        if n_ == 57: tr_stamp(a, opt, 3); side = ["s_waitcnt vmcnt(1)"] + pchk(PFR)
                        if n_ == 63: a(f"s_cbranch_vccnz {B}_pr\n{B}_pok:"); tr_stamp(a, opt, 4)
                        if n_ == 64: a(f"s_mov_b64 exec, 1\nbuffer_store_dword v9, off, {WS}, s42{SC1}\ns_mov_b64 exec, -1")
                        if n_ == 72: a(f"buffer_load_dword v11, v12, {WS}, s39 offen sc1")
                        if 76 <= n_ < 92 and n_ % 2 == 0: a(pld(PFN, (n_ - 76)//2, 's52', 's53'))
                        if n_ == 92: side = ["s_waitcnt vmcnt(10)", "v_cmp_gt_i32 vcc, s40, v13"]
                        if n_ == 94: a(f"s_and_b32 s33, vcc_lo, 0xffff")
                        if n_ == 95: a(f"s_cbranch_scc1 {B}_rw0\n{B}_rok0:")
                        if n_ == 97: side = half_epilogue(GS[0], PK, 'v6', 's23', 's22', 16384, 0, SC1) + [mark(0)]
                        if n_ == 123: side += [f"s_waitcnt vmcnt({12 + NM})", "v_cmp_gt_i32 vcc, s40, v11"]
                        if n_ == 126: a(f"s_cbranch_vccnz {B}_rw1\n{B}_rok1:")
                        shadow16(a, side)
                        n_ += 1
            assert not side
            tr_stamp(a, opt, 1)
            for x in half_epilogue(GS[1], PK + 16, 'v6', 's23', 's22', 16384, 1, SC1): a(x)
            a(mark(1))
            tr_stamp(a, opt, 2)
            tr_flush(a, opt, 's20', range(5), 240, wait=True)
            a("s_mov_b32 s20, s21")
        a(f"s_cmp_lt_u32 s20, 64\ns_cbranch_scc1 {P}_top0")
        tr_dump(a, opt, 5, 240, 10)
        a("s_branch the_end")
        for par in range(2):
            PFR, B = PFS[par], f"{P}{par}"
            for h_ in range(2):
                a(f"{B}_rw{h_}:")
                spin_dec(a, 29)
                a(f"""buffer_load_dword v13, v12, {WS}, s39 offen sc1
s_waitcnt vmcnt(0)
v_cmp_gt_i32 vcc, s40, v13
s_and_b32 s33, vcc_lo, {'0xffff' if h_ == 0 else '-1'}
s_cbranch_scc1 {B}_rw{h_}
s_branch {B}_rok{h_}""")
            a(f"{B}_ld:")
            for z in range(8): a(pld(PFR, z, 's49', 's50'))
            a(f"s_branch {B}_lk\n{B}_pr:")
            spin_dec(a, 19)
            for z in range(8): a(pld(PFR, z, 's49', 's50'))
            a("s_waitcnt vmcnt(0)")
            for x in pchk(PFR): a(x)
            a(f"s_cbranch_vccnz {B}_pr\ns_branch {B}_pok")
    S1, S2, R, X, O, D = 16, 20, 24, 32, 36, 64
    a("ao_R:")
    a(f"""s_cmp_eq_u32 {S_L}, 0
s_cselect_b32 s12, s{P_X}, s{P_WS}
s_cselect_b32 s13, s{P_X+1}, s{P_WS+1}
s_mov_b32 s14, {hex(WS_SIZE)}
s_cselect_b32 s14, {hex(2*MB)}, s14
s_mov_b32 s15, 0x20000
s_cselect_b32 s36, 0, {XF}
s_lshl_b32 s33, {S_I}, 10
s_add_u32 s36, s36, s33
s_lshl_b32 s34, {S_L}, 21
s_add_u32 s37, s34, s33
s_add_u32 s37, s37, {XA}
s_lshl_b32 s33, {S_I}, 14
s_lshl_b32 s34, {S_L}, 22
s_add_u32 s38, s34, s33
s_add_u32 s38, s38, {AORING}
s_lshl_b32 s33, {S_L}, 7
s_lshl_b32 s34, {S_I}, 2
s_add_u32 s33, s33, s34
s_add_u32 s40, s33, {F_AOD}
s_lshl_b32 s33, s33, 5
s_add_u32 s39, s33, {F_AOR}
s_lshl_b32 s33, {S_L}, 9
s_add_u32 s42, s33, {F_AOM}
s_lshr_b32 s33, {S_I}, 4
s_lshl_b32 s33, s33, 8
s_add_u32 s42, s42, s33
v_lshrrev_b32 v6, 4, v1
v_lshlrev_b32 v6, 10, v6
v_and_b32 v7, 15, v1
v_lshl_add_u32 v6, v7, 4, v6
v_lshlrev_b32 v7, 3, v1
v_mov_b32 v8, 0""")
    selectors(a, S1, S2, 10)
    wait_init(22)
    a("s_mov_b32 s41, 1")
    decide_mode(a, 'aor_top')
    a("s_mov_b32 s41, 0\nv_lshlrev_b32 v5, 9, v1") if False else a("s_mov_b32 s41, 0")
    U = 48
    resid = lambda: a(f"buffer_load_dwordx4 v[{X}:{X+3}], v3, s[12:15], s36 offen sc1")
    a(f"""aor_top:
s_lshr_b32 s33, {S_I}, 4
s_lshl_b32 s33, s33, 3
s_add_u32 s33, s33, {SYNC + 12}
v_mov_b32 v4, s33
s_cmp_eq_u32 {S_L}, 0
s_cselect_b64 s[46:47], 0, -1
s_mov_b32 s21, 1
v_lshlrev_b32 v5, 7, v1
s_lshl_b32 s33, {S_I}, 13
s_sub_u32 s34, s38, s33
s_add_u32 s34, s34, {AOR*MB//2}""")
    for sl in range(AOR):
        for q in range(2): a(f"s_add_u32 s33, s38, {sl*MB//2 + q*8192}\nbuffer_load_dword v10, v5, {WS}, s33 offen sc1")
    for sl in range(2): a(f"s_add_u32 s33, s34, {sl*MB//4}\nbuffer_load_dword v10, v5, {WS}, s33 offen sc1")
    a("s_waitcnt vmcnt(0)")
    lds_spin(a, 'v2', 10, 1, 0, 's21', 23, sleep=4)
    a("aor_rx:")
    spin_dec(a, 26)
    resid()
    a(f"""s_waitcnt vmcnt(0)
aor_loop:
v_cmp_eq_u32 vcc, -1, v{X}
s_add_u32 s21, s20, 1
s_and_b64 vcc, vcc, s[46:47]
s_cbranch_scc1 aor_rx""")
    swap4(a, X)
    unpack8(a, U, X)
    ring_next(a, 's44', 's22', 's23', 's38', 19, AOR)
    a(f"""s_cmp_lt_u32 s20, 63
s_cselect_b32 s33, 32768, 0
s_add_u32 s36, s36, s33""")
    lds_spin(a, 'v4', 12, 2, 0, 's21', 24)
    a("aor_p:")
    spin_dec(a, 25)
    tr_stamp(a, opt, 0)
    reduce_loads(a, 4, ['v6']*4, 's23', D)
    reduce_sum(a, 4, D, S1, S2, R, 10, 's22', 0, cin=U)
    a("s_cbranch_vccnz aor_p")
    tr_stamp(a, opt, 1)
    done_store(a, 's21', 9, 'v8', 's40', 's41', 1)
    resid()
    a(f"s_sub_u32 s33, s37, {XA - XNF}")
    layernorm8f(a, R, O+4, 12, keep=O)
    a(f"""buffer_store_dwordx4 v[{O+4}:{O+7}], v3, {WS}, s33 offen sc1
buffer_store_dwordx4 v[{O}:{O+3}], v3, {WS}, s37 offen sc1""")
    tr_stamp(a, opt, 2)
    a("s_add_u32 s37, s37, 32768")
    tr_flush(a, opt, 's20', range(3), 240, wait=True)
    a(f"""s_mov_b32 s20, s21
s_waitcnt vmcnt(2)
s_cmp_lt_u32 s20, 64
s_cbranch_scc1 aor_loop""")
    tr_dump(a, opt, 3, 240, 10)
    a("s_branch end_wb" if opt.get('WB') else "s_branch the_end")
    FA, FT, FD, KMA, VMA, OW = 4, 5, 6, 7, 8, 9
    BI, S, SM, PF, PM, KMF, VMF, OA, OP = 16, 32, 48, 52, 60, 64, 96, 112, 176
    a("ao_A:")
    wait_init(18)
    a("s_mov_b32 s46, 1")
    decide_mode(a, 'aoa_m')
    a(f"""s_mov_b32 s46, 0
aoa_m:
s_lshl_b32 s47, {S_L}, 22
s_lshl_b32 s33, {S_I}, 13
s_add_u32 s47, s47, s33
s_add_u32 s47, s47, {AORING + OHO}
s_lshl_b32 s33, {S_L}, 5
s_add_u32 s33, s33, {S_I}
s_lshl_b32 s33, s33, 9
s_add_u32 s40, s33, {F_KM}
s_add_u32 s41, s33, {F_KV}
s_lshl_b32 s33, {S_L}, 4
s_lshr_b32 s34, {S_I}, 1
s_add_u32 s33, s33, s34
s_lshl_b32 s33, s33, 9
s_add_u32 s42, s33, {F_Q}
s_lshl_b32 s33, {S_L}, 7
s_add_u32 s43, s33, {F_AOD - 128}
v_mov_b32 v{FA}, s42
v_mov_b32 v{FD}, -100
v_mov_b32 v10, s42
v_mov_b32 v11, -100
v_cmp_gt_u32 vcc, 32, v1
v_cndmask_b32 v{FA}, v{FA}, v10, vcc
v_cndmask_b32 v{FD}, v{FD}, v11, vcc
v_cmp_gt_u32 vcc, 12, v1
v_cndmask_b32_e64 v{FD}, v{FD}, 2, vcc
v_mov_b32 v10, s41
v_cmp_gt_u32 vcc, 8, v1
v_cndmask_b32 v{FA}, v{FA}, v10, vcc
v_mov_b32 v10, s40
v_cmp_gt_u32 vcc, 4, v1
v_cndmask_b32 v{FA}, v{FA}, v10, vcc
v_and_b32 v10, 3, v1
v_lshlrev_b32 v10, 7, v10
v_add_u32 v{FA}, v10, v{FA}
s_lshl_b32 s33, {S_L}, 8
s_xor_b32 s34, {S_I}, 1
s_lshl_b32 s34, s34, 3
s_add_u32 s33, s33, s34
s_add_u32 s33, s33, {F_AOP - 48}
v_lshl_add_u32 v10, v1, 2, s33
v_cmp_lt_u32 vcc, 11, v1
v_cndmask_b32 v{FA}, v{FA}, v10, vcc
v_bfe_u32 v10, v1, 3, 1
v_lshlrev_b32 v10, 2, v10
v_and_b32 v11, 3, v1
v_add_u32 v10, v10, v11
v_lshlrev_b32 v10, 5, v10
v_lshrrev_b32 v11, 5, v1
v_lshl_add_u32 v{KMA}, v11, 4, v10
v_bfe_u32 v10, v1, 2, 1
v_bfe_u32 v11, v1, 4, 1
v_xor_b32 v10, v10, v11
v_lshl_add_u32 v{KMA}, v10, 30, v{KMA}
v_lshrrev_b32 v11, 5, v1
v_lshlrev_b32 v{VMA}, 3, v1
v_mov_b32 v{OW}, v3
v_lshlrev_b32 v11, 2, v11
v_and_b32 v10, 31, v1
v_sub_u32 v10, v10, v11
v_mov_b32 v11, 0xf149f2ca""")
    for r in range(16):
        a(f"v_cmp_gt_i32 vcc, {8*(r>>2) + (r&3)}, v10\nv_cndmask_b32 v{BI+r}, 0, v11, vcc")
    a(f"""s_mul_i32 s33, {S_L}, {48*MB}
s_mul_i32 s34, {S_I}, 24576
s_add_u32 s33, s33, s34
s_add_u32 s36, s33, {QKV}
s_lshl_b32 s33, {S_L}, 23
s_lshl_b32 s34, {S_I}, 12
s_add_u32 s33, s33, s34
s_add_u32 s37, s33, {KM}
s_mov_b32 s38, {SCL}
s_mov_b32 s39, {SCL}""")
    def poll(seg, code):
        L = a.newlabel('ap'); Dn = a.newlabel('apd')
        if seg is not None: a(f"v_add_u32 v{FT}, {seg}, v{FD}\nv_min_i32 v{FT}, 64, v{FT}")
        a(f"""s_mov_b64 exec, 0xff0
{L}:
buffer_load_dword v10, v{FA}, {WS}, 0 offen sc1
s_waitcnt vmcnt(0)
v_cmp_gt_i32 vcc, v{FT}, v10
s_cbranch_vccz {Dn}
s_mov_b64 exec, vcc""")
        spin_dec(a, code)
        a(f"s_sleep 1\ns_branch {L}\n{Dn}:\ns_mov_b64 exec, -1")
    def qkv_list(base):
        L = []
        for f in range(24):
            L.append((f"s_add_u32 s34, s36, {1024*f}\n" if f % 4 == 0 else "") + f"buffer_load_dwordx4 a[{base+4*f}:{base+4*f+3}], v3, {WS}, s34 offen offset:{1024*(f%4)} {opt.get('AFL', 'sc1')}")
        if not opt.get('ABL_HIT'): L[-1] += f"\ns_add_u32 s36, s36, {32*24576}"
        return L
    def qkv_loads(base):
        for x in qkv_list(base): a(x)
    poll(-1, 26)
    qkv_loads(0)
    NAFT = 0
    a(f"v_mov_b32 v15, 0\nv_mov_b32 v64, -1\ns_waitcnt vmcnt(0)\naoa_top:")
    for half in range(2):
        Xb, Yb = 96*half, 96*(1-half)
        q = lambda z: f"a[{Xb+4*z}:{Xb+4*z+3}]"
        k = lambda z: f"a[{Xb+32+4*z}:{Xb+32+4*z+3}]"
        v = lambda z: f"a[{Xb+64+4*z}:{Xb+64+4*z+3}]"
        m, t = 12, 13
        sx = lambda z: a(f"v_mfma_f32_32x32x16_bf16 v[{S}:{S+15}], {k(z)}, {q(z)}, v[{BI if z==0 else S}:{(BI if z==0 else S)+15}]")
        KMF, VMF = (64, 96) if half == 0 else (208, 104)
        KMN, VMN = (64, 96) if half == 1 else (208, 104)
        def kmlist(K_, V_, sb):
            return [f"buffer_load_dwordx4 v[{K_+4*z}:{K_+4*z+3}], v{KMA}, {WS}, {sb} offen offset:{256*z} sc1" for z in range(8)] + \
                   [f"buffer_load_dwordx2 v[{V_+2*T}:{V_+2*T+1}], v{VMA}, {WS}, {sb} offen offset:{2048+512*T} sc1" for T in range(4)]
        def kml():
            for x in kmlist(KMF, VMF, 's37'): a(x)
        FLD = lambda r: f"s_mov_b64 exec, 0x3ff0\nbuffer_load_dword v{r}, v{FA}, {WS}, 0 offen sc1\ns_mov_b64 exec, -1"
        NE = 8
        pf = qkv_list(Yb)
        def kchk(d):
            R_ = [KMF + 4*z for z in range(8)] + [VMF + 2*T for T in range(4)]
            a(f"v_max3_u32 v10, v{R_[0]}, v{R_[1]}, v{R_[2]}\nv_max3_u32 v11, v{R_[3]}, v{R_[4]}, v{R_[5]}")
            a(f"v_max3_u32 v10, v10, v{R_[6]}, v{R_[7]}\nv_max3_u32 v11, v11, v{R_[8]}, v{R_[9]}\nv_max3_u32 v10, v10, v{R_[10]}, v{R_[11]}")
            a(f"v_max_u32 v10, v10, v11\nv_cmp_eq_u32 {d}, -1, v10")
        a(f"""s_cmp_eq_u32 s20, 63
s_cselect_b32 s33, {32*24576}, 0
s_sub_u32 s36, s36, s33
v_add_u32 v{FT}, s20, v{FD}
v_min_i32 v{FT}, 64, v{FT}
s_waitcnt vmcnt({NAFT + 8})""")
        kchk('s[52:53]')
        a(f"""s_mov_b64 exec, 0xff0
v_cmp_gt_i32 vcc, v{FT}, v15
s_mov_b64 exec, -1
s_or_b64 s[54:55], s[52:53], vcc
s_cbranch_scc0 aoa_p{half}
s_cmp_eq_u64 s[52:53], 0
s_cbranch_scc1 aoa_q{half}""")
        if not opt.get('AKP'): kml()
        a(f"aoa_q{half}:")
        a(FLD(15))
        for z in range(8): sx(z)
        a(f"aoa_k{half}:\ns_waitcnt vmcnt(0)")
        kchk('vcc')
        a(f"s_cbranch_vccz aoa_r{half}")
        spin_dec(a, 16)
        if opt.get('AKS'): a(f"s_sleep {opt['AKS']}")
        if opt.get('AKP'):
            L_ = a.newlabel('kp')
            a(f"s_mov_b64 exec, 1\n{L_}:")
            spin_dec(a, 16)
            a(f"buffer_load_dword v10, off, {WS}, s37 offset:3584 sc1\ns_waitcnt vmcnt(0)\nv_cmp_eq_u32 vcc, -1, v10\ns_cbranch_vccnz {L_}\ns_mov_b64 exec, -1")
        kml()
        a(FLD(15))
        a(f"s_branch aoa_k{half}\naoa_r{half}:\ns_mov_b64 exec, 0xff0\nv_cmp_gt_i32 vcc, v{FT}, v15\ns_mov_b64 exec, -1\ns_cbranch_vccz aoa_t{half}")
        poll(None, 27)
        a(f"aoa_t{half}:")
        tr_stamp(a, opt, 0)
        sm = lambda z: a(f"v_mfma_f32_16x16x32_bf16 v[{SM}:{SM+3}], v[{KMF+4*z}:{KMF+4*z+3}], {q(z)}, {'0' if z==0 else f'v[{SM}:{SM+3}]'}")
        for z in range(8): sm(z); a(pf[z])
        a(f"s_branch aoa_j{half}\naoa_p{half}:")
        tr_stamp(a, opt, 0)
        for z in range(8): sx(z); a(pf[z])
        for z in range(8): sm(z)
        a(f"aoa_j{half}:\ns_add_u32 s37, s37, {32*4096}")
        pf = pf[NE:]
        kn = kmlist(KMN, VMN, 's37')
        a(f"v_max3_f32 v{m}, v{S}, v{S+1}, v{S+2}\nv_max3_f32 v{t}, v{S+3}, v{S+4}, v{S+5}")
        for i in range(6, 16, 4):
            a(f"v_max3_f32 v{m}, v{m}, v{S+i}, v{S+i+1}")
            if i + 2 < 16: a(f"v_max3_f32 v{t}, v{t}, v{S+i+2}, v{S+i+3}")
        tr_stamp(a, opt, 1)
        a(pf.pop(0)); a(pf.pop(0))
        for T in range(4): a(f"v_permlane16_swap_b32 v{VMF+2*T}, v{VMF+2*T+1}")
        a(f"""v_max3_f32 v{m}, v{m}, v{SM}, v{SM+1}
v_max3_f32 v{t}, v{t}, v{SM+2}, v{SM+3}
v_max_f32 v{m+2}, v{m}, v{t}
v_max_f32 v{m}, v{m}, v{t}""")
        a(pf.pop(0))
        a(f"""v_permlane32_swap_b32 v{m+2}, v{m}
v_max_f32 v{m}, v{m}, v{m+2}
v_mul_f32 v{m}, s38, v{m}""")
        for i in range(0, 20, 2): a(f"v_pk_fma_f32 v[{S+i}:{S+i+1}], v[{S+i}:{S+i+1}], s[38:39], v[{m}:{m+1}] op_sel_hi:[1,0,0] neg_lo:[0,0,1] neg_hi:[0,0,1]")
        for i in range(20):
            a(f"v_exp_f32 v{S+i}, v{S+i}")
            if i % 4 == 0: a(pf.pop(0))
        for i in range(10): a(f"v_cvt_pk_bf16_f32 v{PF+i}, v{S+2*i}, v{S+2*i+1}")
        a(FLD(15))
        pf = pf + kn
        tr_stamp(a, opt, 3)
        fill = []
        for i in range(2, 20): fill.append(f"v_add_f32 v{S+(i&1)}, v{S+(i&1)}, v{S+i}")
        fill += [f"v_add_f32 v{S+2}, v{S}, v{S+1}", f"v_add_f32 v{S}, v{S}, v{S+1}", None, f"v_permlane32_swap_b32 v{S+2}, v{S}",
                 f"v_add_f32 v{S}, v{S}, v{S+2}", f"v_rcp_f32 v{S}, v{S}"]
        def fin(T, pk):
            L = []
            for i in range(8):
                r = OA + 16*T + 2*i
                if pk: L += [f"v_pk_mul_f32 v[{r}:{r+1}], v[{r}:{r+1}], v[{S}:{S+1}] op_sel_hi:[1,0]"]
                else: L += [f"v_mul_f32 v{r}, v{r}, v{S}", f"v_mul_f32 v{r+1}, v{r+1}, v{S}"]
                L += [f"v_cvt_pk_bf16_f32 v{OP+8*T+i}, v{r}, v{r+1}"]
            return L
        fill += fin(0, 0) + fin(1, 0)
        for T in range(4):
            A = OA + 16*T
            ms = [f"v_mfma_f32_32x32x16_bf16 v[{A}:{A+15}], {v(2*T)}, v[{PF}:{PF+3}], 0",
                  f"v_mfma_f32_32x32x16_bf16 v[{A}:{A+15}], {v(2*T+1)}, v[{PF+4}:{PF+7}], v[{A}:{A+15}]",
                  f"v_mfma_f32_32x32x8_bf16 v[{A}:{A+15}], v[{VMF+2*T}:{VMF+2*T+1}], v[{PM}:{PM+1}], v[{A}:{A+15}]"]
            for j, x in enumerate(ms):
                a(x)
                a(pf.pop(0))
                for _ in range(6):
                    if fill:
                        y = fill.pop(0)
                        if y is None: break
                        a(y)
        fill += fin(2, 1) + fin(3, 1)
        for n_, x in enumerate(fill):
            a(x)
            if n_ % 4 == 3 and pf: a(pf.pop(0))
        for x in pf: a(x)
        tr_stamp(a, opt, 4)
        a("s_sub_u32 s21, s20, 1")
        lds_spin(a, 'v2', 10, 2, 4, 's21', 28)
        a("s_mov_b32 s51, s21")
        for z in range(8): a(f"ds_write_b128 v3, v[{OP+4*z}:{OP+4*z+3}] offset:{8192*half + 1024*z}")
        a(f"""s_add_u32 s21, s20, 1
v_mov_b32 v10, s21
s_lshr_b32 s48, s20, 1
s_and_b32 s48, s48, 1
s_xor_b32 s48, s48, 1
s_add_u32 s49, s47, {half*MB//4}
s_add_u32 s50, s49, 4096
s_waitcnt lgkmcnt(0)
ds_write_b32 v2, v10""")
        tr_stamp(a, opt, 2)
        a(f"s_waitcnt vmcnt(20)\ns_mov_b64 exec, 0x3000\nv_cmp_gt_i32 vcc, s51, v15\ns_mov_b64 exec, -1")
        for z in range(8): a(f"v_and_or_b32 v{OP+4*z}, v{OP+4*z}, -2, s48")
        a(f"s_cbranch_vccnz aoa_w{half}\naoa_o{half}:\ns_cmp_eq_u32 s46, 0\ns_cbranch_scc0 aoa_s{half}")
        for md in ('', ' sc1'):
            if md: a(f"s_branch aoa_e{half}\naoa_s{half}:")
            for z in range(8): a(f"buffer_store_dwordx4 v[{OP+4*z}:{OP+4*z+3}], v3, {WS}, {'s49' if z < 4 else 's50'} offen offset:{1024*(z&3)}{md}")
        a(f"aoa_e{half}:")
        tr_flush(a, opt, 's20', range(5), 240, wait=True)
        a("s_mov_b32 s20, s21")
    a("s_cmp_lt_u32 s20, 64\ns_cbranch_scc1 aoa_top")
    tr_dump(a, opt, 5, 240, 10)
    a("s_waitcnt lgkmcnt(0)\ns_branch the_end")
    for half in range(2):
        a(f"aoa_w{half}:")
        spin_dec(a, 17)
        a(f"""s_mov_b64 exec, 0x3000
buffer_load_dword v10, v{FA}, {WS}, 0 offen sc1
s_waitcnt vmcnt(0)
v_cmp_gt_i32 vcc, s51, v10
s_mov_b64 exec, -1
s_cbranch_vccnz aoa_w{half}
s_branch aoa_o{half}""")
```

```python
from common import *

MEMB, KB, VB, QX, KX, OX = 0x20000, 0x22000, 0x24000, 0x26000, 0x26A00, 0x20000
QROW = 288
JUNK = 0x27800
ORD, TAGM, IDX, L16, SEL, WK, HI, M0A, ST, PUB, QW, QR, QRM, OW, KG, VG, KMS, VMS, PD, FV = \
    0, 1, 2, 3, 4, 8, 9, 10, 14, 15, 16, 17, 18, 19, 20, 21, 22, 23, 24, 25
T0 = 26
MEMF = 28
RING = 60
NRING = 5
ACC = 100
VAC = 116
XT = 124
SC = 0x3e0293ee
K_LDS = [0, 1, 3, 4, 5]
K_REG = [2, 6, 7]
O_LDS = [(1, 1), (2, 1), (3, 1)]
O_REG = [(0, 0), (1, 0), (2, 0), (3, 0), (0, 1)]
def areg_k(s, t): return 128 + (K_REG.index(s)*2 + t)*8
def areg_o(phi, kp, y): return 128 + 48 + (O_REG.index((phi, kp))*2 + y)*8

def cst(a, opt, k):
    pos = opt.get('cpos', [0, 1, 2, 3, 4, 5, 6])
    if opt.get('trace') and k in pos:
        i = pos.index(k); a(f"{'s_memrealtime' if opt.get('rt') else 's_memtime'} s[{64+2*i}:{65+2*i}]")
def cflush(a, opt):
    if opt.get('trace'):
        a("s_waitcnt lgkmcnt(0)")
        for k in range(7): a(f"v_writelane_b32 v{MEMF+30}, s{64+2*k}, {k}")
        a(f"""v_lshlrev_b32 v{MEMF+31}, 4, v{L16}
s_lshl_b32 s33, s20, 2
s_max_u32 s33, s33, 4
s_add_u32 s33, s33, s101
s_sub_u32 s33, s33, 4
s_mov_b64 exec, 0x7f
buffer_store_dword v{MEMF+30}, v{MEMF+31}, {WS}, s33 offen
s_mov_b64 exec, -1""")

def role_chain(a, opt):
    D1 = None; D2 = opt.get('D2', 260)
    a("role_chain:")
    if 'chain_layers' in opt:
        for l in (0, 1):
            if l not in opt['chain_layers']: a(f"s_cmp_eq_u32 {S_L}, {l}\ns_cbranch_scc1 the_end")
    srd(a, 12, P_WQ, 0x400000); srd(a, 16, P_WV, 0x400000); srd(a, 20, P_WO, 0x400000); srd(a, 28, P_WK, 0x400000)
    a(f"""s_lshl_b32 s36, {S_W}, 15
s_lshl_b32 s37, {S_I}, 8
s_lshl_b32 s33, {S_W}, 20
s_add_u32 s37, s37, s33
s_lshl_b32 s39, {S_I}, 17
s_add_u32 s39, s39, s36
s_lshl_b32 s38, {S_W}, 13
v_lshrrev_b32 v2, 4, v1
v_and_b32 v3, 15, v1
v_lshlrev_b32 v6, 2, v2
v_xor_b32 v6, v6, v3
v_lshlrev_b32 v6, 4, v6
v_lshl_add_u32 v4, v2, 13, v6
v_and_b32 v6, 1, v2
v_lshlrev_b32 v6, 2, v6
v_xor_b32 v6, v6, v3
v_lshlrev_b32 v6, 4, v6
v_lshl_add_u32 v5, v2, 10, v6
v_xor_b32 v6, 0x80, v5
v_lshlrev_b32 v13, 4, v1
v_add_u32 v13, s36, v13""")
    def tr_addr(m, hi):
        if m == 'o':
            a(f"""v_bfe_u32 v7, v1, 4, 1
v_lshlrev_b32 v12, 4, v7
v_bfe_u32 v14, v1, 5, 1
v_lshl_add_u32 v12, v14, 2, v12
v_bfe_u32 v14, v1, 2, 1
v_add_u32 v12, v14, v12
v_lshl_add_u32 v7, v7, 1, v14
v_xor_b32 v7, {S_W}, v7
v_lshlrev_b32 v7, 6, v7
v_lshl_add_u32 v7, v12, 8, v7
v_and_b32 v12, 3, v1
v_lshl_add_u32 v7, v12, 4, v7
v_bfe_u32 v12, v1, 3, 1
v_lshl_add_u32 v7, v12, 3, v7""")
        else:
            a(f"""v_bfe_u32 v12, v1, 2, 2
v_xor_b32 v7, {S_W}, v12
v_lshlrev_b32 v7, 6, v7
v_lshl_add_u32 v7, v12, 8, v7
v_lshl_add_u32 v7, v2, 11, v7""")
            if m == 'v': a("v_and_b32 v12, 3, v1\nv_lshl_add_u32 v7, v12, 3, v7")
            else: a("v_bfe_u32 v12, v1, 1, 1\nv_lshl_add_u32 v7, v12, 5, v7\nv_and_b32 v12, 1, v1\nv_lshl_add_u32 v7, v12, 3, v7")
        for sg in range(4):
            a(f"s_xor_b32 s33, {S_W}, {sg}" if m == 'o' else f"s_add_u32 s33, {S_W}, {sg}\ns_and_b32 s33, s33, 3")
            a(f"s_lshl_b32 s33, s33, 13\nv_add_u32 v{8+sg}, s33, v7")
    pieces = []
    KLs = [(s_, t) for s_ in K_LDS for t in range(2)]
    def tmp(n): return 16 + 8 * (n if n < 14 else n - 6)
    def dmas(p):
        m, x = pieces[p]
        L = []
        for i in range(8):
            if m == 'o': src, ad, sr = f"s_add_u32 s33, s39, {x*256 + 4*i*1024}", 'v5' if i < 4 else 'v6', 's[20:23]'
            else: src, ad, sr = f"s_add_u32 s33, s37, {(64*(x>>1) + 32*(x&1) + 4*i)*8192}", 'v4', dict(q='s[12:15]', v='s[16:19]', k='s[28:31]')[m]
            L.append(f"s_add_u32 m0, s38, {(p & 3)*32768 + i*1024}\n{src}\nbuffer_load_dwordx4 {ad}, {sr}, s33 offen lds")
        return L
    def reads(p):
        m, x = pieces[p]
        L = []
        for sg in range(4):
            if m == 'o':
                kp, t = sg >> 1, sg & 1
                f, r = ('a', areg_o(x, kp, t)) if (x, kp) in O_REG else ('v', tmp(10 + O_LDS.index((x, kp))*2 + t))
                for u in range(4): L.append((f, r + 2*u, sg, (8*(u>>1) + 2*(u&1))*256))
            else:
                s_ = 2*sg + (x >> 1)
                for t in range(2):
                    if m == 'q': f, r = 'a', (2*s_ + t)*8
                    elif m == 'v': f, r = 'v', 128 + (2*s_ + t)*8
                    elif s_ in K_REG: f, r = 'a', areg_k(s_, t)
                    else: f, r = 'v', tmp(KLs.index((s_, t)))
                    for ul in range(2): L.append((f, r + 4*(x&1) + 2*ul, sg, 1024*ul + (32 if m == 'v' else 16)*t))
        return [f"ds_read_b64_tr_b16 {f}[{r}:{r+1}], v{8+sg} offset:{(p & 1)*32768 + o}" for f, r, sg, o in L]
    def load_all(side, order):
        pieces[:] = [(m, x) for m in order for x in range(4)]
        for p in range(3):
            for x in dmas(p): a(x)
        for p in range(16):
            if p % 4 == 0: tr_addr(pieces[p][0], 0)
            if p % 4 == 2:
                for sg in range(4): a(f"v_xor_b32 v{8+sg}, 0x10000, v{8+sg}")
            a(f"s_waitcnt vmcnt({side.get(p, 0) + 8*min(2, 15 - p)}) lgkmcnt(0)\ns_barrier")
            if pieces[p] == ('o', 0):
                a(f"v_lshlrev_b32 v15, 4, v1\ns_lshl_b32 s33, {S_W}, 12\ns_add_u32 s33, s33, {MEMB}\nv_add_u32 v15, s33, v15")
                for x in range(4): a(f"ds_write_b128 v15, v[{tmp(8)+4*x}:{tmp(8)+4*x+3}] offset:{1024*x}")
            d = dmas(p + 3) if p + 3 < 16 else []
            for n_, x in enumerate(reads(p)):
                a(x)
                if n_ % 2 and d: a(d.pop(0))
            if f'e{p}' in side: side[f'e{p}']()
        a("s_waitcnt lgkmcnt(0)\ns_barrier")
        for n in list(range(8)) + list(range(10, 16)):
            for h_ in range(2): a(f"ds_write_b128 v13, v[{tmp(n)+4*h_}:{tmp(n)+4*h_+3}] offset:{2048*n + 1024*h_}")
            if n == 1:
                a("s_waitcnt lgkmcnt(0)")
                for x in range(4): a(f"ds_read_b128 v[{16+4*x}:{19+4*x}], v15 offset:{1024*x}")
        a("s_waitcnt lgkmcnt(0)")
        for x in range(4): a(f"ds_write_b128 v13, v[{16+4*x}:{19+4*x}] offset:{2048*8 + 1024*x}")
        a("s_waitcnt lgkmcnt(0)")
    def calib():
        NB = 16
        a(f"""s_cmp_eq_u32 {S_W}, 3
s_cbranch_scc0 ch_nocal
s_sub_u32 s34, s99, 8
ch_cal:
s_memrealtime s[64:65]
s_waitcnt lgkmcnt(0)
s_sub_u32 s33, s34, s64
s_cmp_lt_u32 s33, 1000
s_cbranch_scc1 ch_cal
s_memtime s[96:97]""")
        for k in range(NB): a(f"s_memrealtime s[{64+2*k}:{65+2*k}]\ns_nop 1")
        a("s_waitcnt lgkmcnt(0)")
        for k in range(NB): a(f"s_sub_u32 s33, s99, s{64+2*k}\ns_cmp_lt_u32 s33, 1000\ns_cselect_b32 s33, 12, 0\ns_add_u32 s96, s96, s33")
        a(f"v_mov_b32 v20, s96\nv_mov_b32 v21, {JUNK}\nds_write_b32 v21, v20\ns_waitcnt lgkmcnt(0)")
        if opt.get('trace'):
            a(f"s_sub_u32 s33, s99, s64\nv_mov_b32 v20, s33\ns_mov_b64 exec, 1\nbuffer_store_dword v20, off, {WS}, s101 offset:2024\ns_mov_b64 exec, -1\ns_waitcnt vmcnt(0)")
        if opt.get('diag'):
            a(f"s_sub_u32 s33, s99, s64\nv_mov_b32 v20, s33\nv_mov_b32 v21, s99\ns_mov_b64 exec, 1\nbuffer_atomic_umax v20, off, {DBG}, 0 offset:56 sc1\nbuffer_atomic_umax v21, off, {DBG}, 0 offset:8 sc1\ns_mov_b64 exec, -1\ns_waitcnt vmcnt(0)")
        a("ch_nocal:")
    if opt.get('SYNC', 1): calib()
    hold(a, opt, 'HC', 9, 20, True)
    a(f"""s_lshl_b32 s33, {S_L}, 20
s_add_u32 s54, s33, {CRING}
s_mul_i32 s53, {S_I}, {CSTR}
s_lshl_b32 s52, {S_W}, 11
s_add_u32 s53, s53, s52
s_mul_i32 s33, {S_L}, {48*MB}
s_mul_i32 s34, {S_I}, 24576
s_add_u32 s33, s33, s34
s_add_u32 s40, s33, {QKV + 8192}
s_lshl_b32 s33, {S_L}, 5
s_add_u32 s33, s33, {S_I}
s_lshl_b32 s33, s33, 9
s_lshl_b32 s34, {S_W}, 7
s_add_u32 s33, s33, s34
s_add_u32 s41, s33, {F_KV}
s_add_u32 s42, s33, {F_KM}
s_mul_i32 s44, {S_G}, {D_TICK + 1}
s_add_u32 s45, {S_L}, {D_CINIT}
s_mov_b32 s57, 0
v_mov_b32 v0, 0""")
    def e10(): a(f"v_lshlrev_b32 v3, 2, v1\nbuffer_load_dword v3, v3, {DBG}, 0 offen sc1")
    def e13():
        a(f"""v_readlane_b32 s33, v3, s44
v_readlane_b32 s34, v3, s45
v_readlane_b32 s35, v3, {D_INIT}
v_lshlrev_b32 v3, 5, v1
s_min_u32 s33, s33, s34
s_add_u32 s35, s35, {32 - NZERO}
s_min_u32 s33, s33, s35
s_cmp_ge_u32 s33, 32
s_cbranch_scc0 {(lb := a.newlabel('e13'))}
s_mov_b32 s57, 1
s_mov_b64 exec, 1
buffer_load_dword v0, off, {WS}, s41 sc1
s_mov_b64 exec, -1""")
        for x in ("s_add_u32 s33, s40, s52", "s_add_u32 s33, s33, 8192", "s_add_u32 s33, s54, s53", f"s_add_u32 s33, s33, {CSLOT}",
                  f"s_add_u32 s33, s54, s52\ns_add_u32 s33, s33, {CMEM_OFF}", "s_add_u32 s33, s33, 8192", "s_add_u32 s33, s33, 8192", "s_add_u32 s33, s33, 8192"):
            a(f"{x}\nbuffer_load_dword v14, v3, {WS}, s33 offen sc1")
        a(f"{lb}:")
        if any(opt.get(k) for k in ('HC', 'HF', 'HA')):
            a(f"s_or_b32 s33, {S_L}, {S_W}\ns_cbranch_scc1 ch_nsig\ns_mov_b64 exec, 1\nv_mov_b32 v12, 1\nbuffer_atomic_add v12, off, {DBG}, 0 offset:{D_WLD*4} sc1\ns_mov_b64 exec, -1\nch_nsig:")
    side = {} if opt.get('noinit') else {11: 1, 12: 1, 'e10': e10, 'e13': e13}
    load_all(side, opt.get('LO0', 'qvko'))
    a("v_readfirstlane_b32 s56, v0")
    def sst(k):
        if opt.get('trace'):
            a(f"s_memrealtime s[64:65]\ns_waitcnt lgkmcnt(0)\nv_mov_b32 v40, s64\ns_mov_b64 exec, 1\nbuffer_store_dword v40, off, {WS}, s101 offset:{2000+4*k}\ns_mov_b64 exec, -1")
    sst(0)
    a(f"s_barrier\nv_mov_b32 v21, {JUNK}\nds_read_b32 v20, v21\ns_waitcnt lgkmcnt(0)\nv_readfirstlane_b32 s98, v20")
    if opt.get('trace'):
        a(f"s_mov_b64 exec, 1\nbuffer_store_dword v20, off, {WS}, s101 offset:2028\ns_mov_b64 exec, -1")
    a("s_mov_b32 s60, 0\ns_cmp_eq_u32 s57, 1\ns_cbranch_scc1 ch_mode")
    if not opt.get('noinit'):
        wait_dbg(a, (D_INIT + DONE)*4, 1, 10, vt=4)
        a(f"s_lshl_b32 s33, {S_L}, 2\ns_add_u32 s33, s33, {(D_CINIT + DONE)*4}")
        wait_dbg(a, 's33', 1, 11, vt=4)
    decide_mode(a, 'ch_setslow')
    a("s_branch ch_mode\nch_setslow:\ns_mov_b32 s60, 1\nch_mode:")
    sst(1)
    if opt.get('diag'):
        a(f"s_cmp_eq_u32 {S_L}, 0\ns_cbranch_scc0 ch_dg0")
        diag(a, opt, 3, 40)
        a("ch_dg0:")
    n, c, t1, t2 = 'v28', 'v29', 'v30', 'v31'
    a(f"""v_and_b32 {n}, 15, v1
v_lshrrev_b32 {c}, 4, v1
v_lshlrev_b32 v{L16}, 4, v1
v_add_u32 v{WK}, s36, v{L16}
v_add_u32 v{HI}, {MEMB}, v{L16}
; idx
v_bfe_u32 {t1}, v1, 1, 1
v_mul_u32_u24 {t1}, 0xaaaa, {t1}
v_add_u32 v{IDX}, 0x4444, {t1}""")
    for q in range(4):
        a(f"""s_add_u32 s33, {S_W}, {q}
s_and_b32 s33, s33, 3
s_lshl_b32 s33, s33, 11
v_add_u32 v{M0A+q}, s33, v{HI}""")
    a(f"""v_and_b32 {t1}, 3, v1
v_lshlrev_b32 {t1}, 1, {t1}
v_bfe_u32 {t2}, v1, 2, 1
v_add_u32 {t1}, {t1}, {t2}
v_bfe_u32 {t2}, v1, 3, 1
v_lshlrev_b32 {t2}, 4, {t2}
v_mov_b32 v32, 0x3f80
v_lshlrev_b32 {t2}, {t2}, v32""")
    for q in range(4):
        a(f"v_cmp_eq_u32 vcc, {q}, {t1}\nv_cndmask_b32 v{SEL+q}, 0, {t2}, vcc")
    a(f"""; partial store offset: (8w+4m+c)*8192 + h*64 + (n&7)*8
v_bfe_u32 {t1}, v1, 3, 1
v_lshl_add_u32 {t1}, {t1}, 2, {c}
s_lshl_b32 s33, {S_W}, 3
v_add_u32 {t1}, s33, {t1}
v_mul_u32_u24 {t1}, {CSTR}, {t1}
v_and_b32 {t2}, 7, v1
v_lshl_add_u32 {t1}, {t2}, 3, {t1}
s_lshl_b32 s33, {S_I}, 6
v_add_u32 v{ST}, s33, {t1}
v_and_b32 {t1}, 1, v1
v_lshlrev_b32 {t1}, 5, {t1}
v_bfe_u32 {t2}, v1, 5, 1
v_lshl_add_u32 {t1}, {t2}, 4, {t1}
v_bfe_u32 {t2}, v1, 1, 1
v_lshl_add_u32 {t1}, {t2}, 3, {t1}
v_bfe_u32 {t2}, v1, 4, 1
v_lshl_add_u32 {t1}, {t2}, 2, {t1}
v_bfe_u32 {t2}, v1, 2, 1
v_lshl_add_u32 {t1}, {t2}, 14, {t1}
s_lshr_b32 s33, {S_I}, 1
s_lshl_b32 s33, s33, 8
s_and_b32 s34, {S_I}, 1
s_lshl_b32 s34, s34, 6
s_add_u32 s33, s33, s34
s_lshr_b32 s34, {S_W}, 1
s_lshl_b32 s34, s34, 12
s_and_b32 s35, {S_W}, 1
s_lshl_b32 s35, s35, 7
s_add_u32 s35, s35, s34
s_add_u32 s33, s33, s35
s_add_u32 s33, s33, 8192
v_add_u32 v{PUB}, s33, {t1}
v_bfe_u32 v{PD}, v1, 2, 1
v_or_b32 v{PD}, -2, v{PD}
v_mul_u32_u24 {t1}, {2*QROW}, {c}
v_lshl_add_u32 {t1}, {n}, 2, {t1}
s_lshl_b32 s33, {S_W}, 6
s_add_u32 s34, s33, {QX}
v_add_u32 v{QW}, s34, {t1}
v_bfe_u32 {t1}, v1, 2, 2
v_lshlrev_b32 {t1}, 1, {t1}
v_and_b32 {t2}, 1, v1
v_add_u32 {t1}, {t1}, {t2}
v_mul_u32_u24 {t1}, {QROW}, {t1}
v_lshl_add_u32 {t1}, {c}, 4, {t1}
v_add_u32 v{QR}, {QX}, {t1}
v_bfe_u32 {t2}, v1, 1, 1
v_lshl_add_u32 v{QRM}, {t2}, 7, v{QR}
v_bfe_u32 {t1}, v1, 2, 3
v_mul_u32_u24 {t1}, {QROW}, {t1}
v_bfe_u32 {t2}, v1, 5, 1
v_lshl_add_u32 {t1}, {t2}, 5, {t1}
v_and_b32 {t2}, 3, v1
v_lshl_add_u32 {t1}, {t2}, 3, {t1}
s_lshl_b32 s33, {S_W}, 6
s_add_u32 s33, s33, {KX}
v_add_u32 v{KMS}, s33, {t1}
v_lshlrev_b32 {t1}, 4, {n}
v_lshl_add_u32 {t1}, {c}, 2, {t1}
v_add_u32 v{VMS}, 2048, {t1}
v_bfe_u32 {t1}, v1, 2, 2
v_lshlrev_b32 {t1}, 1, {t1}
v_and_b32 {t2}, 1, v1
v_add_u32 {t1}, {t1}, {t2}
v_lshlrev_b32 {t1}, 4, {t1}
v_lshl_add_u32 {t1}, {c}, 7, {t1}
s_lshl_b32 s33, {S_W}, 9
s_add_u32 s33, s33, {OX}
v_add_u32 v{ORD}, s33, {t1}
v_bfe_u32 {t2}, v1, 1, 1
v_lshl_add_u32 v{OW}, {t2}, 3, v{ORD}
v_bfe_u32 {t1}, v1, 5, 1
v_lshlrev_b32 {t1}, 10, {t1}
v_bfe_u32 {t2}, v1, 4, 1
v_lshl_add_u32 {t1}, {t2}, 9, {t1}
s_lshl_b32 s33, {S_W}, 11
v_add_u32 {t1}, s33, {t1}
v_lshl_add_u32 v{VG}, {n}, 4, {t1}
v_bfe_u32 {t2}, v1, 3, 1
v_lshl_add_u32 v{KG}, {t2}, 7, v{VG}
v_and_b32 v{TAGM}, 1, v1
v_xor_b32 v{TAGM}, 1, v{TAGM}""")
    a(f"""s_lshl_b32 s33, {S_L}, 20
s_add_u32 s54, s33, {CRING}
s_add_u32 s37, s54, {CMEM_OFF}
s_mul_i32 s53, {S_I}, {CSTR}
s_lshl_b32 s33, {S_W}, 11
s_add_u32 s53, s53, s33
s_add_u32 s55, s37, s35
s_add_u32 s43, s33, {KB}
s_lshl_b32 s33, {S_L}, 23
s_lshl_b32 s34, {S_I}, 12
s_add_u32 s33, s33, s34
s_add_u32 s39, s33, {KM}
s_lshl_b32 s34, {S_W}, 9
s_add_u32 s39, s39, s34
s_mul_i32 s33, {S_L}, {48*MB}
s_mul_i32 s34, {S_I}, 24576
s_add_u32 s33, s33, s34
s_add_u32 s40, s33, {QKV + 8192}
s_lshl_b32 s33, {S_L}, 5
s_add_u32 s33, s33, {S_I}
s_lshl_b32 s33, s33, 9
s_lshl_b32 s34, {S_W}, 7
s_add_u32 s33, s33, s34
s_add_u32 s41, s33, {F_KV}
s_lshl_b32 s84, {S_W}, 11
s_mov_b32 s58, 0x3f803f80
s_mov_b32 s59, 0x3f803f80
s_add_u32 s42, s33, {F_KM}
s_mov_b32 s44, 0x33333333
s_mov_b32 s45, 0x33333333
s_mov_b32 s46, 0xcccccccc
s_mov_b32 s47, 0xcccccccc
s_mov_b32 s48, 0x000f000f
s_mov_b32 s49, 0x000f000f
s_mov_b32 s50, 0x00ff00ff
s_mov_b32 s51, 0x00ff00ff
s_mov_b32 s52, {SC}
s_mov_b32 s20, 0
s_mov_b32 s38, s55""")
    a("s_cmp_lg_u32 s56, 0\ns_cbranch_scc1 ch_kv0ok\ns_cmp_eq_u32 s57, 1\ns_cbranch_scc1 ch_kv0")
    a(f"s_add_u32 s33, s54, s53")
    for sl in range(2):
        for q in range(2): a(f"buffer_load_dwordx4 v[28:31], v{L16}, {WS}, s33 offen offset:{1024*q} sc1")
        a(f"s_add_u32 s33, s33, {CSLOT}")
    for sl in range(1, 4):
        a(f"s_add_u32 s33, s37, s84\ns_add_u32 s33, s33, {8192*sl}")
        for q in range(2): a(f"buffer_load_dwordx4 v[28:31], v{L16}, {WS}, s33 offen offset:{1024*q} sc1")
    a(f"""ch_kv0:
s_mov_b64 exec, 1
buffer_load_dword v{FV}, off, {WS}, s41 sc1
s_waitcnt vmcnt(0)
v_cmp_eq_u32 vcc, 0, v{FV}
s_cbranch_vccz ch_kv0ok""")
    spin_dec(a, 12)
    a("s_sleep 2\ns_branch ch_kv0\nch_kv0ok:\ns_mov_b64 exec, -1")
    sst(2)
    diag(a, opt, 12, 40)
    for i in range(2):
        a(f"s_add_u32 m0, s43, {896*i}\nbuffer_load_dwordx4 v{KG}, {WS}, s40 offen offset:{128*i} sc1 lds")
    a(f"s_add_u32 s56, s40, 8192")
    for i in range(2):
        a(f"s_add_u32 m0, s43, {VB - KB + 768*i}\nbuffer_load_dwordx4 v{VG}, {WS}, s56 offen offset:{256*i} sc1 lds")
    a(f"s_add_u32 s40, s40, {32*24576}\ns_add_u32 s85, s40, s84")
    if opt.get('SYNC', 1):
        Q_ = opt.get('Q', 512)
        a(f"""s_sub_u32 s33, 3, {S_W}
s_mul_i32 s61, s33, {opt.get('WS', 32)}
s_add_u32 s82, s61, {76 + (8 if opt.get('cnt') else 0)}
s_mul_i32 s83, s33, {opt.get('WS', 32) - opt.get('WS2', 24)}
s_add_u32 s83, s83, {opt.get('C2', 590)}
s_mov_b32 s63, s98
s_mov_b32 s62, s63""")
    a("s_cmp_eq_u32 s60, 1\ns_cbranch_scc1 chs_entry")
    for mode in ('chf', 'chs'):
        step_loop(a, opt, mode, '' if mode == 'chf' else ' sc1', D1, D2)
    a(f"""ch_fin:
s_waitcnt vmcnt(0)
""")
    if opt.get('diag'):
        a(f"s_cmp_eq_u32 {S_L}, 0\ns_cbranch_scc0 ch_dg1")
        diag(a, opt, 4, 40)
        a("ch_dg1:")
        diag(a, opt, 5, 40)
    if opt.get('trace'):
        a("v_mbcnt_lo_u32_b32 v1, -1, 0\nv_mbcnt_hi_u32_b32 v1, -1, v1")
        tr_dump(a, opt, 0, 40, 10)
    a(f"s_cmp_eq_u32 {S_W}, 0\ns_cbranch_scc1 end_wb" if opt.get('WB') else "")
    a("s_branch the_end")

def warm(a, cycles, reg):
    for _ in range(max(0, cycles)//4): a(f"v_mov_b32 v{reg}, 0")

def step_loop(a, opt, P, SC1, D1, D2):
    lds = Cnt(a, 'lgkmcnt', 15)
    vm = Cnt(a, 'vmcnt', 63)
    R4 = lambda r: f"v[{r}:{r+3}]"
    slot = [100]
    def tick():
        cst(a, opt, slot[0]); slot[0] += 1
    memf = lambda s: R4(MEMF + 4*s)
    ETA = 's[46:47]'
    KL = [(s, t) for s in K_LDS for t in range(2)]
    def wk(n, h):
        r = RING + 8*(n % NRING) + 4*h
        return lambda: lds.issue(f"ds_read_b128 {R4(r)}, v{WK} offset:{2048*n + 1024*h}", ('wk', n))
    def S(m, s, t):
        if m == 'q': d, b = ACC + 4*t, f"a[{(2*s+t)*8}:{(2*s+t)*8+7}]"
        elif m == 'v': d, b = VAC + 4*t, f"v[{128+(2*s+t)*8}:{128+(2*s+t)*8+7}]"
        else:
            d = ACC + 8 + 4*t
            if s in K_REG: r = areg_k(s, t); b = f"a[{r}:{r+7}]"
            else:
                n = KL.index((s, t)); r = RING + 8*(n % NRING); b = f"v[{r}:{r+7}]"
                if n >= NRING: lds.wait(('wk', n))
        if s >= 2: lds.wait(('m', s))
        a(f"v_smfmac_f32_16x16x64_bf16 {R4(d)}, {memf(s)}, {b}, v{IDX}"); tick()
    def do(*xs):
        for x in xs:
            if x is None: continue
            if callable(x): x()
            else: a(x)
    def zero(r0, r1): return [f"v_mov_b64 v[{r}:{r+1}], 0" for r in range(r0, r1, 2)]
    def prep():
        z = zero(ACC + 16, ACC + 24)
        for n in range(NRING):
            wk(n, 0)(); wk(n, 1)()
        do(*z)
    a(f"{P}_entry:")
    a(f"v_mov_b32 v{FV}, 127\nv_mov_b32 v{XT+1}, 0\nv_and_b32 v{XT+2}, 0x380, v{L16}\nv_add_u32 v{XT+2}, v{XT+2}, v{L16}")
    prep()
    PQ = MEMF + 24
    NR = 4
    a(f"{P}_h2:")
    cst(a, opt, 29)
    a(f"""buffer_load_dwordx4 {memf(0)}, v{XT+2}, {WS}, s38 offen sc1
buffer_load_dwordx4 {memf(1)}, v{XT+2}, {WS}, s38 offen offset:2048 sc1
v_lshlrev_b32 v{XT}, 2, v{L16}
v_and_b32 v{XT+3}, 0x800, v{XT}
v_mad_u32_u24 v{XT}, v{XT+3}, 3, v{XT}""")
    do(*zero(ACC, ACC + 16))
    TRC = 1 if opt.get('trace') else 0
    cflush(a, opt)
    a(f"""s_waitcnt lgkmcnt(0)
s_waitcnt vmcnt({1 + TRC})""")
    lds.q = []; lds.done = 0
    cst(a, opt, 0)
    lds.issue(f"ds_write_b128 v{M0A}, {memf(0)}", 'mw')
    S('q', 0, 0)
    a(f"s_waitcnt vmcnt({TRC})")
    lds.issue(f"ds_write_b128 v{M0A}, {memf(1)} offset:1024", 'mw')
    S('q', 0, 1); a(f"v_max_u32 v{T0}, v{MEMF}, v{MEMF+4}")
    S('k', 0, 0); a(f"v_cmp_eq_u32 vcc, -1, v{T0}")
    SY = opt.get('SYNC', 1)
    S('k', 0, 1)
    S('q', 1, 0); a(f"s_cbranch_vccnz {P}_h2retry")
    def vst(t, tag=None):
        if opt.get('NOKM') and f"v{KMS}," in t: return None
        if opt.get('NOVM') and f"v{VMS}," in t: return None
        if opt.get('NOTOUCH') and 'buffer_load_dword v' in t and t.endswith('lds'): return None
        return lambda: vm.issue(t, tag)
    S('q', 1, 1); do(wk(5, 0))
    S('k', 1, 0); do(wk(5, 1), f"s_add_u32 m0, s43, {VB - KB}")
    lds.wait('mw')
    cst(a, opt, 10)
    a("s_barrier")
    cst(a, opt, 11)
    mr = lambda s: (lambda: lds.issue(f"ds_read_b128 {memf(s)}, v{M0A + (s>>1)} offset:{1024*(s&1)}", ('m', s)))
    kf = lambda T, i: RING + 16*T + 4*i
    kr = lambda T, i: (lambda: lds.issue(f"ds_read_b128 {R4(kf(T, i))}, v{HI} offset:{KB - MEMB + 2048*i + 1024*T}", ('K', T, i)))
    K0, K1, Q0, Q1 = ACC + 8, ACC + 12, ACC, ACC + 4
    RT = 0
    VMV = 'c'
    CV = True
    V1 = vst(f"buffer_load_dwordx4 v{VG}, {WS}, s56 offen sc1 lds", 'V')
    V2 = vst(f"buffer_load_dwordx4 v{VG}, {WS}, s56 offen offset:256 sc1 lds", 'V')
    FS = vst(f"buffer_store_dword v{T0}, off, {WS}, s42 sc1", 'fs')
    TK = vst(f"buffer_load_dword v{FV}, v{XT}, {WS}, s85 offen sc1")
    TV = None
    do(mr(2), "s_memrealtime s[80:81]" if RT else None, mr(3))
    FSX = ["s_mov_b64 exec, 1", vst(f"buffer_store_dword v{XT+1}, off, {WS}, s42 sc1", 'fs'), "s_mov_b64 exec, -1"]
    S('k', 1, 1); do(V1, f"s_add_u32 m0, s43, {VB - KB + 768}")
    S('v', 0, 0); do(V2)
    S('v', 0, 1); do(wk(6, 0))
    S('q', 2, 0); do(wk(6, 1))
    S('q', 2, 1); do(TK)
    S('k', 2, 0); do(mr(4))
    FLP = opt.get('FLP', 0)
    FLX = lambda r: ["s_mov_b64 exec, 1", vst(f"buffer_load_dword v{r}, off, {WS}, s41 sc1", 'fl'), "s_mov_b64 exec, -1"]
    S('k', 2, 1); do(*(FLX(VMS) if FLP == 0 else []))
    S('k', 3, 0); do(wk(7, 0))
    S('q', 3, 0); do(wk(7, 1))
    S('q', 3, 1); do(mr(5))
    S('k', 3, 1)
    S('k', 4, 0); do(mr(6))
    S('q', 4, 0); do(wk(8, 0), "s_add_u32 s57, s20, 1")
    S('k', 4, 1); do(wk(8, 1))
    S('q', 4, 1); do(mr(7), "s_lshr_b32 s21, s20, 1")
    S('k', 6, 0); do(wk(9, 0))
    S('k', 6, 1); do(wk(9, 1), "s_not_b32 s21, s21")
    S('k', 5, 0); do(*(FLX(VMS) if FLP == 1 else []))
    S('k', 7, 0); do(kr(0, 0), "s_min_u32 s57, s57, 62")
    S('k', 7, 1); do(kr(0, 1), "s_and_b32 s21, s21, 1")
    S('k', 5, 1); do(kr(0, 2), f"v_add_f32 v{K0}, v{K0}, v{K0+2}")
    S('q', 5, 0); do(kr(0, 3), f"v_add_f32 v{K0+1}, v{K0+1}, v{K0+3}")
    S('q', 6, 0); do(kr(1, 0), f"v_add_f32 v{K1}, v{K1}, v{K1+2}")
    S('q', 7, 0); do(kr(1, 1), f"v_add_f32 v{K1+1}, v{K1+1}, v{K1+3}")
    S('q', 5, 1); do(kr(1, 2), f"v_cvt_pk_bf16_f32 v{XT}, v{K0}, v{K1}")
    S('q', 6, 1); do(kr(1, 3), f"v_cvt_pk_bf16_f32 v{XT+1}, v{K0+1}, v{K1+1}")
    S('q', 7, 1); do(lambda: lds.issue(f"ds_write_b32 v{QW}, v{XT} offset:{KX - QX}", 'kw'), f"v_add_f32 v{Q0}, v{Q0}, v{Q0+2}")
    cst(a, opt, 1)
    S('v', 1, 0); do(lambda: lds.issue(f"ds_write_b32 v{QW}, v{XT+1} offset:{KX - QX + QROW}", 'kw'), f"v_add_f32 v{Q0+1}, v{Q0+1}, v{Q0+3}")
    S('v', 1, 1); do(lambda: lds.issue(f"ds_read_b64 v[{XT+2}:{XT+3}], v{KMS}", 'kr'))
    a(f"""v_add_f32 v{Q1}, v{Q1}, v{Q1+2}
v_add_f32 v{Q1+1}, v{Q1+1}, v{Q1+3}
v_cvt_pk_bf16_f32 v{Q0+2}, v{Q0}, v{Q1}
v_cvt_pk_bf16_f32 v{Q0+3}, v{Q0+1}, v{Q1+1}""")
    lds.issue(f"ds_write2_b32 v{QW}, v{Q0+2}, v{Q0+3} offset1:{QROW//4}", 'qw')
    S('v', 2, 0); do(f"v_lshrrev_b32 v{XT}, 1, v{L16}")
    S('v', 2, 1); do(lambda: lds.wait('kr'), f"v_min_u32 v{XT+2}, -2, v{XT+2}")
    S('v', 3, 0); do(vst(f"buffer_store_dwordx2 v[{XT+2}:{XT+3}], v{XT}, {WS}, s39 offen sc1"))
    lds.wait('qw')
    a("s_barrier")
    cst(a, opt, 16)
    QF = [92, 96, ACC + 8, ACC + 12]
    QM, KMF = [MEMF, MEMF + 4], [MEMF + 8, MEMF + 12]
    qr = lambda i: (lambda: lds.issue(f"ds_read_b128 {R4(QF[i])}, v{QR} offset:{64*i}", ('q', i)))
    qmr = lambda i: (lambda: lds.issue(f"ds_read_b128 {R4(QM[i])}, v{QRM} offset:{64*i}", ('qm', i)))
    kmr = lambda i: (lambda: lds.issue(f"ds_read_b128 {R4(KMF[i])}, v{QRM} offset:{KX - QX + 64*i}", ('km', i)))
    VF = MEMF + 16
    do(qr(0))
    S('v', 3, 1); do(qr(1))
    S('v', 4, 0); do(qr(2))
    S('v', 4, 1); do(qr(3))
    S('v', 5, 0); do(qmr(0), "s_add_u32 s56, s40, 8192")
    S('v', 5, 1); do(kmr(0))
    S('v', 6, 0); do(qmr(1))
    S('v', 7, 0); do(kmr(1))
    S('v', 6, 1); do(lambda: vm.wait('V'))
    S('v', 7, 1); do(*(FLX(VMS) if FLP == 2 else []))
    DV1 = DV2 = None
    cst(a, opt, 2)
    X0, X1, SM = ACC, ACC + 4, MEMF + 24
    V0, V1 = VAC, VAC + 4
    def MM(d, x, y, first): a(f"v_mfma_f32_16x16x32_bf16 {R4(d)}, {R4(x)}, {R4(y)}, {'0' if first else R4(d)}"); tick()
    VP = VAC + 2
    ONE = VAC + 4
    m, m2 = T0, T0 + 1
    WA = RING
    OS = [MEMF, MEMF + 8, 92, ACC + 8, MEMF + 24, VAC]
    osr = lambda n, h: (lambda: lds.issue(f"ds_read_b128 {R4(OS[n] + 4*h)}, v{WK} offset:{2048*(10 + n) + 1024*h}", ('os', n)))
    vr = lambda t: (lambda: lds.issue(f"ds_read_b128 {R4(VF + 4*t)}, v{M0A} offset:{VB - MEMB + 1024*t}", ('V', t)))
    QP = "quad_perm:[2,3,0,1] row_mask:0xf bank_mask:0xf"
    EM = XT + 2
    lds.wait(('q', 3))
    MM(X0, kf(0, 0), QF[0], True);  do(f"v_add_f32 v{V0}, v{V0}, v{V0+2}")
    MM(X0, kf(0, 1), QF[1], False); do("s_and_b32 s33, s20, 1", f"v_add_f32 v{V0+1}, v{V0+1}, v{V0+3}", f"v_add_f32 v{V1}, v{V1}, v{V1+2}")
    MM(X0, kf(0, 2), QF[2], False); do(f"s_mul_i32 s33, s33, {CSLOT}", f"v_add_f32 v{V1+1}, v{V1+1}, v{V1+3}", f"v_cvt_pk_bf16_f32 v{VP}, v{V0}, v{V0+1}")
    MM(X0, kf(0, 3), QF[3], False); do(lambda: lds.wait(('km', 1)), f"v_cvt_pk_bf16_f32 v{VP+1}, v{V1}, v{V1+1}", f"v_min_u32 v{VP}, -2, v{VP}")
    MM(SM, KMF[0], QM[0], True);    do(vst(f"buffer_store_dwordx2 v[{VP}:{VP+1}], v{XT}, {WS}, s39 offen offset:2048 sc1"), f"v_mov_b64 v[{ONE}:{ONE+1}], s[58:59]")
    MM(SM, KMF[1], QM[1], False);   do(vr(0) if CV else None, f"v_max3_f32 v{m}, v{X0}, v{X0+1}, v{X0+2}")
    MM(X1, kf(1, 0), QF[0], True);  do(vr(1) if CV else None, f"v_mov_b64 v[{ONE+2}:{ONE+3}], s[58:59]")
    MM(X1, kf(1, 1), QF[1], False); do("s_add_u32 s22, s54, s33", f"v_cndmask_b32_e64 v{SM}, v{SM}, v{SM+2}, {ETA}", f"v_cndmask_b32_e64 v{SM+1}, v{SM+1}, v{SM+3}, {ETA}")
    MM(X1, kf(1, 2), QF[2], False); do(f"v_add_f32_dpp v{SM}, v{SM}, v{SM} {QP}", f"v_add_f32_dpp v{SM+1}, v{SM+1}, v{SM+1} {QP}")
    MM(X1, kf(1, 3), QF[3], False)
    do(f"v_max3_f32 v{m}, v{m}, v{X0+3}, v{SM}",
       f"v_cndmask_b32_e64 v{EM}, v{SM}, v{SM+1}, {ETA}", f"v_max_f32 v{m}, v{m}, v{SM+1}", *zero(WA, WA + 10))
    cst(a, opt, 19)
    sel = lambda i: f"v_cndmask_b32_e64 v{X0+i}, v{X0+i}, v{X1+i}, {ETA}"
    a(f"""v_max3_f32 v{m}, v{m}, v{X1}, v{X1+1}
v_max3_f32 v{m2}, v{m}, v{X1+2}, v{X1+3}
v_max3_f32 v{m}, v{m}, v{X1+2}, v{X1+3}
{sel(0)}
{sel(1)}
v_permlane16_swap_b32 v{m2}, v{m}
v_max_f32 v{EM+1}, v{m}, v{m2}
v_max_f32 v{m}, v{m}, v{m2}
{sel(2)}
{sel(3)}
v_permlane32_swap_b32 v{EM+1}, v{m}
v_max_f32 v{m}, v{m}, v{EM+1}
v_mul_f32 v{m}, s52, v{m}""")
    cst(a, opt, 20)
    E = [X0, X0+1, X0+2, X0+3]
    if not CV: do(lambda: vm.wait('V'), vr(0), vr(1))
    for e in E: a(f"v_fma_f32 v{e}, v{e}, s52, -v{m}")
    for e in E: a(f"v_exp_f32 v{e}, v{e}")
    B0, B1, BM, O, p0, p1, LS = X1, 76, 80, 84, 82, 83, 88
    a(f"""v_cvt_pk_bf16_f32 v{p0}, v{X0}, v{X0+1}
v_cvt_pk_bf16_f32 v{p1}, v{X0+2}, v{X0+3}
v_cndmask_b32_e64 v{B1+2}, 0, v{p0}, {ETA}
v_cndmask_b32_e64 v{B1+3}, 0, v{p1}, {ETA}
v_cndmask_b32_e64 v{B0}, v{p0}, 0, {ETA}
v_cndmask_b32_e64 v{B0+1}, v{p1}, 0, {ETA}
v_mov_b32_dpp v{B0+2}, v{B1+2} {QP}
v_mov_b32_dpp v{B0+3}, v{B1+3} {QP}
v_fma_f32 v{EM}, v{EM}, s52, -v{m}""")
    lds.wait(('V', 1))
    cst(a, opt, 3)
    MM(LS, ONE, B0, True);  do(DV1, f"v_mov_b32_dpp v{B1}, v{B0} {QP}", f"v_mov_b32_dpp v{B1+1}, v{B0+1} {QP}")
    MM(O, VF, B0, True);    do(osr(0, 0), f"v_exp_f32 v{EM}, v{EM}")
    MM(LS, ONE, B1, False); do(osr(0, 1), f"v_mov_b32_dpp v{EM+1}, v{EM} {QP}")
    MM(O, VF + 4, B1, False)
    do(f"v_cvt_pk_bf16_f32 v{BM}, v{EM}, v{EM+1}", f"v_cndmask_b32_e64 v{BM}, v{BM}, 0, {ETA}", *zero(WA + 10, WA + 14),
       f"v_mov_b32_dpp v{BM+1}, v{BM} {QP}", *zero(WA + 14, WA + 16))
    a(f"v_mfma_f32_16x16x16_bf16 {R4(LS)}, v[{ONE}:{ONE+1}], v[{BM}:{BM+1}], {R4(LS)}")
    do(osr(1, 0))
    a(f"v_mfma_f32_16x16x16_bf16 {R4(O)}, v[{VP}:{VP+1}], v[{BM}:{BM+1}], {R4(O)}")
    do(osr(1, 1), DV2, "s_cmp_lt_u32 s20, 61", f"s_cselect_b32 s33, {32*24576}, 0")
    a(f"v_rcp_f32 v{LS}, v{LS}")
    do("s_add_u32 s87, s40, s33", "s_cmp_eq_u32 s20, 63")
    OP = X0
    for i in range(4): a(f"v_mul_f32 v{O+i}, v{O+i}, v{LS}")
    a(f"v_cvt_pk_bf16_f32 v{OP}, v{O}, v{O+1}\nv_cvt_pk_bf16_f32 v{OP+1}, v{O+2}, v{O+3}")
    cst(a, opt, 22)
    lds.issue(f"ds_write_b64 v{OW}, v[{OP}:{OP+1}]", 'ow')
    OF = [X1, VF, VF + 4, B1]
    for i in range(4):
        a(f"v_mov_b32_dpp v{OF[0]+i}, v{OP+(i&1)} quad_perm:{'[0,1,0,1]' if i < 2 else '[2,3,2,3]'} row_mask:0xf bank_mask:0xf")
    do(*[f"v_xor_b32 v{O+sg}, {512*sg}, v{ORD}" for sg in (1, 2, 3)])
    def so(phi, sg):
        d = WA + 4*phi
        kp, t = sg >> 1, sg & 1
        if (phi, kp) in O_REG: r = areg_o(phi, kp, t); b = f"a[{r}:{r+7}]"
        else:
            n = O_LDS.index((phi, kp))*2 + t; b = f"v[{OS[n]}:{OS[n]+7}]"
            lds.wait(('os', n))
        if sg: lds.wait(('o', sg))
        a(f"v_smfmac_f32_16x16x64_bf16 {R4(d)}, {R4(OF[sg])}, {b}, v{IDX}"); tick()
    so(0, 0); do("s_cbranch_scc1 ch_fin")
    lds.wait('ow')
    cst(a, opt, 24)
    a("s_barrier")
    orr = lambda sg: (lambda: lds.issue(f"ds_read_b128 {R4(OF[sg])}, v{O+sg}", ('o', sg)))
    do(orr(1))
    so(1, 0); do(orr(2), "s_add_u32 s23, s22, 4096")
    so(2, 0); do(orr(3), "s_add_u32 s36, s22, s53")
    so(3, 0); do(osr(2, 0), "s_add_u32 s20, s20, 1")
    cst(a, opt, 4)
    def epi(phi):
        A_ = WA + 4*phi
        return [f"v_cvt_pk_bf16_f32 v{A_}, v{A_}, v{A_+1}", f"v_cvt_pk_bf16_f32 v{A_+1}, v{A_+2}, v{A_+3}", f"v_bfi_b32 v{A_}, v{TAGM}, s21, v{A_}",
                f"buffer_store_dwordx2 v[{A_}:{A_+1}], v{ST}, {WS}, {'s22' if phi < 2 else 's23'} offen offset:{2048*(phi&1)}{SC1}"]
    e0, e1, e2, e3 = [epi(p) for p in range(4)]
    so(0, 1); do(osr(2, 1))
    so(0, 2); do(osr(3, 0))
    so(0, 3); do(osr(3, 1))
    so(1, 1); do(osr(4, 0), (lambda: vm.wait('sig')) if RT else None)
    so(1, 2); do(osr(4, 1), e0[0], e0[1], e0[2])
    so(1, 3); do(e0[3], osr(5, 0))
    so(2, 1); do(osr(5, 1), f"v_subrev_u32 v{FV}, s80, v{FV}" if RT else None)
    so(2, 2); do(f"s_add_u32 s39, s39, {32*4096}", "s_and_b32 s33, s20, 3", e1[0], e1[1], e1[2])
    so(2, 3); do(e1[3])
    so(3, 1); do("s_lshl_b32 s33, s33, 13", "s_add_u32 s38, s55, s33")
    so(3, 2); do("s_add_u32 s85, s87, s84", e2[0])
    so(3, 3); do(e2[1], e2[2], e2[3], *e3)
    cst(a, opt, 5)
    H = MEMF + 8
    R = MEMF + 16
    D1 = opt.get('D1', [220, 260, 300, 340])
    TT, QQ, C2, TOL, LI = opt.get('T', 3140), opt.get('Q', 512), opt.get('C2', 520), opt.get('TOL', 40), opt.get('LI', 32)
    DS_ = opt.get('DS', 150)
    def wait_rem(name):
        a(f"""{P}_{name}1:
s_sub_u32 s33, s33, {LI}
s_cmp_gt_i32 s33, 0
s_cbranch_scc1 {P}_{name}1""")
    assert QQ & (QQ - 1) == 0
    def grid(reg, thr):
        a(f"""s_waitcnt lgkmcnt(0)
s_sub_u32 s33, {reg}, s80
s_sub_u32 s34, {thr + QQ - 1}, s33
s_max_i32 s34, s34, 0
s_andn2_b32 s34, s34, {QQ - 1}
s_add_u32 s33, s33, s34""")
        if opt.get('cnt'): a(f"s_lshl_b32 s35, s34, {24 - QQ.bit_length() + 1}\ns_add_u32 s76, s76, s35")
    OV = 72 + (8 if opt.get('cnt') else 0)
    if SY:
        a(f"""s_memtime s[80:81]
s_add_u32 s63, s63, {TT}""")
        grid('s63', DS_)
        a("s_sub_u32 s33, s33, s82\ns_add_u32 s63, s63, s34\ns_sub_u32 s62, s63, s61")
        wait_rem('ga')
    else:
        a.nops((D1[0] - 24)//4)
        for w in (1, 2, 3):
            if D1[w] > D1[w-1]:
                a(f"s_cmp_lt_u32 {S_W}, {w}\ns_cbranch_scc1 {P}_h1a")
                a.nops((D1[w] - D1[w-1] - 16)//4)
    a(f"{P}_h1a:")
    cst(a, opt, 27)
    a(f"""buffer_load_dwordx4 {R4(H)}, v{L16}, {WS}, s36 offen sc1
buffer_load_dwordx4 {R4(H+4)}, v{L16}, {WS}, s36 offen offset:1024 sc1""")
    a(f"""s_waitcnt vmcnt({7 if FLP == 2 else 8})
v_readfirstlane_b32 s86, v{VMS}
v_bfe_i32 v{T0+1}, v{PD}, 0, 1
v_and_b32 v{XT+2}, 0x380, v{L16}
v_add_u32 v{XT+2}, v{XT+2}, v{L16}""")
    prep()
    a(f"""s_cmp_ge_u32 s57, s86
s_cbranch_scc1 {P}_kvwait
{P}_kvok:""")
    for i_ in range(2): a(f"s_add_u32 m0, s43, {896*i_}\nbuffer_load_dwordx4 v{KG}, {WS}, s40 offen offset:{128*i_} sc1 lds")
    a(f"""s_waitcnt vmcnt(3)
{P}_h1b:
v_mfma_f32_16x16x32_bf16 {R4(R)}, {R4(SEL)}, {R4(H)}, 0
v_xor_b32 v{T0}, s21, v{H}
s_waitcnt vmcnt(2)
v_mfma_f32_16x16x32_bf16 {R4(R)}, {R4(SEL)}, {R4(H+4)}, {R4(R)}
v_bitop3_b32 v{T0}, v{T0}, s21, v{H+4} bitop3:0xf6
v_and_b32 v{T0}, 1, v{T0}
v_cmp_ne_u32 vcc, 0, v{T0}
v_add_f32_dpp v{R}, v{R}, v{R} row_ror:4 row_mask:0xf bank_mask:0xf
v_add_f32_dpp v{R+1}, v{R+1}, v{R+1} row_ror:4 row_mask:0xf bank_mask:0xf
s_cbranch_vccnz {P}_h1retry
v_add_f32_dpp v{R}, v{R}, v{R} row_ror:8 row_mask:0xf bank_mask:0xf
v_add_f32_dpp v{R+1}, v{R+1}, v{R+1} row_ror:8 row_mask:0xf bank_mask:0xf
s_mov_b64 exec, s[50:51]
v_cvt_pk_bf16_f32 v{R}, v{R}, v{R+1}
v_med3_u32 v{R}, v{R}, v{PD}, v{T0+1}
buffer_store_dword v{R}, v{PUB}, {WS}, s37 offen{SC1}
s_memtime s[80:81]
s_mov_b64 exec, -1
v_add_u32 v{PUB}, 0x2000, v{PUB}
v_and_b32 v{PUB}, 0x7fff, v{PUB}
s_add_u32 s62, s62, s83
s_mov_b32 s40, s87""")
    cst(a, opt, 6)
    if SY:
        a(f"{P}_gb0:")
        grid('s62', OV + 20 - TOL)
        a(f"s_add_u32 s62, s62, s34\ns_sub_u32 s33, s33, {OV + 20}")
        wait_rem('gb')
    else: a.nops((D2 - 36)//4)
    a(f"s_branch {P}_h2")
    a(f"{P}_h2retry:"); spin_dec(a, 13)
    if opt.get('cnt'): a("s_add_u32 s76, s76, 0x10000")
    a(f"s_memtime s[80:81]\ns_branch {P}_gb0" if SY else f"s_branch {P}_h2")
    a(f"{P}_h1retry:"); spin_dec(a, 14)
    if opt.get('cnt'): a("s_add_u32 s76, s76, 1")
    if SY:
        a("s_memtime s[80:81]")
        grid('s62', OV + 20 - TOL)
        a(f"s_add_u32 s62, s62, s34\ns_sub_u32 s33, s33, {OV + opt.get('RA', 24)}")
        wait_rem('gr')
    cst(a, opt, 27)
    a(f"""buffer_load_dwordx4 {R4(H)}, v{L16}, {WS}, s36 offen sc1
buffer_load_dwordx4 {R4(H+4)}, v{L16}, {WS}, s36 offen offset:1024 sc1""")
    prep()
    a(f"s_branch {P}_kvok")
    a(f"{P}_kvwait:"); spin_dec(a, 15)
    a(f"""s_sleep 1
buffer_load_dword v{XT+1}, off, {WS}, s41 sc1
s_waitcnt vmcnt(0)
v_cmp_ge_u32 vcc, s57, v{XT+1}
s_cbranch_vccnz {P}_kvwait
s_branch {P}_kvok""")
```

```python
from common import *
from r_qkv import xtile_setup
from r_ao import load_w_perm8, w_addr, half_epilogue, shadow16, swap4, ring_next, part_addr, selectors, reduce_loads, reduce_sum, unpack8, done_store
HB = 0x20000
TS = 16384

def role_ffn(a, opt):
    a(f"""role_ffn:
s_lshr_b32 {S_L}, {S_I}, 4
s_and_b32 s35, {S_I}, 15""")
    if 'ffn_layers' in opt:
        for l in (0, 1):
            if l not in opt['ffn_layers']: a(f"s_cmp_eq_u32 {S_L}, {l}\ns_cbranch_scc1 the_end")
    a(f"""s_cmp_ge_u32 s35, 11
s_cbranch_scc1 ffn_R""")
    def ring_init():
        per = FFR*MB//2//16
        a(f"s_lshl_b32 s31, {S_L}, 21\ns_and_b32 s32, {S_I}, 15\ns_mul_i32 s32, s32, {per}\ns_add_u32 s31, s31, s32\ns_add_u32 s31, s31, {FFRING}")
        own_ring_init(a, 's31', per)
    def wait_init(code):
        if not opt.get('noinit'):
            wait_dbg(a, (D_GINIT + DONE)*4, 1, code + 1, vt=10)
    if not opt.get('noinit'): ring_init()
    sstamp(a, opt, 0, 8)
    hold(a, opt, 'HF', 40, 10, False)
    if opt.get('WARM', 0) and not opt.get('noinit'): warm_weights(a, 2)
    srd(a, 12, P_W1, 512*2752); srd(a, 16, P_W2, 1376*1024)
    a(f"""s_lshl_b32 s33, s35, 2
s_add_u32 s33, s33, {S_W}
s_lshl_b32 s50, s33, 6
s_cmp_eq_u32 s33, 43
s_cselect_b32 s50, 0x200000, s50
v_lshrrev_b32 v2, 2, v1
v_mul_u32_u24 v2, 2752, v2
v_and_b32 v3, 3, v1
v_lshl_add_u32 v2, v3, 4, v2
s_mul_i32 s52, {S_W}, 40960
v_lshrrev_b32 v3, 5, v1
v_lshlrev_b32 v3, 9, v3
v_bfe_u32 v4, v1, 2, 2
v_lshl_add_u32 v3, v4, 6, v3
v_bfe_u32 v4, v1, 4, 1
v_lshl_add_u32 v3, v4, 5, v3
v_and_b32 v4, 3, v1
v_lshl_add_u32 v3, v4, 3, v3
v_add_u32 v3, s52, v3""")
    def dma(i, q):
        a(f"buffer_load_dwordx4 v2, s[12:15], s50 offen lds\ns_add_u32 s50, s50, {16*2752}")
    def consume(i, off):
        r = 4 * i
        a(f"ds_read_b64_tr_b16 a[{r}:{r+1}], v3 offset:{off}")
        a(f"ds_read_b64_tr_b16 a[{r+2}:{r+3}], v3 offset:{off+256}")
        return 2
    stage_tr(a, 32, 32, 1024, 's52', dma, consume)
    a(f"""s_lshl_b32 s37, s35, 17
s_lshl_b32 s33, {S_W}, 8
s_add_u32 s37, s37, s33
""")
    for z in range(4): a(f"s_xor_b32 s33, {S_W}, {z}\ns_lshl_b32 s33, s33, 15\ns_add_u32 s{40+z}, s37, s33")
    w_addr(a, 'v4', 'v5')
    load_w_perm8(a, 's[16:19]', 'v4', lambda z: (f's{40+z}', 0), 4, lambda tau, z: 128 + (tau*4 + z) * 4, 16)
    sstamp(a, opt, 1, 8)
    wait_init(30)
    xtile_setup(a, 'v4', 'v5', 's36')
    part_addr(a, 'v8', 'v9', TS)
    a(f"""s_lshl_b32 s37, {S_L}, 21
s_add_u32 s37, s37, {XNF}
s_lshl_b32 s33, {S_W}, 13
s_add_u32 s37, s37, s33
s_lshl_b32 s38, {S_L}, 21
s_add_u32 s38, s38, {FFRING}
s_lshl_b32 s33, s35, 10
s_add_u32 s38, s38, s33
s_lshl_b32 s33, {S_W}, 8
s_add_u32 s38, s38, s33
s_lshl_b32 s33, {S_L}, 7
s_add_u32 s33, s33, {F_FFD}
v_min_u32 v6, 19, v1
v_lshl_add_u32 v6, v6, 2, s33
; h exchange
v_add_u32 v14, {HB}, v4
s_lshl_b32 s33, {S_W}, 11
v_add_u32 v13, s33, v14
v_xor_b32 v14, 0x800, v13
v_xor_b32 v15, 0x1000, v13
v_xor_b32 v3, 0x1800, v13
s_mov_b32 s44, {FFR-1}
s_mov_b32 s22, 0
s_mov_b32 s20, -1
s_barrier""")
    a(f"s_lshl_b32 s33, s35, 2\ns_add_u32 s33, s33, {S_W}\ns_lshl_b32 s33, s33, 2\ns_lshl_b32 s34, {S_L}, 8\ns_add_u32 s33, s33, s34\ns_add_u32 s47, s33, {F_FFM}")
    a(f"s_add_u32 s46, s37, {XA - XNF - 32768}\ns_cmp_eq_u32 s35, 0\ns_cselect_b64 s[56:57], -1, 0")
    a(f"s_mul_i32 s33, s35, 6\ns_lshl_b64 s[60:61], 63, s33" if opt.get('FT', 1) == 1 else "s_mov_b64 s[60:61], -1")
    decide_mode(a, 'ffs_pre', vt=10)
    FR, H, HO, HF, PK, GS = 16, 48, 64, 72, 96, (128, 160)
    def flag_load(): a(f"buffer_load_dword v7, v6, {WS}, 0 offen sc1")
    for P, SC1 in (('fff', ''), ('ffs', ' sc1')):
        a(f"""{P}_pre:
v_lshlrev_b32 v11, 7, v1""")
        xq_addr(a, 'v12', 'v9', 's36')
        light_wait(a, 's37', 10, 31, sleep=4)
        a("s_mov_b64 s[64:65], -1")
        xfetch_loop(a, f"{P}_wait", 'v4', 'v12', 192, 64, 's36', 's37', 's33', 32)
        FCK = opt.get('FCK', 22)
        MARK = f"s_mov_b64 exec, 1\nbuffer_store_dword v2, off, {WS}, s47{SC1}\ns_mov_b64 exec, -1"
        epiB = lambda: half_epilogue(GS[1], PK + 16, 'v8', 's23', 's22', TS, 1, SC1) + [MARK]
        NH = 8
        for pend in (0, 1):
            if pend: a(f"{P}_topp:")
            upd = f"s_add_u32 s20, s20, 1\ns_cmp_lt_u32 s20, 63\ns_cselect_b32 s39, 32768, 0\ns_add_u32 s37, s37, s39\ns_xor_b32 s36, s36, 0x10000\ns_add_u32 s46, s46, 32768\nv_xor_b32 v12, 0x10000, v12"
            if not pend: a(upd + f"\n{P}_again:")
            a("s_barrier")
            tr_stamp(a, opt, 0)
            for k in range(6): a(f"ds_read_b128 v[{FR+4*k}:{FR+4*k+3}], v5 offset:{32*k}")
            if pend: a(upd)
            side = epiB() if pend else []
            def s1(k):
                f = FR + 4 * (k % 8)
                a(f"s_waitcnt lgkmcnt({min(31, k + 5) - k})")
                a(f"v_mfma_f32_32x32x16_bf16 v[{H}:{H+15}], a[{4*k}:{4*k+3}], v[{f}:{f+3}], {f'v[{H}:{H+15}]' if k else '0'}")
                if k + 6 < 32:
                    n = FR + 4 * ((k + 6) % 8)
                    a(f"ds_read_b128 v[{n}:{n+3}], v5 offset:{32*(k+6)}")
                if k == 1: a(f"v_max_u32 v9, v{FR}, v{f}")
                elif k % 2: a(f"v_max3_u32 v9, v9, v{FR + 4*((k-1) % 8)}, v{f}")
            for _ in range(7):
                if side: a(side.pop(0))
            for k in range(NH):
                s1(k)
                for _ in range(3):
                    if side: a(side.pop(0))
            assert not side
            if not pend: a(f"s_branch {P}_mid")
        a(f"{P}_mid:")
        for k in range(NH, 32):
            s1(k)
            if k == NH: a(f"s_mov_b64 exec, s[56:57]\nbuffer_load_dword v10, v11, {WS}, s46 offen sc1\ns_mov_b64 exec, -1")
            DK, DN = opt.get('FDK', []), opt.get('FDN', [2, 7, 12, 17, 22, 27, 32, 37])
            xd = lambda r: f"s_add_u32 m0, s36, {r*XROW}\ns_add_u32 s34, s37, {r*1024}\nbuffer_load_dwordx4 v4, {WS}, s34 offen sc1 lds"
            if k in DK: a(xd(DK.index(k)))
            if k == 21: flag_load(); a(f"s_sub_u32 s41, s20, {FFR - 1}\ns_add_u32 s40, s20, 2")
            if k == opt.get('FTK', 20): a(f"s_mov_b64 exec, s[60:61]\nbuffer_load_dword v10, v11, {WS}, s37 offen sc1\ns_mov_b64 exec, -1")
        a(f"v_cmp_eq_u32 vcc, -1, v9\nv_mov_b32 v2, s40\ns_cbranch_vccnz {P}_redo\nv_xor_b32 v5, 0x10000, v5")
        if 'FSP' not in opt: tr_stamp(a, opt, 4)
        for i in range(4):
            a(f"v_cvt_pk_bf16_f32 v{HO+i}, v{H+2*i}, v{H+2*i+1}\nv_cvt_pk_bf16_f32 v{HO+4+i}, v{H+8+2*i}, v{H+8+2*i+1}")
        for i in range(4): a(f"v_permlane16_swap_b32 v{HO+i}, v{HO+4+i}")
        for i in range(8): a(f"v_pk_max_i16 v{HO+i}, v{HO+i}, 0")
        tr_stamp(a, opt, 1)
        side = []
        n_ = 0
        adr = {1: 'v14', 2: 'v15', 3: 'v3'}
        order = [(0, 0), (1, 0)] + [(h_, z) for h_ in range(2) for z in (1, 2, 3)]
        lds = Cnt(a, 'lgkmcnt', 15)
        BP = opt.get('FBP', 10)
        XW = opt.get('FXW', 1)
        for bi, (half, z) in enumerate(order):
            fr = HO + 4*half if z == 0 else HF + 4*(bi - 2)
            if z: lds.wait(bi)
            for tau in range(8):
                b = 128 + (tau*4 + z) * 4
                A = GS[half] + 4*tau
                a(f"v_mfma_f32_16x16x32_bf16 v[{A}:{A+3}], v[{fr}:{fr+3}], a[{b}:{b+3}], {'0' if z==0 else f'v[{A}:{A+3}]'}")
                if n_ == opt.get('FSP'): tr_stamp(a, opt, 4)
                if n_ == 0: a(f"ds_write_b128 v13, v[{HO}:{HO+3}]")
                if n_ == 3: a(f"ds_write_b128 v13, v[{HO+4}:{HO+7}] offset:1024")
                if n_ == BP: a("s_waitcnt lgkmcnt(0)\ns_barrier")
                if BP <= n_ < BP + 6:
                    h2, z2 = order[n_ - BP + 2]
                    lds.issue(f"ds_read_b128 v[{HF+4*(n_-BP)}:{HF+4*(n_-BP)+3}], {adr[z2]} offset:{1024*h2}", n_ - BP + 2)
                if n_ in DN: a(xd(len(DK) + DN.index(n_)))
                if n_ == 38: a("s_waitcnt vmcnt(8)\nv_cmp_gt_i32 vcc, s41, v7")
                if n_ == 40: a(f"s_cbranch_vccnz {P}_ringwait\n{P}_ringok:")
                if n_ == 41:
                    side = half_epilogue(GS[0], PK, 'v8', 's23', 's22', TS, 0, SC1)
                if n_ == 58: side += ["s_waitcnt vmcnt(4)\n" + xq_read('v12', 192)]
                if n_ == 62: side += ["s_waitcnt lgkmcnt(0)"] + xq_cmp(192, 64)
                if n_ in (19, 20, 21):
                    b_ = Asm(); ring_next(b_, 's44', 's22', 's23', 's38', 19, FFR)
                    a.items.extend(b_.items[{19: 0, 20: 3, 21: 5}[n_]:{19: 3, 20: 5, 21: 7}[n_]])
                shadow16(a, side)
                n_ += 1
        tr_stamp(a, opt, 2)
        for x in side: a(x)
        if opt.get('trace'):
            tr_stamp(a, opt, 3)
            tr_flush(a, opt, 's20', range(5), 240, wait=True)
        eb = epiB()
        a(f"s_cmp_eq_u32 s20, 63\ns_cbranch_scc1 {P}_last")
        a(f"s_cmp_lg_u64 s[64:65], 0\ns_cbranch_scc0 {P}_topp\n{P}_last:")
        for x in eb: a(x)
        if opt.get('trace'):
            tr_stamp(a, opt, 3)
            tr_flush(a, opt, 's20', [3], 240, wait=True)
        a(f"""s_cmp_eq_u32 s20, 63
s_cbranch_scc0 {P}_wait
s_branch ffn_fin""")
        xredo(a, f"{P}_redo", f"{P}_again", 'v4', 's36', 's37', 's39', 's33', 's34', 39)
        a(f"{P}_ringwait:")
        spin_dec(a, 33)
        flag_load()
        a(f"""s_waitcnt vmcnt(0)
v_cmp_gt_i32 vcc, s41, v7
s_cbranch_vccz {P}_ringok
s_sleep 1
s_branch {P}_ringwait""")
    a("ffn_fin:")
    tr_dump(a, opt, 5, 240, 10)
    a("s_branch the_end")
    S1, S2, R, X, U, D = 16, 20, 24, 32, 40, 64
    a("ffn_R:\ns_sub_u32 s35, s35, 11")
    if not opt.get('noinit'):
        a(f"""s_mul_i32 s33, {S_L}, 5
s_add_u32 s33, s33, s35
s_mul_i32 s33, s33, {FLG_SIZE//NZERO}
v_lshlrev_b32 v2, 4, v0
v_mov_b32 v4, 0
v_mov_b32 v5, 0
v_mov_b32 v6, 0
v_mov_b32 v7, 0""")
        for i in range(FLG_SIZE // NZERO // 4096):
            a(f"buffer_store_dwordx4 v[4:7], v2, {WS}, s33 offen sc1\ns_add_u32 s33, s33, 4096")
        a(f"""s_waitcnt vmcnt(0)
s_barrier
s_cmp_eq_u32 {S_W}, 0
s_cbranch_scc0 ffr_nz""")
        count_in(a, D_INIT, NZERO)
        a("ffr_nz:")
        ring_init()
    a(f"""s_mul_i32 s46, {S_W}, 5
s_add_u32 s46, s46, s35
s_add_u32 s46, s46, 20
s_lshl_b32 s35, s35, 2
s_add_u32 s35, s35, {S_W}
s_sub_u32 s47, s46, s35
s_lshl_b32 s48, s47, 14
s_lshl_b32 s49, s47, 10
s_cmp_eq_u32 {S_L}, 0
s_cselect_b32 s12, s{P_WS}, s{P_OUT}
s_cselect_b32 s13, s{P_WS+1}, s{P_OUT+1}
s_mov_b32 s14, {hex(2*MB)}
s_cselect_b32 s14, {hex(WS_SIZE)}, s14
s_mov_b32 s15, 0x20000
s_cselect_b32 s37, {XF}, 0
s_lshl_b32 s33, s35, 10
s_add_u32 s37, s37, s33
s_lshl_b32 s34, {S_L}, 21
s_add_u32 s36, s34, s33
s_add_u32 s36, s36, {XA - 32768}
s_lshl_b32 s33, s35, 14
s_lshl_b32 s34, {S_L}, 21
s_add_u32 s38, s33, s34
s_add_u32 s38, s38, {FFRING}
s_lshl_b32 s33, {S_L}, 7
s_lshl_b32 s34, s35, 2
s_add_u32 s33, s33, s34
s_add_u32 s40, s33, {F_FFD}
s_lshl_b32 s34, s35, 7
s_add_u32 s39, s34, {F_FFR}
s_lshl_b32 s33, {S_L}, 8
s_add_u32 s41, s33, {F_FFM}
v_lshrrev_b32 v6, 4, v1
v_lshlrev_b32 v6, 10, v6
v_and_b32 v7, 15, v1
v_lshl_add_u32 v6, v7, 4, v6
v_lshlrev_b32 v7, 4, v1
s_mov_b32 s43, {FFR-1}
s_mov_b32 s22, 0
s_lshl_b32 s33, s47, 7
v_mul_lo_u32 v2, s33, v1
v_mov_b32 v8, 0
v_cmp_gt_u32 vcc, 48, v1
v_cndmask_b32_e64 v5, 0, -1, vcc
v_mov_b32 v4, 0x40000000
v_cndmask_b32 v4, v4, v6, vcc
v_min_u32 v3, 43, v1
v_lshlrev_b32 v3, 2, v3
s_mov_b32 s20, 0""")
    selectors(a, S1, S2, 10)
    wait_init(34)
    a("s_mov_b32 s42, 1")
    decide_mode(a, 'ffr_sel', vt=10)
    a(f"""s_mov_b32 s42, 0
ffr_sel:
v_mov_b32 v9, 0
s_cmp_lt_u32 s46, 32
s_cselect_b32 s33, 2, 0
s_add_u32 s33, s33, {S_L}""")
    a("s_mov_b32 s54, s33\ns_add_u32 s55, s36, 32768")
    a("v_lshlrev_b32 v11, 7, v1\ns_cmp_lt_u32 s46, 32\ns_cselect_b32 s56, s48, 0\ns_add_u32 s56, s56, s38")
    for sl in range(FFR):
        for sb in ('s38', 's56'):
            for q in range(2): a(f"s_add_u32 s33, {sb}, {sl*MB//2 + q*8192}\nbuffer_load_dword v10, v11, {WS}, s33 offen sc1")
    light_wait(a, 's55', 10, 38, sleep=16)
    for v_ in (1, 2, 3): a(f"s_cmp_eq_u32 s54, {v_}\ns_cbranch_scc1 ffr{v_}_loop")
    for v_ in range(4):
        L0, NT, P = (v_ & 1) == 0, 1 + (v_ >> 1), f"ffr{v_}"
        NST = NT * (2 if L0 else 1)
        OO = (48, 56)
        def loads(t):
            b = Asm()
            b(f"buffer_load_dwordx4 v[{X+4*t}:{X+4*t+3}], v7, {WS}, {'s51' if t else 's36'} offen sc1")
            reduce_loads(b, 3, ['v6', 'v6', 'v4'], 's50' if t else 's23', D + 48*t)
            return list(b.items)
        a(f"""{P}_loop:
s_add_u32 s21, s20, 1
s_add_u32 s45, s20, 2
v_cmp_gt_u32 vcc, s45, v9""")
        ring_next(a, 's43', 's22', 's23', 's38', 19, FFR)
        a(f"""s_add_u32 s36, s36, 32768
s_add_u32 s50, s23, s48
s_add_u32 s51, s36, s49
s_cbranch_vccz {P}_g
{P}_p:
buffer_load_dword v9, v3, {WS}, s41 offen sc1""")
        spin_dec(a, 37)
        a(f"""s_waitcnt vmcnt(0)
v_cmp_gt_u32 vcc, s45, v9
s_cbranch_vccnz {P}_p
{P}_g:""")
        tr_stamp(a, opt, 0)
        a.items.extend(loads(0))
        rest = loads(1) if NT == 2 else []
        def more(n):
            c = 0
            while rest and c < n:
                it = rest.pop(0); a.items.append(it)
                if it[1].kind == 'vmem': c += 1
            return c
        ahead = more(opt.get('FRA', 4))
        a(f"s_sub_u32 s44, s37, {XF - (XN + 2*MB)}\ns_add_u32 s52, s44, s49\ns_add_u32 s53, s37, s49")
        for t in range(NT):
            a(f"s_waitcnt vmcnt({12 + (ahead if t == 0 else 0)})\nv_cmp_eq_u32 vcc, -1, v{X+4*t}")
            swap4(a, X + 4*t)
            unpack8(a, U, X + 4*t)
            a(f"s_cbranch_vccnz {P}_p")
            reduce_sum(a, 3, D + 48*t, S1, S2, R, 10, 's22', ahead if t == 0 else 0, lastmask='v5', cin=U, mid=lambda i: more(1))
            assert not rest
            a(f"s_cbranch_vccnz {P}_p")
            if t == NT - 1:
                tr_stamp(a, opt, 1)
                done_store(a, 's21', 13, 'v8', 's40', 's42', 1)
                a(f"buffer_load_dword v9, v3, {WS}, s41 offen sc1")
                if t and L0: a(f"buffer_store_dwordx4 v[{OO[0]+4}:{OO[0]+7}], v7, {WS}, s44 offen sc1")
            o = OO[t]
            if L0: layernorm8f(a, R, o + 4, 12, keep=o)
            else:
                for i in (0, 2, 1, 3): a(f"v_cvt_pk_bf16_f32 v{o+i}, v{R+2*i}, v{R+2*i+1}")
                swap4(a, o)
        if L0: a(f"buffer_store_dwordx4 v[{OO[NT-1]+4}:{OO[NT-1]+7}], v7, {WS}, {'s52' if NT == 2 else 's44'} offen sc1")
        for t in range(NT):
            a(f"buffer_store_dwordx4 v[{OO[t]}:{OO[t]+3}], v7, s[12:15], {'s53' if t else 's37'} offen{' sc1' if L0 else opt.get('OFL', '')}")
        tr_stamp(a, opt, 2)
        tr_flush(a, opt, 's20', range(3), 240, wait=True)
        a(f"""s_add_u32 s37, s37, 32768
s_mov_b32 s20, s21
s_waitcnt vmcnt({NST})
s_cmp_lt_u32 s20, 64
s_cbranch_scc1 {P}_loop""")
        tr_dump(a, opt, 3, 240, 10)
        diag(a, opt, 6, 10)
        if opt.get('WB') and L0: a(f"s_cmp_eq_u32 {S_W}, 0\ns_cbranch_scc1 end_wb")
        a("s_branch the_end")
```

```python
from common import *

def ln1_and_init(a, opt):
    srd(a, 12, P_X, hex(2*MB))
    a(f"""s_lshl_b32 s31, {S_L}, 5
s_add_u32 s31, s31, {S_I}
s_lshl_b32 s31, s31, 2
s_add_u32 s36, s31, {S_W}
s_lshl_b32 s37, s36, 10
v_lshlrev_b32 v2, 4, v1""")
    for p in range(8):
        a(f"s_add_u32 s31, s37, {p*256*1024}\nbuffer_load_dwordx4 v[{16+4*p}:{19+4*p}], v2, s[12:15], s31 offen")
    NW = 0
    if NW: warm_weights(a, 2)
    for p in range(8):
        a(f"s_waitcnt vmcnt({7 + NW})")
        for i in range(4):
            a(f"v_lshlrev_b32 v{4+2*i}, 16, v{16+4*p+i}\nv_and_b32 v{5+2*i}, 0xffff0000, v{16+4*p+i}")
        layernorm8(a, 4, 16+4*p, 12)
        a(f"v_min_u32 v{16+4*p}, -2, v{16+4*p}")
        a(f"s_add_u32 s31, s37, {XN + p*256*1024}\nbuffer_store_dwordx4 v[{16+4*p}:{19+4*p}], v2, {WS}, s31 offen sc1")
    if not opt.get('noinit'): wait_dbg(a, (D_INIT + DONE)*4, 1, 5, vt=4)
    a(f"""s_waitcnt vmcnt(0)
s_lshl_b32 s31, s36, 7
s_add_u32 s31, s31, {F_LN1}
v_mov_b32 v4, 8
v_mov_b32 v5, 0
s_mov_b64 exec, 1
buffer_store_dword v4, v5, {WS}, s31 offen sc1
s_mov_b64 exec, -1""")
    sstamp(a, opt, 0, 8)
    if opt.get('noinit'): return
    a(f"""v_lshlrev_b32 v2, 4, v0
v_mov_b32 v4, 0
v_mov_b32 v5, 0
v_mov_b32 v6, 0
v_mov_b32 v7, 0""")
    def fill(lst):
        for base, stride, size in lst:
            per = size // 32
            a(f"""s_mul_i32 s31, {S_L}, {stride}
s_mul_i32 s32, {S_I}, {per}
s_add_u32 s31, s31, s32
s_add_u32 s31, s31, {base}""")
            for i in range(per // 4096):
                a(f"buffer_store_dwordx4 v[4:7], v3, {WS}, s31 offen sc1\ns_add_u32 s31, s31, 4096")
    def signal(idx, name, per_layer=True):
        a(f"""s_waitcnt vmcnt(0)
s_barrier
s_cmp_eq_u32 {S_W}, 0
s_cbranch_scc0 {name}
s_lshl_b32 s31, {S_L}, 2""")
        count_in(a, idx, 32, 's31')
        a(f"{name}:")
    a("v_mov_b32 v3, v2")
    fill([(CRING, MB, CMEM_OFF)])
    srd(a, 12, P_MEM0, 8192)
    a(f"""s_cmp_lt_u32 {S_I}, 8
s_cbranch_scc0 init_nomem
v_mov_b32 v8, -1
v_mov_b32 v9, -1
v_mov_b32 v10, -1
v_mov_b32 v11, -1
s_cmp_lt_u32 {S_I}, 2
s_cbranch_scc0 init_poison
v_bfe_u32 v12, v0, 2, 2
v_lshlrev_b32 v12, 11, v12
v_and_b32 v13, 1, v0
v_lshl_add_u32 v12, v13, 10, v12
v_lshrrev_b32 v13, 4, v0
v_lshl_add_u32 v12, v13, 5, v12
v_bfe_u32 v13, v0, 1, 1
v_lshl_add_u32 v12, v13, 2, v12
s_lshl_b32 s31, {S_I}, 9
buffer_load_dword v8, v12, s[12:15], s31 offen
buffer_load_dword v9, v12, s[12:15], s31 offen offset:8
buffer_load_dword v10, v12, s[12:15], s31 offen offset:16
buffer_load_dword v11, v12, s[12:15], s31 offen offset:24
s_waitcnt vmcnt(0)
v_min_u32 v8, -2, v8
v_min_u32 v9, -2, v9
v_min_u32 v10, -2, v10
v_min_u32 v11, -2, v11
v_bfe_u32 v2, v0, 3, 4
v_lshlrev_b32 v2, 8, v2
v_lshrrev_b32 v12, 7, v0
v_lshl_add_u32 v2, v12, 7, v2
v_and_b32 v12, 7, v0
v_lshl_add_u32 v2, v12, 4, v2
init_poison:
s_lshl_b32 s31, {S_L}, 20
s_lshl_b32 s32, {S_I}, 12
s_add_u32 s31, s31, s32
s_add_u32 s31, s31, {CRING + CMEM_OFF}
buffer_store_dwordx4 v[8:11], v2, {WS}, s31 offen sc1
init_nomem:""")
    a(f"""s_lshl_b32 s31, {S_L}, 5
s_add_u32 s31, s31, {S_I}
s_lshl_b32 s31, s31, 10
v_lshlrev_b32 v3, 2, v0
v_mov_b32 v4, -1""")
    for b in (XN + 2*MB, XNF, XNF + 2*MB, XA, XA + 2*MB, XF):
        a(f"s_add_u32 s32, s31, {b}\nbuffer_store_dword v4, v3, {WS}, s32 offen sc1")
    a(f"""s_lshl_b32 s31, {S_L}, 23
s_lshl_b32 s32, {S_I}, 12
s_add_u32 s31, s31, s32
s_add_u32 s31, s31, {KM}""")
    for q in range(4): a(f"buffer_store_dword v4, v3, {WS}, s31 offen offset:{1024*q} sc1")
    signal(D_CINIT, 'init_d1')
    sstamp(a, opt, 1, 8)
    per = (opt.get('AOR', AOR)+1)*MB//2//32
    a(f"s_lshl_b32 s31, {S_L}, 22\ns_mul_i32 s32, {S_I}, {per}\ns_add_u32 s31, s31, s32\ns_add_u32 s31, s31, {AORING}")
    own_ring_init(a, 's31', per)
    sstamp(a, opt, 2, 8)
```

```python
from common import *

XROW = 1040
def xtile_setup(a, vga, vrd, s_m0):
    a(f"""v_lshlrev_b32 {vga}, 4, v1
v_and_b32 {vrd}, 31, v1
v_mul_u32_u24 {vrd}, {XROW}, {vrd}
v_lshrrev_b32 v2, 5, v1
v_lshl_add_u32 {vrd}, v2, 4, {vrd}
s_mul_i32 {s_m0}, {S_W}, {8*XROW}""")

def xtile_dma(a, vga, s_m0, s_src, st):
    for r in range(8):
        a(f"s_add_u32 m0, {s_m0}, {r*XROW}")
        if r: a(f"s_add_u32 {st}, {s_src}, {r*1024}")
        a(f"buffer_load_dwordx4 {vga}, {WS}, {st if r else s_src} offen sc1 lds")

def xld(XS, r, vga, s0, s1):
    return f"buffer_load_dwordx4 v[{XS+4*r}:{XS+4*r+3}], {vga}, {WS}, {s0 if r < 4 else s1} offen offset:{1024*(r&3)} sc1"
def xwr(XS, r, vw):
    return f"ds_write_b128 {vw}, v[{XS+4*r}:{XS+4*r+3}] offset:{r*XROW}"
def xblock(a, XS, vga, vw, s0, s1):
    a(f"s_add_u32 {s1}, {s0}, 4096")
    for r in range(8): a(xld(XS, r, vga, s0, s1))
    for r in range(8): a(f"s_waitcnt vmcnt({7-r})\n" + xwr(XS, r, vw))

def role_qkv(a, opt, g0):
    a(f"""role_qkv:
s_sub_u32 s20, {S_G}, {g0}
s_lshl_b32 s20, s20, 4
s_and_b32 s31, {S_I}, 15
s_add_u32 s20, s20, s31
s_lshr_b32 {S_L}, {S_I}, 4""")
    if 'qkv_layers' in opt:
        for l in (0, 1):
            if l not in opt['qkv_layers']: a(f"s_cmp_eq_u32 {S_L}, {l}\ns_cbranch_scc1 the_end")
    a(f"""s_cmp_lt_u32 s20, 32
s_cselect_b32 s12, s{P_WK}, s{P_WQ}
s_cselect_b32 s13, s{P_WK+1}, s{P_WQ+1}
s_cselect_b32 s16, s{P_WV}, s{P_WQ}
s_cselect_b32 s17, s{P_WV+1}, s{P_WQ+1}
s_mov_b32 s14, 0x400000
s_mov_b32 s15, 0x20000
s_mov_b32 s18, 0x400000
s_mov_b32 s19, 0x20000
s_sub_u32 s31, s20, 32
s_lshl_b32 s31, s31, 1
s_add_u32 s32, s31, 1
s_cmp_lt_u32 s20, 32
s_cselect_b32 s46, s20, s31
s_cselect_b32 s47, s20, s32
s_cselect_b32 s48, 8192, 0
s_cselect_b32 s49, 16384, 0
s_lshl_b32 s31, {S_W}, 6
s_lshl_b32 s50, s46, 8
s_add_u32 s50, s50, s31
s_lshl_b32 s51, s47, 8
s_add_u32 s51, s51, s31
v_lshrrev_b32 v2, 4, v1
v_lshlrev_b32 v2, 7, v2
v_bfe_u32 v3, v1, 2, 2
v_add_u32 v2, v2, v3
v_lshlrev_b32 v2, 13, v2
v_and_b32 v4, 3, v1
v_lshl_add_u32 v2, v4, 4, v2
s_mul_i32 s52, {S_W}, 40960
v_lshrrev_b32 v5, 2, v1
v_lshlrev_b32 v5, 6, v5
v_add_u32 v5, s52, v5
v_lshl_add_u32 v10, v4, 3, v5
v_bfe_u32 v3, v1, 1, 1
v_lshl_add_u32 v3, v3, 5, v5
v_and_b32 v4, 1, v1
v_lshl_add_u32 v3, v4, 3, v3
s_cmp_lt_u32 s20, 32
s_cselect_b64 vcc, -1, 0
s_cselect_b32 s31, 32, 16
v_cndmask_b32 v10, v3, v10, vcc
v_add_u32 v11, s31, v10""")
    def dma(i, q):
        z = i // 32
        sr = 's50' if z == 0 else 's51'
        a(f"buffer_load_dwordx4 v2, {'s[12:15]' if z==0 else 's[16:19]'}, {sr} offen lds")
        a(f"s_add_u32 {sr}, {sr}, {4*8192}")
    def consume(i, off):
        z, kp, ul = i // 32, (i % 32) >> 1, i & 1
        for t in range(2):
            r = 128*z + (2*kp + t)*4 + 2*ul
            a(f"ds_read_b64_tr_b16 a[{r}:{r+1}], {'v3' if z == 0 else f'v{10+t}'} offset:{off + (16*t if z == 0 else 0)}")
        return 2
    stage_tr(a, 64, 40, 1024, 's52', dma, consume)
    a(f"""v_lshlrev_b32 v4, 4, v1
v_bfe_u32 v2, v1, 3, 1
v_and_b32 v3, 7, v1
v_lshl_add_u32 v3, v2, 4, v3
v_mul_u32_u24 v5, {XROW}, v3
v_lshl_add_u32 v5, v2, 7, v5
v_lshrrev_b32 v2, 4, v1
v_lshl_add_u32 v5, v2, 8, v5
v_lshlrev_b32 v2, 9, v2
v_lshl_add_u32 v13, v3, 4, v2
v_and_b32 v3, 15, v1
v_lshl_add_u32 v14, v3, 4, v2
s_mul_i32 s36, {S_W}, {8*XROW}
s_lshr_b32 s31, {S_W}, 1
s_lshl_b32 s31, s31, 7
s_add_u32 s36, s36, s31""")
    a(f"""s_lshl_b32 s37, {S_L}, 21
s_add_u32 s37, s37, {XN}
s_lshl_b32 s31, {S_W}, 13
s_add_u32 s37, s37, s31
s_mul_i32 s31, {S_L}, {48*MB}
s_add_u32 s31, s31, {QKV}
s_lshl_b32 s32, {S_W}, 11
s_add_u32 s31, s31, s32
s_mul_i32 s38, s46, 24576
s_add_u32 s38, s38, s31
s_add_u32 s38, s38, s48
s_mul_i32 s39, s47, 24576
s_add_u32 s39, s39, s31
s_add_u32 s39, s39, s49
s_lshl_b32 s31, {S_L}, 5
s_add_u32 s31, s31, s20
s_lshl_b32 s31, s31, 9
s_add_u32 s31, s31, {F_KV}
s_lshl_b32 s32, {S_L}, 4
s_add_u32 s32, s32, s20
s_sub_u32 s32, s32, 32
s_lshl_b32 s32, s32, 9
s_add_u32 s32, s32, {F_Q}
s_cmp_lt_u32 s20, 32
s_cselect_b32 s43, s31, s32
s_lshl_b32 s31, {S_W}, 7
s_add_u32 s43, s43, s31
v_and_b32 v6, 7, v1
v_lshlrev_b32 v6, 7, v6
v_lshrrev_b32 v7, 3, v1
v_lshl_add_u32 v6, v7, 12, v6
s_lshl_b32 s31, {S_W}, 10
s_add_u32 s45, s31, {F_LN1}
v_mov_b32 v8, 0
s_mov_b32 s21, -1
s_barrier""")
    sstamp(a, opt, 0, 10)
    a(f"s_cmp_eq_u32 {S_L}, 0\ns_cbranch_scc1 qkv_l0")
    if not opt.get('noinit'):
        wait_dbg(a, (D_GINIT + DONE)*4, 1, 3, vt=10, sleep=32)
    light_wait(a, 's37', 10, 6, sleep=4)
    a("s_branch qkv_go\nqkv_l0:")
    if not opt.get('noinit'): wait_dbg(a, (D_INIT + DONE)*4, 1, 3, vt=10)
    a("qkv_ln:")
    spin_dec(a, 5)
    a(f"""buffer_load_dword v7, v6, {WS}, s45 offen sc1
s_waitcnt vmcnt(0)
v_cmp_eq_u32 vcc, 0, v7
s_cbranch_vccnz qkv_ln
qkv_go:""")
    B0 = [XNF, XA, XN + 2*MB, XF]; B1 = [XNF + 2*MB, XA + 2*MB, 0x40000000, 0x40000000]
    a(f"s_lshl_b32 s33, {S_L}, 2\ns_add_u32 s33, s33, {S_W}\ns_mov_b32 s41, {B0[0]}")
    for i_, b in enumerate(B0 + B1):
        if i_: a(f"s_cmp_eq_u32 s33, {i_}\ns_cselect_b32 s41, {b}, s41")
    a("s_lshl_b32 s33, s20, 10\ns_add_u32 s41, s41, s33\nv_mov_b32 v100, -1\nv_mov_b32 v101, -1\nv_mov_b32 v102, -1\nv_mov_b32 v103, -1")
    a(f"""s_lshl_b32 s33, {S_L}, 23
s_lshl_b32 s34, s20, 12
s_add_u32 s33, s33, s34
s_lshl_b32 s34, {S_W}, 9
s_add_u32 s33, s33, s34
s_add_u32 s44, s33, {KM}
v_lshrrev_b32 v15, 5, v1
v_mul_u32_u24 v15, 1536, v15
v_add_u32 v15, v15, v4""")
    xq_addr(a, 'v12', 'v9', 's36')
    a("s_mov_b64 s[64:65], -1")
    def publish(delta):
        a(f"""s_add_u32 s31, s21, {delta}
v_mov_b32 v9, s31
s_mov_b64 exec, 1
buffer_store_dword v9, v8, {WS}, s43 offen sc1
s_mov_b64 exec, -1""")
    a(f"s_cmp_lt_u32 s20, 32\ns_cbranch_scc0 qq_wait")
    FR, A0, A1, PK = 16, 48, 64, 80
    xo = lambda k: 8*XROW*(k & 1) + 16*(k >> 1)
    for var in ('kv', 'qq'):
        xfetch_loop(a, f"{var}_wait", 'v4', 'v12', 96, 64, 's36', 's37', 's31', 4)
        a(f"""{var}_top:
s_add_u32 s21, s21, 1
s_cmp_lt_u32 s21, 63
s_cselect_b32 s40, 32768, 0
s_cselect_b32 s42, 0, 0x40000000
s_add_u32 s41, s41, 32768
s_or_b32 s41, s41, s42
s_add_u32 s44, s44, {32*4096}
s_or_b32 s44, s44, s42
s_add_u32 s37, s37, s40
s_xor_b32 s36, s36, 0x10000
v_xor_b32 v12, 0x10000, v12
{var}_again:
s_barrier""")
        tr_stamp(a, opt, 0)
        lds = Cnt(a, 'lgkmcnt', 15)
        for k in range(6): lds.issue(f"ds_read_b128 v[{FR+4*k}:{FR+4*k+3}], v5 offset:{xo(k)}", k)
        a("v_mov_b32 v9, s21")
        def epi(z):
            A = (A0, A1)[z]
            nat = (var == 'kv' and z == 1)
            L = []
            for u in range(2):
                for i in range(4):
                    r0 = A + 8*(i >> 1) + 4*u + 2*(i & 1) if nat else A + 8*u + i
                    r1 = r0 + 1 if nat else r0 + 4
                    L.append(f"v_cvt_pk_bf16_f32 v{PK+8*z+4*u+i}, v{r0}, v{r1}")
                p = PK + 8*z + 4*u
                L.append(f"buffer_store_dwordx4 v[{p}:{p+3}], {'v14' if nat else 'v13'}, {WS}, {'s38' if z==0 else 's39'} offen offset:{(256 if nat else 128)*u} sc1")
            return L
        def mm(z, k, t):
            f = f"v[{FR+4*(k%8)}:{FR+4*(k%8)+3}]"; r = 128*z + (2*(k >> 1) + t)*4; w_ = f"a[{r}:{r+3}]"
            x, y = (f, w_) if (var == 'kv' and z == 1) else (w_, f)
            A = (A0, A1)[z] + 8*(k & 1) + 4*t
            a(f"v_mfma_f32_16x16x32_bf16 v[{A}:{A+3}], {x}, {y}, {f'v[{A}:{A+3}]' if k > 1 else '0'}")
        def split(z, k):
            flush()
            mm(z, k, 0); pend.append((len(a.items), z, k))
        pend = []
        def flush():
            if pend:
                pos, z, k = pend.pop()
                tail = a.items[pos:]; del a.items[pos:]
                h_ = min(len(tail), (len(tail) + 1) // 2)
                ex = [i for i, it in enumerate(tail) if it[0] == 'i' and it[1].text.startswith('s_mov_b64 exec')]
                if ex and ex[0] < h_ <= ex[-1]: h_ = ex[0]
                a.items.extend(tail[:h_]); mm(z, k, 1); a.items.extend(tail[h_:])
        m0 = lambda k: split(0, k)
        m1 = lambda k: split(1, k)
        PB, D0 = opt.get('QPB', 13), opt.get('QD0', 4)
        nd = 0
        for k in range(28):
            lds.wait(k)
            m0(k)
            if k + 6 < 32:
                n = FR + 4 * ((k + 6) % 8)
                lds.issue(f"ds_read_b128 v[{n}:{n+3}], v5 offset:{xo(k+6)}", k + 6)
            if k == 1: a(f"v_max_u32 v7, v{FR}, v{FR+4}")
            elif k % 2: a(f"v_max3_u32 v7, v7, v{FR + 4*((k-1) % 8)}, v{FR + 4*(k % 8)}")
            m1(k)
            if k >= D0 and (k - D0) % 2 == 0 and nd < 8:
                a(f"s_add_u32 m0, s36, {nd*XROW}\ns_add_u32 s31, s37, {nd*1024}\nbuffer_load_dwordx4 v4, {WS}, s31 offen sc1 lds"); nd += 1
            if k == PB:
                tr_stamp(a, opt, 1)
                a(f"s_waitcnt vmcnt({nd})")
                tr_stamp(a, opt, 2)
                a(f"s_mov_b64 exec, 1\nbuffer_store_dword v9, v8, {WS}, s43 offen sc1\ns_mov_b64 exec, -1")
        assert nd == 8
        lds.wait(31)
        m0(28); a(f"v_max3_u32 v7, v7, v{FR+16}, v{FR+20}\nv_max3_u32 v7, v7, v{FR+24}, v{FR+28}")
        m0(29); a("v_cmp_eq_u32 vcc, -1, v7")
        m0(30)
        if var == 'kv': a(f"buffer_store_dwordx4 v[100:103], v15, {WS}, s44 offen sc1")
        m0(31); flush()
        a(f"s_cbranch_vccnz {var}_redo")
        e0 = epi(0)
        m1(28)
        for x in e0[:4]: a(x)
        m1(29)
        for x in e0[4:9]: a(x)
        m1(30)
        a(e0[9])
        m1(31)
        if var == 'kv': a(f"buffer_store_dwordx4 v[100:103], v4, {WS}, s41 offen sc1")
        flush()
        a(f"s_waitcnt vmcnt({4 if var == 'kv' else 2})\n" + xq_read('v12', 96))
        a("v_xor_b32 v5, 0x10000, v5")
        tr_stamp(a, opt, 3)
        for x in epi(1): a(x)
        a("s_waitcnt lgkmcnt(0)")
        for x in xq_cmp(96, 64): a(x)
        tr_stamp(a, opt, 4)
        tr_flush(a, opt, 's21', range(5), 240, wait=True)
        a(f"""s_add_u32 s38, s38, {32*24576}
s_add_u32 s39, s39, {32*24576}
s_cmp_eq_u32 s21, 63
s_cbranch_scc1 qkv_fin""")
        a(f"s_cmp_lg_u64 s[64:65], 0\ns_cbranch_scc0 {var}_top")
        xfetch_loop(a, f"{var}_w1", 'v4', 'v12', 96, 64, 's36', 's37', 's31', 4)
        a.items.pop()
        a("s_cselect_b32 s22, 1, 0")
        publish(1)
        a(f"s_cmp_eq_u32 s22, 1\ns_cbranch_scc1 {var}_wait\ns_branch {var}_top")
        xredo(a, f"{var}_redo", f"{var}_again", 'v4', 's36', 's37', 's40', 's31', 's32', 7)
    a("qkv_fin:\ns_waitcnt vmcnt(0)")
    publish(1)
    tr_dump(a, opt, 5, 240, 10)
    a("s_branch the_end")
```
